```python
import torch

def _softmax(x, axis=-1):
    return torch.softmax(x, dim=axis)
def _gelu(x):
    return torch.nn.functional.gelu(x, approximate="tanh")
def _silu(x):
    return torch.nn.functional.silu(x)
def _sigmoid(x):
    return torch.sigmoid(x)
def _layernorm(x, axis=-1, eps=1e-5):
    m = x.mean(dim=axis, keepdim=True)
    v = x.var(dim=axis, keepdim=True, unbiased=False)
    return (x - m) / torch.sqrt(v + eps)
def _scatter_add(tgt, idx, src, axis=0):
    return tgt.clone().index_add_(axis, idx, src)
def _segment_sum(src, seg, n):
    out = torch.zeros((n,) + src.shape[1:], dtype=src.dtype)
    return out.index_add_(0, seg, src)
def _pad(x, pw):
    flat = tuple(v for pair in reversed(pw) for v in pair)
    return torch.nn.functional.pad(x, flat)

kernel_name = 'standalone__deep_cross_fibinet__recsys'

def setup_inputs():

    _w = (lambda a: (lambda t: t.to(torch.bfloat16) if t.is_floating_point() else t)(torch.as_tensor(a)))
    B, F, D = 4096, 26, 64
    V = min(1000, 100000)
    Fr = max(F // 2, 1)
    H = min(F * D, 256)
    return {
        "idx": _w((lambda lo, hi, *s: torch.randint(lo, hi, s))(0, V, B, F).to(torch.int64)),
        "table": _w((lambda *s: torch.randn(*s, dtype=torch.bfloat16) * 1.6)(V, D)),
        "se_w1": _w((lambda *s: torch.randn(*s, dtype=torch.bfloat16) * 1.6)(F, Fr)),
        "se_w2": _w((lambda *s: torch.randn(*s, dtype=torch.bfloat16) * 1.6)(Fr, F)),
        "w_bi": _w((lambda *s: torch.randn(*s, dtype=torch.bfloat16) * 0.05)(D, D) * (D ** -0.5)),
        "w_cross": _w((lambda *s: torch.randn(*s, dtype=torch.bfloat16) * 0.05)(2 * F * F * D) * 0.01),
        "w_deep1": _w((lambda *s: torch.randn(*s, dtype=torch.bfloat16) * 0.8)(F * D, H) * ((F * D) ** -0.5)),
        "w_deep2": _w((lambda *s: torch.randn(*s, dtype=torch.bfloat16) * 0.05)(H) * 0.01),
    }

def reference(idx, table, se_w1, se_w2, w_bi, w_cross, w_deep1, w_deep2):
    emb = table[idx]
    B = emb.shape[0]
    z = emb.mean(axis=-1)
    a = _sigmoid(_gelu(z @ se_w1) @ se_w2)
    v = a[:, :, None] * emb
    eW = torch.einsum('bfd,de->bfe', emb, w_bi)
    vW = torch.einsum('bfd,de->bfe', v, w_bi)
    p = torch.einsum('bie,bje->bije', eW, emb).reshape(B, -1)
    q = torch.einsum('bie,bje->bije', vW, v).reshape(B, -1)
    cross_feat = torch.concatenate([p, q], axis=-1)
    logit_cross = cross_feat @ w_cross
    h = _gelu(emb.reshape(B, -1) @ w_deep1)
    logit_deep = h @ w_deep2
    return logit_cross + logit_deep
```

```python
import re, copy

def regs_of(tok):
    tok = tok.strip()
    m = re.fullmatch(r'(-?)(?:abs\()?([vsa])(\d+)\)?', tok)
    if m: return [(m.group(2), int(m.group(3)))]
    m = re.fullmatch(r'(-?)([vsa])\[(\d+):(\d+)\]', tok)
    if m: return [(m.group(2), i) for i in range(int(m.group(3)), int(m.group(4))+1)]
    if tok == 'vcc': return [('s',106),('s',107)]
    if tok == 'vcc_lo': return [('s',106)]
    if tok == 'exec': return [('s',126),('s',127)]
    if tok == 'm0': return [('s',124)]
    return []

TRANS = ('v_exp_f32','v_log_f32','v_rcp_f32','v_rsq_f32','v_sqrt_f32','v_sin_f32','v_cos_f32')

class Ins:
    def __init__(self, text):
        self.text = text
        t = text.split(';')[0].strip()
        parts = t.split(None, 1)
        self.op = parts[0]
        rest = parts[1] if len(parts) > 1 else ''
        ops = [o.strip() for o in re.split(r',(?![^\[]*\])', rest)] if rest else []
        mods = ''
        if ops:
            last = ops[-1].split(None, 1)
            if len(last) > 1 and not last[0].endswith(':'):
                ops[-1] = last[0]; mods = last[1]
        self.ops = ops; self.mods = mods
        op = self.op
        self.dst = []; self.src = []; self.srcC = []
        self.kind = 'other'
        R = regs_of
        if op.startswith('v_mfma'):
            self.kind = 'mfma'
            self.passes = 8 if '32x32x16' in op else 4
            self.dst = R(ops[0]); self.srcA = R(ops[1]); self.srcB = R(ops[2]); self.srcC = R(ops[3]); self.src = self.srcA+self.srcB+self.srcC
        elif op.startswith('buffer_load') or op.startswith('global_load'):
            self.kind = 'vmem'
            if 'lds' in mods.split() or 'lds' in op:
                self.src = sum((R(o) for o in ops), []) + [('s',124)]; self.ldsdma = True
            else:
                self.dst = R(ops[0]); self.src = sum((R(o) for o in ops[1:]), [])
        elif op.startswith('buffer_store') or op.startswith('global_store'):
            self.kind = 'vmem'; self.src = sum((R(o) for o in ops), []); self.store = True
            self.sdata = R(ops[0]) if op.startswith('buffer') else R(ops[1])
        elif op.startswith('buffer_atomic'):
            self.kind = 'vmem'; self.src = sum((R(o) for o in ops), [])
            if 'sc0' in mods.split(): self.dst = R(ops[0])
        elif op.startswith('ds_read') or op.startswith('ds_bpermute') or op.startswith('ds_swizzle'):
            self.kind = 'ds'; self.dst = R(ops[0]); self.src = sum((R(o) for o in ops[1:]), [])
            if 'd16' in op: self.src += self.dst
        elif op.startswith('ds_'):
            self.kind = 'ds'; self.src = sum((R(o) for o in ops), [])
        elif op.startswith('v_'):
            self.kind = 'valu'
            if op.startswith('v_cmp'):
                self.dst = R(ops[0]); self.src = sum((R(o) for o in ops[1:]), [])
            elif op.startswith('v_permlane') and 'swap' in op:
                self.dst = R(ops[0])+R(ops[1]); self.src = list(self.dst)
            else:
                self.dst = R(ops[0]); self.src = sum((R(o) for o in ops[1:]), [])
                if op.startswith('v_fmac') or op.startswith('v_dot2c') or 'UNUSED_PRESERVE' in mods: self.src += self.dst
                if '_dpp' in op and ('bank_mask:0xf' not in mods or 'row_mask:0xf' not in mods or 'bound_ctrl' not in mods): self.src += self.dst
            self.dpp = '_dpp' in op
            self.trans = any(op.startswith(x) for x in TRANS)
        elif op.startswith('s_'):
            self.kind = 'salu'
            if op in ('s_waitcnt','s_nop','s_barrier','s_endpgm','s_sleep','s_setprio') or op.startswith('s_cbranch') or op == 's_branch':
                self.kind = 'ctl'
            elif op.startswith('s_cmp') or op.startswith('s_bitcmp'):
                self.src = sum((R(o) for o in ops), [])
            elif op.startswith('s_load') or op.startswith('s_memtime') or op.startswith('s_memrealtime'):
                self.kind = 'smem'; self.dst = R(ops[0]); self.src = sum((R(o) for o in ops[1:]), [])
            else:
                self.dst = R(ops[0]); self.src = sum((R(o) for o in ops[1:]), [])

class Asm:
    def __init__(self):
        self.lines = []
        self.pos = 0
        self.w = {}
        self.cread = {}
        self.sdata = {}
        self.vmq = []
        self.lgq = []
        self.nops = 0
        self.count = {}
    def fork(self):
        a = Asm()
        a.pos = self.pos; a.w = dict(self.w); a.cread = dict(self.cread); a.sdata = dict(self.sdata)
        a.vmq = list(self.vmq); a.lgq = list(self.lgq)
        return a
    def raw(self, text):
        self.lines.append(text)
    def label(self, name):
        self.lines.append(name + ':')
    def comment(self, c):
        self.lines.append('    ; ' + c)
    def _emit(self, text, n=1):
        self.lines.append('    ' + text); self.pos += n
    def nop(self, n):
        while n > 0:
            k = min(n, 16); self._emit(f's_nop {k-1}', k); n -= k; self.nops += 1
    def wait(self, vm=None, lg=None):
        parts = []
        if vm is not None and vm < len(self.vmq):
            vm = min(vm, 63); parts.append(f'vmcnt({vm})'); self.vmq = self.vmq[len(self.vmq)-vm:] if vm else []
        if lg is not None and lg < len(self.lgq):
            lg = min(lg, 15); parts.append(f'lgkmcnt({lg})'); self.lgq = self.lgq[len(self.lgq)-lg:] if lg else []
        if parts: self._emit('s_waitcnt ' + ' '.join(parts))
    def wait_all_lgkm(self):
        self._emit('s_waitcnt lgkmcnt(0)'); self.lgq = []
    def wait_all_vm(self):
        self._emit('s_waitcnt vmcnt(0)'); self.vmq = []
    def wait_tag(self, tag):
        idx = [i for i,(t,_) in enumerate(self.vmq) if t == tag]
        if idx: self.wait(vm=len(self.vmq)-1-max(idx))
    def wait_ltag(self, tag):
        idx = [i for i,(t,_) in enumerate(self.lgq) if t == tag]
        if idx: self.wait(lg=len(self.lgq)-1-max(idx))
    def __call__(self, text, tag=None):
        for line in text.split('\n'):
            line = line.strip()
            if line: self.one(line, tag)
    def one(self, text, tag=None):
        I = Ins(text)
        self.count[I.op] = self.count.get(I.op, 0) + 1
        touched = set(I.src) | set(I.dst)
        vm = None; lg = None
        for i,(t,d) in enumerate(self.vmq):
            if touched & set(d): vm = len(self.vmq)-1-i
        for i,(t,d) in enumerate(self.lgq):
            if touched & set(d):
                if I.kind == 'ds' and not (set(I.src) - set(I.dst)) & set(d): continue
                lg = len(self.lgq)-1-i
        self.wait(vm, lg)
        need = 0
        def req(p, d):
            nonlocal need
            have = self.pos - p - 1
            if have < d: need = max(need, d - have)
        for r in set(I.src):
            if r not in self.w: continue
            p, k, ex = self.w[r]
            if k in ('valu','trans') and r[0] in 'va':
                if I.kind == 'mfma': req(p, 2)
                if I.kind == 'valu' and I.dpp: req(p, 2)
                if I.kind == 'valu' and I.op.startswith('v_permlane'): req(p, 2)
                if I.kind == 'valu' and (I.op.startswith('v_readlane') or I.op.startswith('v_readfirstlane')): req(p, 1)
                if k == 'trans' and I.kind == 'valu' and not I.trans: req(p, 1)
                if k == 'trans' and I.kind != 'valu': req(p, 1)
                if ex == 'dot' and I.kind in ('valu','mfma','vmem','ds'):
                    same = I.op == self.wop.get(r) if hasattr(self,'wop') else False
                    isC = len(I.ops) > 3 and r in regs_of(I.ops[3]) and r not in regs_of(I.ops[1])+regs_of(I.ops[2])
                    if not (same and isC): req(p, 3)
            if k in ('valu','trans') and r[0] == 's':
                if I.kind == 'valu': req(p, 4 if I.op.startswith('v_readlane') or I.op.startswith('v_writelane') else 2)
                if I.kind == 'vmem': req(p, 5)
                if I.kind in ('salu','ctl'): req(p, 1)
            if k == 'mfma':
                if I.kind == 'mfma' and r in I.srcC and r not in I.srcA and r not in I.srcB:
                    if not (ex[1] == tuple(I.srcC) and ex[0] == I.passes): req(p, {4:6,8:10}[ex[0]])
                else: req(p, {4:8,8:12}[ex[0]])
            if k == 'salu' and r == ('s',124) and I.kind == 'vmem': req(p, 1)
        for r in set(I.dst):
            if r in self.w:
                p, k, ex = self.w[r]
                if k == 'mfma' and not (I.kind == 'mfma' and ex[1] == tuple(I.dst)): req(p, {4:8,8:12}[ex[0]])
                if k in ('valu',) and ex == 'dot' and I.kind == 'valu' and I.op != getattr(self,'wop',{}).get(r): req(p, 3)
            if r in self.cread and I.kind in ('valu','vmem','ds'):
                p, ps = self.cread[r]; req(p, {4:3,8:7}[ps])
            if r in self.sdata and I.kind in ('valu','mfma'): req(self.sdata[r], 2)
        if need: self.nop(need)
        p = self.pos
        self._emit(text)
        if not hasattr(self,'wop'): self.wop = {}
        for r in I.dst:
            if I.kind == 'valu': self.w[r] = (p, 'trans' if I.trans else 'valu', 'dot' if I.op.startswith('v_dot') else None); self.wop[r] = I.op
            elif I.kind == 'mfma': self.w[r] = (p, 'mfma', (I.passes, tuple(I.dst)))
            elif I.kind == 'salu': self.w[r] = (p, 'salu', None)
            else: self.w.pop(r, None)
        if I.kind == 'mfma':
            for r in I.srcC: self.cread[r] = (p, I.passes)
        if getattr(I,'store',False) and ('x4' in I.op or 'x3' in I.op):
            for r in I.sdata: self.sdata[r] = p
        if I.kind == 'vmem': self.vmq.append((tag, I.dst))
        if I.kind == 'ds': self.lgq.append((tag, I.dst))
        assert len(self.vmq) <= 63, "vmcnt overflow"
    def settle(self, n=0):
        need = 0
        for r,(p,k,ex) in self.w.items():
            d = {'mfma': 12, 'valu': 5 if r[0]=='s' else 3, 'trans': 3, 'salu': 1}.get(k, 0)
            need = max(need, d - (self.pos - p - 1))
        if need > 0: self.nop(need)
    def text(self): return '\n'.join(self.lines)
```

```python
import sys, struct
from asmlib import Asm
STAMP = '--stamp' in sys.argv
NAME = "standalone__deep_cross_fibinet__recsys_kernel"
def f2u(x): return struct.unpack('<I', struct.pack('<f', x))[0]

TAB=0; STG=128000
IDXS=STG; WBIS=141312; SE1S=142336; SE2S=143360
TW=128000; TM=144384; WCB=146432; SYNC=157696; PART=157760
LDS_BYTES=163840
sIDX,sTABL,sSE1,sSE2,sWBI,sWC,sWD1,sWD2,sOUT,sDBG,sWS = [f"s[{4+4*i}:{7+4*i}]" for i in range(11)]
SRD_SIZES=[425984,128000,676,676,8192,173056,851968,512,8192,256,0x10000000]
sWAVE,sNB,sMB,sROT,sECH,sP,sG8,sT0,sT1,sT2,sT3,sSPIN = [f"s{i}" for i in range(48,60)]
sMK="s[98:99]"
sK0=60
sW0=73
sSEL=[ "s73","s74"]; sSELZ=["s75","s76"]
STR=[86,88,90,62,64,66,68,70]
def v(i,n=1): return f"v{i}" if n==1 else f"v[{i}:{i+n-1}]"

nst=[0]
def stamp(a, i):
    if STAMP:
        a._emit(f"s_memtime s[{STR[i]}:{STR[i]+1}]")

a = Asm()
a.raw(f"; @launch grid=(256,1,1) block=(512,1,1) lds={LDS_BYTES}")
a.raw('.amdgcn_target "amdgcn-amd-amdhsa--gfx950"')
a.raw(f".text\n.globl {NAME}\n.p2align 8\n.type {NAME},@function\n{NAME}:")
if STAMP:
    a._emit("s_memrealtime s[92:93]"); a._emit(f"s_memtime s[86:87]")
a("s_cmp_ge_u32 s2, 256\ns_cbranch_scc1 L_end")
for i in range(11):
    a._emit(f"s_load_dwordx2 s[{4+4*i}:{5+4*i}], s[0:1], {8*i}")
for i in range(11):
    a(f"s_mov_b32 s{6+4*i}, {SRD_SIZES[i]}\ns_mov_b32 s{7+4*i}, 0x20000")
a("v_lshrrev_b32 v2, 6, v0\nv_and_b32 v1, 63, v0")
a(f"v_readfirstlane_b32 {sWAVE}, v2")
a(f"s_and_b32 {sNB}, s2, 3\ns_lshr_b32 {sMB}, s2, 2\ns_lshr_b32 {sROT}, s2, 3\ns_lshr_b32 {sP}, s2, 3\ns_and_b32 {sG8}, s2, 7")
a(f"s_and_b32 {sT0}, {sMB}, 1\ns_lshl_b32 {sECH}, {sNB}, 1\ns_add_u32 {sECH}, {sECH}, {sT0}")
vL16=92; vT0=93; vT1=94; vB0=95; vB1=96; vTWa=97; vTMa=98; vX=99; vY=100; vC=101
WB=104
BF=112
DD=128
a(f"v_lshlrev_b32 v{vL16}, 4, v1")
a(f"v_and_b32 v{vX}, 7, v1\nv_lshrrev_b32 v{vY}, 4, v1\nv_xor_b32 v{vX}, v{vX}, v{vY}\nv_lshlrev_b32 v{vX}, 4, v{vX}")
a(f"v_lshrrev_b32 v{vY}, 3, v1\nv_lshl_or_b32 v{vT0}, v{vY}, 7, v{vX}\nv_xor_b32 v{vT1}, 64, v{vT0}")
a(f"v_lshlrev_b32 v{vX}, 7, v1")
a._emit("s_waitcnt lgkmcnt(0)")
a(f"s_mul_i32 {sT1}, {sP}, 13312")
a(f"s_cmp_ge_u32 {sWAVE}, 6\ns_cbranch_scc1 L_stg67")
a(f"s_lshl_b32 {sT0}, {sWAVE}, 11\ns_add_u32 {sT1}, {sT1}, {sT0}\ns_add_u32 {sT0}, {sT0}, {IDXS}\ns_mov_b32 m0, {sT0}")
a(f"buffer_load_dwordx4 v{vL16}, {sIDX}, {sT1} offen lds", tag='stg')
a(f"buffer_load_dwordx4 v{vL16}, {sIDX}, {sT1} offen offset:1024 lds", tag='stg')
a("s_branch L_stgdone")
a.label("L_stg67")
b = a.fork()
a(f"s_cmp_eq_u32 {sWAVE}, 7\ns_cbranch_scc1 L_stg7")
a._emit(f"s_add_u32 {sT1}, {sT1}, {12*1024}"); a._emit(f"s_mov_b32 m0, {IDXS+12*1024}"); a._emit("s_nop 0")
a._emit(f"buffer_load_dwordx4 v{vL16}, {sIDX}, {sT1} offen lds")
a._emit(f"s_lshl_b32 {sT0}, {sECH}, 4"); a._emit(f"s_mov_b32 m0, {WBIS}"); a._emit("s_nop 0")
a._emit(f"buffer_load_dwordx4 v{vX}, {sWBI}, {sT0} offen lds")
a._emit("s_branch L_stgdone")
a.label("L_stg7")
a._emit(f"s_mov_b32 m0, {SE1S}"); a._emit("s_nop 0")
a._emit(f"buffer_load_dwordx4 v{vL16}, {sSE1}, 0 offen lds")
a._emit(f"s_mov_b32 m0, {SE2S}"); a._emit("s_nop 0")
a._emit(f"buffer_load_dwordx4 v{vL16}, {sSE2}, 0 offen lds")
a.label("L_stgdone")
a(f"v_mov_b32 v{vY}, -1\nv_mov_b32 v{vC}, -1")
a(f"v_lshlrev_b32 v{vX}, 3, v1")
a(f"s_lshl_b32 {sT0}, s2, 9")
a(f"s_cmp_eq_u32 {sWAVE}, 4\ns_cbranch_scc0 L_noclr")
a._emit(f"buffer_store_dwordx2 v[{vY}:{vC}], v{vX}, {sWS}, {sT0} offen sc1")
a._emit("s_branch L_clrdone")
a.label("L_noclr")
a._emit(f"s_lshl_b32 {sT0}, s2, 5")
a._emit(f"buffer_load_dword v{vC+1}, v{vL16}, {sOUT}, {sT0} offen")
a.label("L_clrdone")
a.vmq.append(('clr',[('v',vC+1)]))
a(f"v_mov_b32 v{vX}, {SYNC}\nv_mov_b32 v{vC}, 0")
a(f"ds_write_b32 v{vX}, v{vC}\nds_write_b32 v{vX}, v{vC} offset:4\nds_write_b32 v{vX}, v{vC} offset:8\nds_write_b32 v{vX}, v{vC} offset:12\nds_write_b32 v{vX}, v{vC} offset:16")
sTL=["s94","s95","s96","s97"]
a(f"s_mov_b32 {sSPIN}, 0")
a(f"s_add_u32 {sT0}, {sWAVE}, {sROT}")
for k in range(4):
    a(f"s_add_u32 {sTL[k]}, {sT0}, {8*k}\ns_and_b32 {sTL[k]}, {sTL[k]}, 31")
for k in range(4):
    for q in range(4):
        a(f"s_lshl_b32 {sT0}, {sTL[k]}, 2\ns_add_u32 {sT0}, {sT0}, {q}\ns_min_u32 {sT0}, {sT0}, {124-(q&1)}\ns_lshl_b32 {sT0}, {sT0}, 10\ns_mov_b32 m0, {sT0}")
        a(f"buffer_load_dwordx4 v{vT0+(q&1)}, {sTABL}, {sT0} offen lds", tag=f'tile{k}')
stamp(a,1)
a(f"v_and_b32 v{vX}, 15, v1\nv_lshrrev_b32 v{vY}, 4, v1\nv_lshrrev_b32 v{vC}, 1, v{vX}\nv_xor_b32 v{vC}, v{vC}, v{vY}\nv_lshlrev_b32 v{vC}, 4, v{vC}")
a(f"v_lshl_or_b32 v{vB0}, v{vX}, 7, v{vC}\nv_xor_b32 v{vB1}, 64, v{vB0}")
a(f"v_lshlrev_b32 v{vTWa}, 4, v{vX}\nv_lshl_add_u32 v{vTWa}, v{vY}, 3, v{vTWa}\nv_add_u32 v{vTWa}, {TW}, v{vTWa}")
a(f"v_lshlrev_b32 v{vTMa}, 1, v{vX}\nv_add_u32 v{vTMa}, {TM}, v{vTMa}")
a(f"v_lshrrev_b32 v{vC}, 2, v{vX}\nv_lshl_add_u32 v{vC}, v{vY}, 3, v{vC}\nv_lshlrev_b32 v{vC}, 4, v{vC}\nv_and_b32 v{vL16}, 1, v1\nv_lshl_add_u32 v{vC}, v{vL16}, 3, v{vC}\nv_add_u32 v{vC}, {WBIS}, v{vC}")
a.wait_tag('stg')
a.wait_all_lgkm()
a("s_barrier")
stamp(a,2)
for s in range(2):
    for hf in range(2):
        a(f"ds_read_b64_tr_b16 v[{WB+4*s+2*hf}:{WB+4*s+2*hf+1}], v{vC} offset:{s*512+hf*64}")
a(f"s_cmp_ge_u32 {sWAVE}, 4\ns_cbranch_scc1 L_cross")

def wb_fix(a):
    a(f"v_cmp_gt_u32 {sMK}, 8, v{vX}\nv_cmp_eq_u32 vcc, 8, v{vX}\nv_mov_b32 v{vY}, 0x3c803c80\nv_cndmask_b32 v{vY}, 0, v{vY}, vcc")
    for r in range(8):
        a(f"v_cndmask_b32 v{WB+r}, v{vY}, v{WB+r}, {sMK}")

def tile_proc(a, k, between=None):
    a(f"s_lshl_b32 {sT0}, {sTL[k]}, 12")
    a(f"v_add_u32 v{vX}, {sT0}, v{vB0}\nv_add_u32 v{vY}, {sT0}, v{vB1}")
    a.wait_tag(f'tile{k}')
    for sub in range(2):
        a(f"ds_read_b128 v[{BF+8*sub}:{BF+8*sub+3}], v{vX} offset:{sub*2048}")
        a(f"ds_read_b128 v[{BF+8*sub+4}:{BF+8*sub+7}], v{vY} offset:{sub*2048}")
    if between: between()
    a(f"s_lshl_b32 {sT0}, {sTL[k]}, 9\ns_lshl_b32 {sT1}, {sTL[k]}, 6")
    a(f"v_add_u32 v{vX}, {sT0}, v{vTWa}\nv_add_u32 v{vY}, {sT1}, v{vTMa}")
    for sub in range(2):
        a(f"v_mfma_f32_16x16x32_bf16 v[{DD+4*sub}:{DD+4*sub+3}], v[{WB}:{WB+3}], v[{BF+8*sub}:{BF+8*sub+3}], 0")
    for sub in range(2):
        a(f"v_mfma_f32_16x16x32_bf16 v[{DD+4*sub}:{DD+4*sub+3}], v[{WB+4}:{WB+7}], v[{BF+8*sub+4}:{BF+8*sub+7}], v[{DD+4*sub}:{DD+4*sub+3}]")
    for sub in range(2):
        d=DD+4*sub
        a(f"v_cvt_pk_bf16_f32 v{d}, v{d}, v{d+1}\nv_cvt_pk_bf16_f32 v{d+1}, v{d+2}, v{d+3}")
    a("s_mov_b32 exec_hi, 0")
    for sub in range(2):
        a(f"ds_write_b64 v{vX}, v[{DD+4*sub}:{DD+4*sub+1}] offset:{sub*256}")
    a("s_mov_b32 exec_lo, 0\ns_mov_b32 exec_hi, 0xffff")
    for sub in range(2):
        a(f"ds_write_b16 v{vY}, v{DD+4*sub} offset:{sub*32}")
    a("s_mov_b64 exec, -1")

def arrive(a, cnt, vA, vO):
    a(f"v_mov_b32 v{vA}, {SYNC+4*cnt}\nv_mov_b32 v{vO}, 1\ns_mov_b64 exec, 1\nds_add_u32 v{vA}, v{vO}\ns_mov_b64 exec, -1")
lab=[0]
def swait(a, cnt, n, vA, vO):
    lab[0]+=1; L=f"L_sw{lab[0]}"
    a(f"v_mov_b32 v{vA}, {SYNC+4*cnt}")
    a.settle()
    a.label(L)
    a._emit(f"ds_read_b32 v{vO}, v{vA}"); a._emit("s_waitcnt lgkmcnt(0)"); a.lgq=[]
    a._emit(f"v_readfirstlane_b32 {sT3}, v{vO}"); a._emit(f"s_add_u32 {sSPIN}, {sSPIN}, 1"); a._emit(f"s_cmp_ge_u32 {sSPIN}, 0x40000"); a._emit(f"s_cbranch_scc1 {L}x")
    a._emit(f"s_cmp_ge_u32 {sT3}, {n}"); a._emit(f"s_cbranch_scc0 {L}")
    a.label(L+"x")

C0=-2.302208198; C1=C0*0.044715
def gelu_batch(a, xs, ts, vC1):
    for x,t in zip(xs,ts): a(f"v_mul_f32 v{t}, v{x}, v{x}")
    for x,t in zip(xs,ts): a(f"v_fmaak_f32 v{t}, v{vC1}, v{t}, {f2u(C0):#x}")
    for x,t in zip(xs,ts): a(f"v_mul_f32 v{t}, v{t}, v{x}")
    for x,t in zip(xs,ts): a(f"v_exp_f32 v{t}, v{t}")
    for x,t in zip(xs,ts): a(f"v_add_f32 v{t}, 1.0, v{t}")
    for x,t in zip(xs,ts): a(f"v_rcp_f32 v{t}, v{t}")
    for x,t in zip(xs,ts): a(f"v_mul_f32 v{x}, v{x}, v{t}")

c = a.fork()
d = a
ACC=192; AD=140; EF=116; FF=100; TT=92; RING=12; NR=10
vWo=[2,3]; vSel=4
d(f"s_cmp_ge_u32 {sROT}, 26\ns_cselect_b32 {sT0}, 26, 0\ns_sub_u32 {sT1}, {sROT}, {sT0}\ns_cmp_ge_u32 {sT1}, 13\ns_cselect_b32 {sT0}, 13, 0\ns_sub_u32 {sT1}, {sT1}, {sT0}")
d(f"s_lshl_b32 {sT2}, {sWAVE}, 13\ns_lshl_b32 {sT0}, {sNB}, 7\ns_add_u32 {sT2}, {sT2}, {sT0}")
for k in range(13):
    d(f"s_lshl_b32 s{sK0+k}, {sT1}, 2\ns_lshl_b32 s{sW0+k}, {sT1}, 15\ns_add_u32 s{sW0+k}, s{sW0+k}, {sT2}")
    if k<12: d(f"s_add_u32 {sT1}, {sT1}, 1\ns_cmp_ge_u32 {sT1}, 13\ns_cselect_b32 {sT0}, 13, 0\ns_sub_u32 {sT1}, {sT1}, {sT0}")
d(f"v_and_b32 v5, 31, v1\nv_lshrrev_b32 v6, 5, v1\nv_mul_u32_u24 v5, 104, v5\nv_mul_u32_u24 v6, 52, v6\nv_add_u32 v5, v5, v6")
d(f"s_and_b32 {sT0}, {sMB}, 1\ns_lshl_b32 {sT0}, {sT0}, 1\ns_lshr_b32 {sT1}, {sWAVE}, 1\ns_add_u32 {sT2}, {sT0}, {sT1}\ns_xor_b32 {sT1}, {sT1}, 1\ns_add_u32 {sT0}, {sT0}, {sT1}")
d(f"s_mul_i32 {sT2}, {sT2}, 3328\ns_mul_i32 {sT0}, {sT0}, 3328\ns_add_u32 {sT2}, {sT2}, {IDXS}\ns_add_u32 {sT0}, {sT0}, {IDXS}")
d(f"v_add_u32 v6, {sT0}, v5\nv_add_u32 v5, {sT2}, v5")
for k in range(13):
    for mt in range(2):
        r=AD+4*k+2*mt
        d(f"v_add_u32 v{r+1}, s{sK0+k}, v{5+mt}\nds_read_b32 v{r}, v{r+1}")
d(f"v_lshrrev_b32 v7, 5, v1\nv_mul_u32_u24 v7, {13*64}, v7\nv_bfe_u32 v8, v1, 4, 1\nv_lshl_add_u32 v7, v8, 2, v7\nv_bfe_u32 v8, v1, 3, 1\nv_add_u32 v7, v7, v8\nv_and_b32 v9, 7, v1\nv_lshlrev_b32 v9, 4, v9\nv_lshl_or_b32 v{vWo[0]}, v7, 9, v9\nv_add_u32 v{vWo[1]}, 4096, v{vWo[0]}")
d(f"v_cmp_eq_u32 vcc, 0, v8\nv_mov_b32 v9, 0x03020706\nv_mov_b32 v{vSel}, 0x05040100\nv_cndmask_b32 v{vSel}, v9, v{vSel}, vcc")
wb_fix(d)
d.wait_all_lgkm()
d("s_barrier")
def wload(n):
    k=n>>1; cc=n&1; r=RING+8*(n%NR)
    d(f"buffer_load_dwordx4 v[{r}:{r+3}], v{vWo[cc]}, {sWD1}, s{sW0+k} offen")
    d(f"buffer_load_dwordx4 v[{r+4}:{r+7}], v{vWo[cc]}, {sWD1}, s{sW0+k} offen offset:1024")
d(f"s_lshl_b32 {sT2}, {sWAVE}, 5")
def addr_calc(ks):
    for k in ks:
        for mt in range(2):
            r=AD+4*k+2*mt
            d(f"v_lshlrev_b32 v{r+1}, 3, v{r}\nv_and_b32 v{r+1}, 0x70, v{r+1}\nv_lshl_or_b32 v{r}, v{r}, 7, v{r+1}\nv_xor_b32 v{r}, {sT2}, v{r}\nv_xor_b32 v{r+1}, 16, v{r}")
addr_calc(range(13))
nl=0
plan=[2,2,3,3]
for k in range(4):
    def btw():
        global nl
        for _ in range(plan[k]): wload(nl); nl+=1
    tile_proc(d,k,btw)
assert nl==NR
d.wait_all_lgkm()
d("s_barrier")
stamp(d,3)
def eread(n):
    k=n>>1; cc=n&1; r=EF+8*(n%3)
    for mt in range(2): d(f"ds_read_b128 v[{r+4*mt}:{r+4*mt+3}], v{AD+4*k+2*mt+cc}")
def transp_ops(n):
    r=RING+8*(n%NR); f=FF+8*(n&1); ops=[]
    for i in range(8): ops.append(f"v_mov_b32_dpp v{TT+i}, v{r+i} row_ror:8 row_mask:0xf bank_mask:0xf bound_ctrl:0")
    for i0 in range(2):
        for rr in range(4):
            r1=rr>>1; r0=rr&1
            ops.append(f"v_perm_b32 v{f+4*r0+2*r1+i0}, v{TT+4*i0+rr}, v{r+4*i0+rr}, v{vSel}")
    for r0 in range(2):
        for i0 in range(2): ops.append(f"v_permlane16_swap_b32 v{f+4*r0+i0}, v{f+4*r0+2+i0}")
    return ops
eread(0); eread(1)
for o in transp_ops(0): d(o)
wload(NR)
W2=RING+0
for n in range(26):
    ops = transp_ops(n+1) if n+1<26 else []
    if n+2<26: eread(n+2)
    f=FF+8*(n&1); e=EF+8*(n%3)
    mf=[]
    for nt in range(2):
        for mt in range(2):
            acc=ACC+16*(2*nt+mt)
            cs = "0" if n==0 else f"v[{acc}:{acc+15}]"
            mf.append(f"v_mfma_f32_32x32x16_bf16 v[{acc}:{acc+15}], v[{f+4*nt}:{f+4*nt+3}], v[{e+4*mt}:{e+4*mt+3}], {cs}")
    for i in range(4):
        d(mf[i])
        for o in ops[5*i:5*i+5]: d(o)
        if i==3 and n+1+NR<26: wload(n+1+NR)
    if n==20:
        W2=RING+8*(20%NR)
        d(f"v_lshrrev_b32 v5, 5, v1\nv_lshlrev_b32 v5, 6, v5\ns_lshl_b32 {sT0}, {sNB}, 7\ns_and_b32 {sT1}, {sWAVE}, 1\ns_lshl_b32 {sT1}, {sT1}, 2\ns_add_u32 {sT0}, {sT0}, {sT1}")
        for r in range(4):
            d(f"buffer_load_dwordx3 v[{W2+4*r}:{W2+4*r+2}], v5, {sWD2}, {sT0} offen offset:{16*r}")
stamp(d,4)
d.wait_all_lgkm()
arrive(d,3,5,6)
swait(d,3,8,5,6)
stamp(d,5)
d(f"v_lshlrev_b32 v7, 4, v1")
d(f"s_bitcmp1_b32 {sWAVE}, 0\ns_cbranch_scc1 L_dep1")
def depi(d,P):
    for nt in range(2):
        for mt in range(2):
            cx=(P^nt)+2*mt
            if cx==0: continue
            acc=ACC+16*(2*nt+mt)
            d(f"s_xor_b32 {sT0}, {sWAVE}, {cx}\ns_mul_i32 {sT0}, {sT0}, 12288\ns_add_u32 {sT0}, {sT0}, {(cx-1)*4096}\nv_add_u32 v8, {sT0}, v7")
            for j in range(4): d(f"ds_write_b128 v8, v[{acc+4*j}:{acc+4*j+3}] offset:{1024*j}")
    d.wait_all_lgkm()
    arrive(d,4,5,6)
    WV=140
    for gp in range(4):
        for r in range(4):
            src=W2+4*r+2*(gp>>1)
            if gp&1: d(f"v_and_b32 v{WV+4*gp+r}, 0xffff0000, v{src}")
            else: d(f"v_lshlrev_b32 v{WV+4*gp+r}, 16, v{src}")
    d(f"s_mul_i32 {sT0}, {sWAVE}, 12288\nv_add_u32 v8, {sT0}, v7\nv_mov_b32 v9, {f2u(C1):#x}")
    swait(d,4,4,5,6)
    own=ACC+16*(2*P)
    RB=92
    for k in range(3):
        for j in range(4): d(f"ds_read_b128 v[{RB+16*k+4*j}:{RB+16*k+4*j+3}], v8 offset:{4096*k+1024*j}")
    for k in range(3):
        for i in range(16): d(f"v_add_f32 v{own+i}, v{own+i}, v{RB+16*k+i}")
    gelu_batch(d, [own+i for i in range(16)], [160+i for i in range(16)], 9)
    d(f"v_mul_f32 v10, v{own}, v{WV}\nv_mul_f32 v11, v{own+1}, v{WV+1}")
    for i in range(2,16): d(f"v_fmac_f32 v{10+(i&1)}, v{own+i}, v{WV+i}")
    d("v_add_f32 v10, v10, v11")
    stamp(d,6)
d0=d.fork(); d1=d.fork()
depi(d0,0); d0("s_branch L_part")
depi(d1,1); d1("s_branch L_part")
d.lines += d0.lines; d.label("L_dep1"); d.lines += d1.lines
dcount=dict(d.count)

c.label("L_cross")
RE=12; RT=64; RW=116; AL=168; AH=181; FA=194; FB=202; T0=210; T1=226; AQ=242
A1=242; A2=250
vI=AL
aE=AH; aT=T0; aM=T1
c(f"v_lshlrev_b32 v2, 7, v1\ns_sub_u32 {sT2}, {sWAVE}, 4")
def wc_dma(c, t):
    for i in range(3):
        c(f"s_add_u32 {sT0}, {sT2}, {4*i}\ns_min_u32 {sT0}, {sT0}, 10\ns_lshl_b32 {sT1}, {sT0}, 10\ns_add_u32 {sT1}, {sT1}, {WCB}\ns_mov_b32 m0, {sT1}")
        c(f"s_lshl_b32 {sT0}, {sT0}, 13\ns_lshl_b32 {sT1}, {sECH}, 4\ns_add_u32 {sT0}, {sT0}, {sT1}\ns_add_u32 {sT0}, {sT0}, {t*86528}")
        c(f"buffer_load_dwordx4 v2, {sWC}, {sT0} offen lds", tag=f'wc{t}')
c(f"v_and_b32 v5, 31, v1\nv_lshrrev_b32 v6, 5, v1\nv_mul_u32_u24 v7, 104, v5\nv_mul_u32_u24 v8, 52, v6\nv_add_u32 v7, v7, v8")
c(f"s_mul_i32 {sT0}, {sT2}, 3328\ns_add_u32 {sT0}, {sT0}, {IDXS}\nv_add_u32 v7, {sT0}, v7")
for j in range(13): c(f"ds_read_b32 v{vI+j}, v7 offset:{4*j}")
c("v_lshrrev_b32 v8, 3, v5\nv_bfe_u32 v9, v5, 2, 1\nv_and_b32 v10, 3, v5")
c("v_lshl_add_u32 v11, v8, 2, v10")
c("v_lshl_add_u32 v3, v9, 3, v11")
c(f"v_mul_u32_u24 v4, 169, v6\nv_add_u32 v4, v4, v3\nv_lshlrev_b32 v4, 1, v4\nv_add_u32 v4, {SE1S}, v4")
c(f"v_cmp_gt_u32 vcc, 13, v3\nv_cmp_gt_u32 {sMK}, 16, v5\ns_and_b64 vcc, vcc, {sMK}\nv_mov_b32 v3, {SE1S+680}\nv_cndmask_b32 v4, v3, v4, vcc")
c(f"v_mov_b32 v{A1+7}, 0")
for t in range(13):
    c(f"ds_read_u16 v{(RE+t) if t<12 else (A1+6)}, v4 offset:{26*t}")
c(f"v_mul_u32_u24 v3, 13, v9\nv_add_u32 v3, v3, v11\nv_mul_u32_u24 v4, 208, v6\nv_add_u32 v4, v4, v3\nv_lshlrev_b32 v4, 1, v4\nv_add_u32 v4, {SE2S}, v4")
for t in range(8):
    c(f"ds_read_u16 v{RE+12+t}, v4 offset:{52*t}")
c(f"v_min_u32 v3, 25, v3\nv_mul_u32_u24 v3, 416, v3\nv_mul_u32_u24 v4, 208, v6\nv_add_u32 v3, v3, v4\nv_add_u32 v3, {WCB}, v3")
wb_fix(c)
for t in range(6): c(f"v_lshl_or_b32 v{A1+t}, v{RE+2*t+1}, 16, v{RE+2*t}")
for t in range(4): c(f"v_lshl_or_b32 v{A2+t}, v{RE+12+2*t+1}, 16, v{RE+12+2*t}")
c.wait_all_lgkm()
c("s_barrier")
wc_dma(c,0)
c(f"s_lshl_b32 {sT3}, {sECH}, 4")
for j in range(13):
    r=vI+j
    c(f"v_lshlrev_b32 v4, 3, v{r}\nv_and_b32 v4, 0x70, v4\nv_lshl_or_b32 v4, v{r}, 7, v4\nv_xor_b32 v{aE+j}, {sT3}, v4")
    c(f"v_lshlrev_b32 v4, 4, v{r}\nv_add_u32 v{aT+j}, {TW}, v4\nv_lshlrev_b32 v4, 1, v{r}\nv_add_u32 v{aM+j}, {TM}, v4")
for k in range(4):
    def btw():
        if k==1:
            c(f"s_cmp_eq_u32 {sWAVE}, 4\ns_cbranch_scc0 L_nordy")
            c._emit(f"v_mov_b32 v4, 1"); c._emit(f"s_lshl_b32 {sT0}, {sP}, 2"); c._emit(f"v_mov_b32 v5, {sT0}"); c._emit("s_mov_b64 exec, 1")
            c._emit(f"buffer_atomic_add v4, v5, {sDBG}, 0 offen"); c._emit("s_mov_b64 exec, -1"); c._emit("s_branch L_rdydone")
            c.label("L_nordy")
            c._emit(f"buffer_load_dword v4, v2, {sSE1}, 0 offen")
            c.label("L_rdydone")
            c.vmq.append(('rdy',[('v',4)]))
    tile_proc(c,k,btw)
c.wait_all_lgkm()
c("s_barrier")
stamp(c,3)
Z=FA; G=FB
c(f"v_mov_b32 v{Z+7}, 0")
for j in range(13): c(f"ds_read_u16 v{(RW+j) if j<12 else (Z+6)}, v{aM+j}", tag='z')
for j in range(13): c(f"ds_read_b128 v[{RE+4*j}:{RE+4*j+3}], v{aE+j}", tag='e')
for j in range(13): c(f"ds_read_b128 v[{RT+4*j}:{RT+4*j+3}], v{aT+j}", tag='t')
c(f"s_mov_b32 {sSEL[0]}, 0x05040100\ns_mov_b32 {sSEL[1]}, 0x07060302\ns_mov_b32 {sSELZ[0]}, 0x0c0c0100\ns_mov_b32 {sSELZ[1]}, 0x0c0c0302")
c(f"v_mov_b32 v9, {f2u(C1):#x}")
c.wait_tag('wc0')
arrive(c,0,5,6)
for t in range(6): c(f"v_lshl_or_b32 v{Z+t}, v{RW+2*t+1}, 16, v{RW+2*t}")
c(f"v_mfma_f32_32x32x16_bf16 v[{T0}:{T0+15}], v[{A1}:{A1+3}], v[{Z}:{Z+3}], 0")
c(f"v_mfma_f32_32x32x16_bf16 v[{T0}:{T0+15}], v[{A1+4}:{A1+7}], v[{Z+4}:{Z+7}], v[{T0}:{T0+15}]")
gelu_batch(c,[T0+i for i in range(8)],[RW+i for i in range(8)],9)
for i in range(4): c(f"v_cvt_pk_bf16_f32 v{G+i}, v{T0+2*i}, v{T0+2*i+1}")
c(f"v_mfma_f32_32x32x16_bf16 v[{T1}:{T1+15}], v[{A2}:{A2+3}], v[{G}:{G+3}], 0")
c.wait_ltag('e')
arrive(c,3,5,6)
for j in range(13): c(f"v_mul_f32 v{T1+j}, {f2u(-1.4426950409):#x}, v{T1+j}")
for j in range(13): c(f"v_exp_f32 v{T1+j}, v{T1+j}")
for j in range(13): c(f"v_add_f32 v{T1+j}, 1.0, v{T1+j}")
for j in range(13): c(f"v_rcp_f32 v{T1+j}, v{T1+j}")
for j in range(13): c(f"v_cvt_pk_bf16_f32 v{AL+j}, v{T1+j}, 0")
for j in range(13): c(f"v_lshlrev_b32 v{AH+j}, 16, v{AL+j}")
stamp(c,4)
def read_rw():
    for j in range(13): c(f"ds_read_b128 v[{RW+4*j}:{RW+4*j+3}], v3 offset:{16*j}")
def perm_frag(F, R, e):
    wi=e>>1; hs=e&1
    for pp in range(6): c(f"v_perm_b32 v{F+pp}, v{R+4*(2*pp+1)+wi}, v{R+4*(2*pp)+wi}, {sSEL[hs]}")
    c(f"v_perm_b32 v{F+6}, v{R+48+wi}, v{R+48+wi}, {sSELZ[hs]}")
def v_frag(e):
    wi=e>>1; A=(AL if (e&1)==0 else AH)
    tmp=[4,5,6,7,8,9,10,11,255,0,2]
    for base in (0,6):
        js=list(range(base, base+6)) if base==0 else list(range(6,13))
        for n,j in enumerate(js): c(f"v_dot2_f32_bf16 v{tmp[n]}, v{RE+4*j+wi}, v{A+j}, 0")
        for n in range(0,len(js)-1,2): c(f"v_cvt_pk_bf16_f32 v{FB+(js[n]>>1)}, v{tmp[n]}, v{tmp[n+1]}")
        if base==6: c(f"v_cvt_pk_bf16_f32 v{FB+6}, v{tmp[6]}, 0")
def mm(e):
    T=T0 if (e&1)==0 else T1
    c(f"v_mfma_f32_32x32x16_bf16 v[{T}:{T+15}], v[{FA}:{FA+3}], v[{FB}:{FB+3}], 0")
    c(f"v_mfma_f32_32x32x16_bf16 v[{T}:{T+15}], v[{FA+4}:{FA+7}], v[{FB+4}:{FB+7}], v[{T}:{T+15}]")
swait(c,0,4,5,6)
read_rw()
c(f"v_mov_b32 v{FA+7}, 0\nv_mov_b32 v{FB+7}, 0")
c.wait_all_lgkm()
arrive(c,1,5,6)
first=True
def final(pair, q):
    for ii in range(13): c(f"v_cvt_pk_bf16_f32 v{T0+ii}, v{T0+ii}, v{T1+ii}")
    for ii in range(13):
        if q: dst=AQ+ii; cs="0" if pair==0 else f"v{dst}"
        else: dst=AQ+(ii&3); cs="0" if (pair==0 and ii<4) else f"v{dst}"
        c(f"v_dot2_f32_bf16 v{dst}, v{RT+4*ii+pair}, v{T0+ii}, {cs}")
for pair in range(4):
    for e in (2*pair,2*pair+1):
        if not (e==2*pair and pair>0): perm_frag(FA,RW,e); perm_frag(FB,RE,e)
        mm(e)
        if pair==0 and e==0:
            swait(c,1,4,5,6); wc_dma(c,1)
    if pair<3: perm_frag(FA,RW,2*pair+2); perm_frag(FB,RE,2*pair+2)
    final(pair,False)
c(f"v_add_f32 v{AQ}, v{AQ}, v{AQ+1}\nv_add_f32 v{AQ+2}, v{AQ+2}, v{AQ+3}\nv_add_f32 v1, v{AQ}, v{AQ+2}")
stamp(c,5)
c.wait_tag('wc1')
arrive(c,2,5,6)
v_frag(0)
swait(c,2,4,5,6)
read_rw()
for pair in range(4):
    for e in (2*pair,2*pair+1):
        if e==0: perm_frag(FA,RW,e)
        elif not (e==2*pair): perm_frag(FA,RW,e); v_frag(e)
        mm(e)
    if pair<3: perm_frag(FA,RW,2*pair+2); v_frag(2*pair+2)
    final(pair,True)
c(f"v_mov_b32 v10, v1")
for ii in range(13): c(f"v_fmac_f32 v10, v{AQ+ii}, v{AH+ii}")
c("v_mbcnt_lo_u32_b32 v1, -1, 0\nv_mbcnt_hi_u32_b32 v1, -1, v1")
stamp(c,6)
e = c
e.settle()
e.label("L_part")
e.vmq=[('x',[])]*0; e.lgq=[]
e(f"s_lshl_b32 {sT0}, {sWAVE}, 8\ns_add_u32 {sT0}, {sT0}, {PART}\nv_lshl_add_u32 v5, v1, 2, {sT0}\nds_write_b32 v5, v10")
e(f"s_lshl_b32 {sT1}, {sP}, 2\nv_mov_b32 v6, {sT1}")
e(f"s_cmp_ge_u32 {sWAVE}, 2\ns_cbranch_scc1 L_nochk")
e._emit(f"buffer_load_dword v7, v6, {sDBG}, 0 offen sc1")
e.label("L_nochk")
e.wait_all_lgkm()
e("s_barrier")
e(f"s_cmp_ge_u32 {sWAVE}, 2\ns_cbranch_scc1 L_fin")
e(f"v_lshrrev_b32 v2, 5, v1\nv_and_b32 v3, 31, v1\nv_lshlrev_b32 v3, 2, v3")
e(f"s_lshl_b32 {sT0}, {sWAVE}, 9\ns_add_u32 {sT0}, {sT0}, {PART+1024}\nv_lshl_add_u32 v4, v2, 8, v3\nv_add_u32 v4, {sT0}, v4")
e("ds_read_b32 v10, v4\nds_read_b32 v11, v4 offset:128")
e(f"s_and_b32 {sT0}, {sMB}, 1\ns_cmp_eq_u32 {sT0}, {sWAVE}\ns_cbranch_scc0 L_nodeep")
e(f"v_lshl_add_u32 v4, v2, 9, v3\nv_add_u32 v4, {PART}, v4")
e("ds_read_b32 v12, v4\nds_read_b32 v13, v4 offset:128\nds_read_b32 v14, v4 offset:256\nds_read_b32 v15, v4 offset:384")
e("v_add_f32 v12, v12, v13\nv_add_f32 v14, v14, v15\nv_add_f32 v12, v12, v14\nv_add_f32 v11, v11, v12")
e.label("L_nodeep")
e.wait_all_lgkm()
e("v_add_f32 v10, v10, v11\nv_min_u32 v10, -2, v10")
e(f"v_lshrrev_b32 v2, 4, v1\nv_and_b32 v3, 15, v1\nv_lshlrev_b32 v3, 2, v3\nv_lshl_add_u32 v3, v2, 9, v3")
e(f"s_lshl_b32 {sT0}, {sP}, 12\ns_lshl_b32 {sT1}, {sWAVE}, 11\ns_add_u32 {sT0}, {sT0}, {sT1}\ns_lshl_b32 {sT1}, {sG8}, 6\ns_add_u32 {sT0}, {sT0}, {sT1}")
e.label("L_rdy")
e._emit("s_waitcnt vmcnt(0)")
e._emit(f"v_readfirstlane_b32 {sT3}, v7"); e._emit("s_nop 0"); e._emit(f"s_cmp_ge_u32 {sT3}, 8"); e._emit("s_cbranch_scc1 L_rdyok")
e._emit(f"s_add_u32 {sSPIN}, {sSPIN}, 64"); e._emit(f"s_cmp_ge_u32 {sSPIN}, 0x40000"); e._emit("s_cbranch_scc1 L_rdyok")
e._emit("s_sleep 8"); e._emit(f"buffer_load_dword v7, v6, {sDBG}, 0 offen sc1"); e._emit("s_branch L_rdy")
e.label("L_rdyok")
e.vmq=[]
e(f"buffer_store_dword v10, v3, {sWS}, {sT0} offen sc1")
e(f"s_cmp_eq_u32 {sWAVE}, 0\ns_cbranch_scc0 L_fin")
e(f"v_lshlrev_b32 v3, 3, v1\ns_lshl_b32 {sT0}, s2, 9")
e.label("L_poll")
e._emit(f"buffer_load_dwordx2 v[10:11], v3, {sWS}, {sT0} offen sc1")
e._emit("s_waitcnt vmcnt(0)")
e._emit(f"s_add_u32 {sSPIN}, {sSPIN}, 64"); e._emit(f"s_cmp_ge_u32 {sSPIN}, 0x40000"); e._emit("s_cbranch_scc1 L_pollx")
e._emit("v_max_u32 v12, v10, v11"); e._emit("v_cmp_eq_u32 vcc, -1, v12"); e._emit("s_nop 4"); e._emit("s_cbranch_vccnz L_poll")
e.label("L_pollx")
e.vmq=[]
e("v_add_f32_dpp v10, v10, v10 row_ror:8 row_mask:0xf bank_mask:0xf bound_ctrl:0\nv_add_f32_dpp v11, v11, v11 row_ror:8 row_mask:0xf bank_mask:0xf bound_ctrl:0")
e("v_mov_b32 v12, v10\nv_mov_b32 v13, v11")
e("v_permlane16_swap_b32 v10, v12\nv_permlane16_swap_b32 v11, v13\nv_add_f32 v10, v10, v12\nv_add_f32 v11, v11, v13")
e("v_mov_b32 v12, v10\nv_mov_b32 v13, v11")
e("v_permlane32_swap_b32 v10, v12\nv_permlane32_swap_b32 v11, v13\nv_add_f32 v10, v10, v12\nv_add_f32 v11, v11, v13")
e(f"v_cvt_pk_bf16_f32 v10, v10, v11\nv_lshlrev_b32 v3, 2, v1\ns_lshl_b32 {sT0}, s2, 5\ns_mov_b64 exec, 0xff")
e(f"buffer_store_dword v10, v3, {sOUT}, {sT0} offen")
e("s_mov_b64 exec, -1")
e.label("L_fin")
if STAMP:
    e._emit(f"s_memtime s[70:71]"); e._emit("s_memrealtime s[100:101]"); e._emit("s_waitcnt lgkmcnt(0)")
    e._emit(f"s_and_b32 {sT0}, {sWAVE}, 3"); e._emit(f"s_cmp_lg_u32 {sT0}, 0"); e._emit("s_cbranch_scc1 L_end")
    for i in range(1,8): e._emit(f"s_sub_u32 s{STR[i]}, s{STR[i]}, s86")
    e._emit("v_mov_b32 v16, s92"); e._emit("v_mov_b32 v17, s100")
    for i in range(1,8): e._emit(f"v_mov_b32 v{17+i}, s{STR[i]}")
    e._emit(f"s_lshl_b32 {sT0}, s2, 6"); e._emit(f"s_add_u32 {sT0}, {sT0}, 0x8000000")
    e._emit("v_mov_b32 v3, 0"); e._emit("s_mov_b64 exec, 1")
    e._emit(f"s_cmp_eq_u32 {sWAVE}, 0"); e._emit("s_cbranch_scc0 L_st4")
    e._emit(f"buffer_store_dwordx4 v[16:19], v3, {sWS}, {sT0} offen"); e._emit(f"buffer_store_dwordx4 v[20:23], v3, {sWS}, {sT0} offen offset:16"); e._emit(f"buffer_store_dword v24, v3, {sWS}, {sT0} offen offset:32")
    e._emit("s_branch L_end")
    e.label("L_st4")
    e._emit(f"buffer_store_dwordx4 v[20:23], v3, {sWS}, {sT0} offen offset:36"); e._emit(f"buffer_store_dword v24, v3, {sWS}, {sT0} offen offset:52")
e.label("L_end")
e._emit("s_endpgm")
out = d.text() + "\n" + e.text() + f"""
.section .rodata,"a"
.p2align 6
.amdhsa_kernel {NAME}
  .amdhsa_next_free_vgpr 256
  .amdhsa_next_free_sgpr 102
  .amdhsa_accum_offset 256
  .amdhsa_group_segment_fixed_size 0
  .amdhsa_kernarg_size 88
  .amdhsa_user_sgpr_count 2
  .amdhsa_user_sgpr_kernarg_segment_ptr 1
  .amdhsa_system_sgpr_workgroup_id_x 1
.end_amdhsa_kernel
"""
print(out)
sys.stderr.write(f"nops D {d.nops} C {c.nops}\n")
```

```python
import sys, struct
from asmlib import Asm
DSTAMP = '--dstamp' in sys.argv
STAMP = '--stamp' in sys.argv or DSTAMP
DELAY = int(sys.argv[sys.argv.index('--delay')+1]) if '--delay' in sys.argv else 0
NAME = "standalone__deep_cross_fibinet__recsys_kernel"
def f2u(x): return struct.unpack('<I', struct.pack('<f', x))[0]

TAB=0; STG=128000
IDXS=STG; WBIS=141312; SE1S=142336; SE2S=143360
TW=128000; TM=144384; WCB=146432; SYNC=157696; PART=157760
LDS_BYTES=163840
sIDX,sTABL,sSE1,sSE2,sWBI,sWC,sWD1,sWD2,sOUT,sDBG,sWS = [f"s[{4+4*i}:{7+4*i}]" for i in range(11)]
SRD_SIZES=[425984,128000,676,676,8192,173056,851968,512,8192,256,0x10000000]
sWAVE,sNB,sMB,sROT,sECH,sP,sG8,sT0,sT1,sT2,sT3,sSPIN = [f"s{i}" for i in range(48,60)]
sMK="s[98:99]"
sK0=60
sW0=73
sSEL=[ "s73","s74"]; sSELZ=["s75","s76"]
STR=[86,88,90,62,64,66,68,70]
def v(i,n=1): return f"v{i}" if n==1 else f"v[{i}:{i+n-1}]"

nst=[0]
def stamp(a, i):
    if STAMP:
        a._emit(f"s_memtime s[{STR[i]}:{STR[i]+1}]")

a = Asm()
a.raw(f"; @launch grid=(256,1,1) block=(512,1,1) lds={LDS_BYTES}")
a.raw('.amdgcn_target "amdgcn-amd-amdhsa--gfx950"')
a.raw(f".text\n.globl {NAME}\n.p2align 8\n.type {NAME},@function\n{NAME}:")
if STAMP:
    a._emit("s_memrealtime s[92:93]"); a._emit(f"s_memtime s[86:87]")
a("s_cmp_ge_u32 s2, 256\ns_cbranch_scc1 L_end")
for _ in range(DELAY): a._emit("s_sleep 64")
for i in range(11):
    a._emit(f"s_load_dwordx2 s[{4+4*i}:{5+4*i}], s[0:1], {8*i}")
for i in range(11):
    a(f"s_mov_b32 s{6+4*i}, {SRD_SIZES[i]}\ns_mov_b32 s{7+4*i}, 0x20000")
a("v_lshrrev_b32 v2, 6, v0\nv_and_b32 v1, 63, v0")
a(f"v_readfirstlane_b32 {sWAVE}, v2")
a(f"s_and_b32 {sNB}, s2, 3\ns_lshr_b32 {sMB}, s2, 2\ns_lshr_b32 {sROT}, s2, 3\ns_lshr_b32 {sP}, s2, 3\ns_and_b32 {sG8}, s2, 7")
a(f"s_and_b32 {sT0}, {sMB}, 1\ns_lshl_b32 {sECH}, {sNB}, 1\ns_add_u32 {sECH}, {sECH}, {sT0}")
vL16=92; vT0=93; vT1=94; vB0=95; vB1=96; vTWa=97; vTMa=98; vX=99; vY=100; vC=101
WB=104
BF=112
DD=128
a(f"v_lshlrev_b32 v{vL16}, 4, v1")
a(f"v_and_b32 v{vX}, 7, v1\nv_lshrrev_b32 v{vY}, 4, v1\nv_xor_b32 v{vX}, v{vX}, v{vY}\nv_lshlrev_b32 v{vX}, 4, v{vX}")
a(f"v_lshrrev_b32 v{vY}, 3, v1\nv_lshl_or_b32 v{vT0}, v{vY}, 7, v{vX}\nv_xor_b32 v{vT1}, 64, v{vT0}")
a(f"v_lshlrev_b32 v{vX}, 7, v1")
a._emit("s_waitcnt lgkmcnt(0)")
a(f"s_mul_i32 {sT1}, {sP}, 13312")
a(f"s_cmp_ge_u32 {sWAVE}, 6\ns_cbranch_scc1 L_stg67")
a(f"s_lshl_b32 {sT0}, {sWAVE}, 11\ns_add_u32 {sT1}, {sT1}, {sT0}\ns_add_u32 {sT0}, {sT0}, {IDXS}\ns_mov_b32 m0, {sT0}")
a(f"buffer_load_dwordx4 v{vL16}, {sIDX}, {sT1} offen lds", tag='stg')
a(f"buffer_load_dwordx4 v{vL16}, {sIDX}, {sT1} offen offset:1024 lds", tag='stg')
a("s_branch L_stgdone")
a.label("L_stg67")
b = a.fork()
a(f"s_cmp_eq_u32 {sWAVE}, 7\ns_cbranch_scc1 L_stg7")
a._emit(f"s_add_u32 {sT1}, {sT1}, {12*1024}"); a._emit(f"s_mov_b32 m0, {IDXS+12*1024}"); a._emit("s_nop 0")
a._emit(f"buffer_load_dwordx4 v{vL16}, {sIDX}, {sT1} offen lds")
a._emit(f"s_lshl_b32 {sT0}, {sECH}, 4"); a._emit(f"s_mov_b32 m0, {WBIS}"); a._emit("s_nop 0")
a._emit(f"buffer_load_dwordx4 v{vX}, {sWBI}, {sT0} offen lds")
a._emit("s_branch L_stgdone")
a.label("L_stg7")
a._emit(f"s_mov_b32 m0, {SE1S}"); a._emit("s_nop 0")
a._emit(f"buffer_load_dwordx4 v{vL16}, {sSE1}, 0 offen lds")
a._emit(f"s_mov_b32 m0, {SE2S}"); a._emit("s_nop 0")
a._emit(f"buffer_load_dwordx4 v{vL16}, {sSE2}, 0 offen lds")
a.label("L_stgdone")
a(f"v_mov_b32 v{vY}, -1\nv_mov_b32 v{vC}, -1")
a(f"v_lshlrev_b32 v{vX}, 3, v1")
a(f"s_lshl_b32 {sT0}, s2, 9")
a(f"s_cmp_eq_u32 {sWAVE}, 4\ns_cbranch_scc0 L_noclr")
a._emit(f"buffer_store_dwordx2 v[{vY}:{vC}], v{vX}, {sWS}, {sT0} offen sc1")
a._emit("s_branch L_clrdone")
a.label("L_noclr")
a._emit(f"s_lshl_b32 {sT0}, s2, 5")
a._emit(f"buffer_load_dword v{vC+1}, v{vL16}, {sOUT}, {sT0} offen")
a.label("L_clrdone")
a.vmq.append(('clr',[('v',vC+1)]))
a(f"v_mov_b32 v{vX}, {SYNC}\nv_mov_b32 v{vC}, 0")
a(f"ds_write_b32 v{vX}, v{vC}\nds_write_b32 v{vX}, v{vC} offset:4\nds_write_b32 v{vX}, v{vC} offset:8\nds_write_b32 v{vX}, v{vC} offset:12\nds_write_b32 v{vX}, v{vC} offset:16")
sTL=["s94","s95","s96","s97"]
a(f"s_mov_b32 {sSPIN}, 0")
a(f"s_add_u32 {sT0}, {sWAVE}, {sROT}")
for k in range(4):
    a(f"s_add_u32 {sTL[k]}, {sT0}, {8*k}\ns_and_b32 {sTL[k]}, {sTL[k]}, 31")
for k in range(4):
    for q in range(4):
        a(f"s_lshl_b32 {sT0}, {sTL[k]}, 2\ns_add_u32 {sT0}, {sT0}, {q}\ns_min_u32 {sT0}, {sT0}, {124-(q&1)}\ns_lshl_b32 {sT0}, {sT0}, 10\ns_mov_b32 m0, {sT0}")
        a(f"buffer_load_dwordx4 v{vT0+(q&1)}, {sTABL}, {sT0} offen lds", tag=f'tile{k}')
stamp(a,1)
a(f"v_and_b32 v{vX}, 15, v1\nv_lshrrev_b32 v{vY}, 4, v1\nv_lshrrev_b32 v{vC}, 1, v{vX}\nv_xor_b32 v{vC}, v{vC}, v{vY}\nv_lshlrev_b32 v{vC}, 4, v{vC}")
a(f"v_lshl_or_b32 v{vB0}, v{vX}, 7, v{vC}\nv_xor_b32 v{vB1}, 64, v{vB0}")
a(f"v_lshlrev_b32 v{vTWa}, 4, v{vX}\nv_lshl_add_u32 v{vTWa}, v{vY}, 3, v{vTWa}\nv_add_u32 v{vTWa}, {TW}, v{vTWa}")
a(f"v_lshlrev_b32 v{vTMa}, 1, v{vX}\nv_add_u32 v{vTMa}, {TM}, v{vTMa}")
a(f"v_lshrrev_b32 v{vC}, 2, v{vX}\nv_lshl_add_u32 v{vC}, v{vY}, 3, v{vC}\nv_lshlrev_b32 v{vC}, 4, v{vC}\nv_and_b32 v{vL16}, 1, v1\nv_lshl_add_u32 v{vC}, v{vL16}, 3, v{vC}\nv_add_u32 v{vC}, {WBIS}, v{vC}")
a.wait_tag('stg')
a.wait_all_lgkm()
a("s_barrier")
stamp(a,2)
for s in range(2):
    for hf in range(2):
        a(f"ds_read_b64_tr_b16 v[{WB+4*s+2*hf}:{WB+4*s+2*hf+1}], v{vC} offset:{s*512+hf*64}")
a(f"s_cmp_ge_u32 {sWAVE}, 4\ns_cbranch_scc1 L_cross")

def wb_fix(a):
    a(f"v_cmp_gt_u32 {sMK}, 8, v{vX}\nv_cmp_eq_u32 vcc, 8, v{vX}\nv_mov_b32 v{vY}, 0x3c803c80\nv_cndmask_b32 v{vY}, 0, v{vY}, vcc")
    for r in range(8):
        a(f"v_cndmask_b32 v{WB+r}, v{vY}, v{WB+r}, {sMK}")

def tile_proc(a, k, between=None):
    a(f"s_lshl_b32 {sT0}, {sTL[k]}, 12")
    a(f"v_add_u32 v{vX}, {sT0}, v{vB0}\nv_add_u32 v{vY}, {sT0}, v{vB1}")
    a.wait_tag(f'tile{k}')
    for sub in range(2):
        a(f"ds_read_b128 v[{BF+8*sub}:{BF+8*sub+3}], v{vX} offset:{sub*2048}")
        a(f"ds_read_b128 v[{BF+8*sub+4}:{BF+8*sub+7}], v{vY} offset:{sub*2048}")
    if between: between()
    a(f"s_lshl_b32 {sT0}, {sTL[k]}, 9\ns_lshl_b32 {sT1}, {sTL[k]}, 6")
    a(f"v_add_u32 v{vX}, {sT0}, v{vTWa}\nv_add_u32 v{vY}, {sT1}, v{vTMa}")
    for sub in range(2):
        a(f"v_mfma_f32_16x16x32_bf16 v[{DD+4*sub}:{DD+4*sub+3}], v[{WB}:{WB+3}], v[{BF+8*sub}:{BF+8*sub+3}], 0")
    for sub in range(2):
        a(f"v_mfma_f32_16x16x32_bf16 v[{DD+4*sub}:{DD+4*sub+3}], v[{WB+4}:{WB+7}], v[{BF+8*sub+4}:{BF+8*sub+7}], v[{DD+4*sub}:{DD+4*sub+3}]")
    for sub in range(2):
        d=DD+4*sub
        a(f"v_cvt_pk_bf16_f32 v{d}, v{d}, v{d+1}\nv_cvt_pk_bf16_f32 v{d+1}, v{d+2}, v{d+3}")
    a("s_mov_b32 exec_hi, 0")
    for sub in range(2):
        a(f"ds_write_b64 v{vX}, v[{DD+4*sub}:{DD+4*sub+1}] offset:{sub*256}")
    a("s_mov_b32 exec_lo, 0\ns_mov_b32 exec_hi, 0xffff")
    for sub in range(2):
        a(f"ds_write_b16 v{vY}, v{DD+4*sub} offset:{sub*32}")
    a("s_mov_b64 exec, -1")

def arrive(a, cnt, vA, vO):
    a(f"v_mov_b32 v{vA}, {SYNC+4*cnt}\nv_mov_b32 v{vO}, 1\ns_mov_b64 exec, 1\nds_add_u32 v{vA}, v{vO}\ns_mov_b64 exec, -1")
lab=[0]
def swait(a, cnt, n, vA, vO):
    lab[0]+=1; L=f"L_sw{lab[0]}"
    a(f"v_mov_b32 v{vA}, {SYNC+4*cnt}")
    a.settle()
    a.label(L)
    a._emit(f"ds_read_b32 v{vO}, v{vA}"); a._emit("s_waitcnt lgkmcnt(0)"); a.lgq=[]
    a._emit(f"v_readfirstlane_b32 {sT3}, v{vO}"); a._emit(f"s_add_u32 {sSPIN}, {sSPIN}, 1"); a._emit(f"s_cmp_ge_u32 {sSPIN}, 0x40000"); a._emit(f"s_cbranch_scc1 {L}x")
    a._emit(f"s_cmp_ge_u32 {sT3}, {n}"); a._emit(f"s_cbranch_scc0 {L}")
    a.label(L+"x")

C0=-2.302208198; C1=C0*0.044715
def gelu_batch(a, xs, ts, vC1):
    for x,t in zip(xs,ts): a(f"v_mul_f32 v{t}, v{x}, v{x}")
    for x,t in zip(xs,ts): a(f"v_fmaak_f32 v{t}, v{vC1}, v{t}, {f2u(C0):#x}")
    for x,t in zip(xs,ts): a(f"v_mul_f32 v{t}, v{t}, v{x}")
    for x,t in zip(xs,ts): a(f"v_exp_f32 v{t}, v{t}")
    for x,t in zip(xs,ts): a(f"v_add_f32 v{t}, 1.0, v{t}")
    for x,t in zip(xs,ts): a(f"v_rcp_f32 v{t}, v{t}")
    for x,t in zip(xs,ts): a(f"v_mul_f32 v{x}, v{x}, v{t}")

c = a.fork()
d = a
ACC=192; AD=140; EF=116; FF=100; TT=92; RING=12; NR=10
vWo=[2,3]; vSel=4
d(f"s_cmp_ge_u32 {sROT}, 26\ns_cselect_b32 {sT0}, 26, 0\ns_sub_u32 {sT1}, {sROT}, {sT0}\ns_cmp_ge_u32 {sT1}, 13\ns_cselect_b32 {sT0}, 13, 0\ns_sub_u32 {sT1}, {sT1}, {sT0}")
d(f"s_lshl_b32 {sT2}, {sWAVE}, 13\ns_lshl_b32 {sT0}, {sNB}, 7\ns_add_u32 {sT2}, {sT2}, {sT0}")
for k in range(13):
    d(f"s_lshl_b32 s{sK0+k}, {sT1}, 2\ns_lshl_b32 s{sW0+k}, {sT1}, 15\ns_add_u32 s{sW0+k}, s{sW0+k}, {sT2}")
    if k<12: d(f"s_add_u32 {sT1}, {sT1}, 1\ns_cmp_ge_u32 {sT1}, 13\ns_cselect_b32 {sT0}, 13, 0\ns_sub_u32 {sT1}, {sT1}, {sT0}")
d(f"v_and_b32 v5, 31, v1\nv_lshrrev_b32 v6, 5, v1\nv_mul_u32_u24 v5, 104, v5\nv_mul_u32_u24 v6, 52, v6\nv_add_u32 v5, v5, v6")
d(f"s_and_b32 {sT0}, {sMB}, 1\ns_lshl_b32 {sT0}, {sT0}, 1\ns_lshr_b32 {sT1}, {sWAVE}, 1\ns_add_u32 {sT2}, {sT0}, {sT1}\ns_xor_b32 {sT1}, {sT1}, 1\ns_add_u32 {sT0}, {sT0}, {sT1}")
d(f"s_mul_i32 {sT2}, {sT2}, 3328\ns_mul_i32 {sT0}, {sT0}, 3328\ns_add_u32 {sT2}, {sT2}, {IDXS}\ns_add_u32 {sT0}, {sT0}, {IDXS}")
d(f"v_add_u32 v6, {sT0}, v5\nv_add_u32 v5, {sT2}, v5")
for k in range(13):
    for mt in range(2):
        r=AD+4*k+2*mt
        d(f"v_add_u32 v{r+1}, s{sK0+k}, v{5+mt}\nds_read_b32 v{r}, v{r+1}")
d(f"v_lshrrev_b32 v7, 5, v1\nv_mul_u32_u24 v7, {13*64}, v7\nv_bfe_u32 v8, v1, 4, 1\nv_lshl_add_u32 v7, v8, 2, v7\nv_bfe_u32 v8, v1, 3, 1\nv_add_u32 v7, v7, v8\nv_and_b32 v9, 7, v1\nv_lshlrev_b32 v9, 4, v9\nv_lshl_or_b32 v{vWo[0]}, v7, 9, v9\nv_add_u32 v{vWo[1]}, 4096, v{vWo[0]}")
d(f"v_cmp_eq_u32 vcc, 0, v8\nv_mov_b32 v9, 0x03020706\nv_mov_b32 v{vSel}, 0x05040100\nv_cndmask_b32 v{vSel}, v9, v{vSel}, vcc")
wb_fix(d)
d.wait_all_lgkm()
d("s_barrier")
def wload(n):
    k=n>>1; cc=n&1; r=RING+8*(n%NR)
    d(f"buffer_load_dwordx4 v[{r}:{r+3}], v{vWo[cc]}, {sWD1}, s{sW0+k} offen")
    d(f"buffer_load_dwordx4 v[{r+4}:{r+7}], v{vWo[cc]}, {sWD1}, s{sW0+k} offen offset:1024")
d(f"s_lshl_b32 {sT2}, {sWAVE}, 5")
def addr_calc(ks):
    for k in ks:
        for mt in range(2):
            r=AD+4*k+2*mt
            d(f"v_lshlrev_b32 v{r+1}, 3, v{r}\nv_and_b32 v{r+1}, 0x70, v{r+1}\nv_lshl_or_b32 v{r}, v{r}, 7, v{r+1}\nv_xor_b32 v{r}, {sT2}, v{r}\nv_xor_b32 v{r+1}, 16, v{r}")
addr_calc(range(13))
nl=0
plan=[2,2,3,3]
for k in range(4):
    def btw():
        global nl
        for _ in range(plan[k]): wload(nl); nl+=1
    tile_proc(d,k,btw)
assert nl==NR
d.wait_all_lgkm()
d("s_barrier")
stamp(d,3)
def eread(n):
    k=n>>1; cc=n&1; r=EF+8*(n%3)
    for mt in range(2): d(f"ds_read_b128 v[{r+4*mt}:{r+4*mt+3}], v{AD+4*k+2*mt+cc}")
def transp_ops(n):
    r=RING+8*(n%NR); f=FF+8*(n&1); ops=[]
    for i in range(8): ops.append(f"v_mov_b32_dpp v{TT+i}, v{r+i} row_ror:8 row_mask:0xf bank_mask:0xf bound_ctrl:0")
    for i0 in range(2):
        for rr in range(4):
            r1=rr>>1; r0=rr&1
            ops.append(f"v_perm_b32 v{f+4*r0+2*r1+i0}, v{TT+4*i0+rr}, v{r+4*i0+rr}, v{vSel}")
    for r0 in range(2):
        for i0 in range(2): ops.append(f"v_permlane16_swap_b32 v{f+4*r0+i0}, v{f+4*r0+2+i0}")
    return ops
eread(0); eread(1)
for o in transp_ops(0): d(o)
wload(NR)
W2=RING+0
for n in range(26):
    ops = transp_ops(n+1) if n+1<26 else []
    if n+2<26: eread(n+2)
    f=FF+8*(n&1); e=EF+8*(n%3)
    mf=[]
    for nt in range(2):
        for mt in range(2):
            acc=ACC+16*(2*nt+mt)
            cs = "0" if n==0 else f"v[{acc}:{acc+15}]"
            mf.append(f"v_mfma_f32_32x32x16_bf16 v[{acc}:{acc+15}], v[{f+4*nt}:{f+4*nt+3}], v[{e+4*mt}:{e+4*mt+3}], {cs}")
    for i in range(4):
        d(mf[i])
        for o in ops[5*i:5*i+5]: d(o)
        if i==3 and n+1+NR<26: wload(n+1+NR)
    if n==20:
        W2=RING+8*(20%NR)
        d(f"v_lshrrev_b32 v5, 5, v1\nv_lshlrev_b32 v5, 6, v5\ns_lshl_b32 {sT0}, {sNB}, 7\ns_and_b32 {sT1}, {sWAVE}, 1\ns_lshl_b32 {sT1}, {sT1}, 2\ns_add_u32 {sT0}, {sT0}, {sT1}")
        for r in range(4):
            d(f"buffer_load_dwordx3 v[{W2+4*r}:{W2+4*r+2}], v5, {sWD2}, {sT0} offen offset:{16*r}")
stamp(d,4)
d.wait_all_lgkm()
arrive(d,3,5,6)
swait(d,3,8,5,6)
stamp(d,5)
d(f"v_lshlrev_b32 v7, 4, v1")
d(f"s_bitcmp1_b32 {sWAVE}, 0\ns_cbranch_scc1 L_dep1")
def depi(d,P):
    for nt in range(2):
        for mt in range(2):
            cx=(P^nt)+2*mt
            if cx==0: continue
            acc=ACC+16*(2*nt+mt)
            d(f"s_xor_b32 {sT0}, {sWAVE}, {cx}\ns_mul_i32 {sT0}, {sT0}, 12288\ns_add_u32 {sT0}, {sT0}, {(cx-1)*4096}\nv_add_u32 v8, {sT0}, v7")
            for j in range(4): d(f"ds_write_b128 v8, v[{acc+4*j}:{acc+4*j+3}] offset:{1024*j}")
    d.wait_all_lgkm()
    arrive(d,4,5,6)
    WV=140
    for gp in range(4):
        for r in range(4):
            src=W2+4*r+2*(gp>>1)
            if gp&1: d(f"v_and_b32 v{WV+4*gp+r}, 0xffff0000, v{src}")
            else: d(f"v_lshlrev_b32 v{WV+4*gp+r}, 16, v{src}")
    d(f"s_mul_i32 {sT0}, {sWAVE}, 12288\nv_add_u32 v8, {sT0}, v7\nv_mov_b32 v9, {f2u(C1):#x}")
    swait(d,4,4,5,6)
    own=ACC+16*(2*P)
    RB=92
    for k in range(3):
        for j in range(4): d(f"ds_read_b128 v[{RB+16*k+4*j}:{RB+16*k+4*j+3}], v8 offset:{4096*k+1024*j}")
    for k in range(3):
        for i in range(16): d(f"v_add_f32 v{own+i}, v{own+i}, v{RB+16*k+i}")
    gelu_batch(d, [own+i for i in range(16)], [160+i for i in range(16)], 9)
    d(f"v_mul_f32 v10, v{own}, v{WV}\nv_mul_f32 v11, v{own+1}, v{WV+1}")
    for i in range(2,16): d(f"v_fmac_f32 v{10+(i&1)}, v{own+i}, v{WV+i}")
    d("v_add_f32 v10, v10, v11")
    stamp(d,6)
d0=d.fork(); d1=d.fork()
depi(d0,0); d0("s_branch L_part")
depi(d1,1); d1("s_branch L_part")
d.lines += d0.lines; d.label("L_dep1"); d.lines += d1.lines
dcount=dict(d.count)

c.label("L_cross")
RE=12; RT=64; RW=116; AL=168; AH=181; FA=194; FB=202; T0=210; T1=226; AQ=242
A1=242; A2=250
vI=AL
aE=AH; aT=T0; aM=T1
c(f"v_lshlrev_b32 v2, 7, v1\ns_sub_u32 {sT2}, {sWAVE}, 4")
def wc_dma(c, t):
    for i in range(3):
        c(f"s_add_u32 {sT0}, {sT2}, {4*i}\ns_min_u32 {sT0}, {sT0}, 10\ns_lshl_b32 {sT1}, {sT0}, 10\ns_add_u32 {sT1}, {sT1}, {WCB}\ns_mov_b32 m0, {sT1}")
        c(f"s_lshl_b32 {sT0}, {sT0}, 13\ns_lshl_b32 {sT1}, {sECH}, 4\ns_add_u32 {sT0}, {sT0}, {sT1}\ns_add_u32 {sT0}, {sT0}, {t*86528}")
        c(f"buffer_load_dwordx4 v2, {sWC}, {sT0} offen lds", tag=f'wc{t}')
c(f"v_and_b32 v5, 31, v1\nv_lshrrev_b32 v6, 5, v1\nv_mul_u32_u24 v7, 104, v5\nv_mul_u32_u24 v8, 52, v6\nv_add_u32 v7, v7, v8")
c(f"s_mul_i32 {sT0}, {sT2}, 3328\ns_add_u32 {sT0}, {sT0}, {IDXS}\nv_add_u32 v7, {sT0}, v7")
for j in range(13): c(f"ds_read_b32 v{vI+j}, v7 offset:{4*j}")
c("v_lshrrev_b32 v8, 3, v5\nv_bfe_u32 v9, v5, 2, 1\nv_and_b32 v10, 3, v5")
c("v_lshl_add_u32 v11, v8, 2, v10")
c("v_lshl_add_u32 v3, v9, 3, v11")
c(f"v_mul_u32_u24 v4, 169, v6\nv_add_u32 v4, v4, v3\nv_lshlrev_b32 v4, 1, v4\nv_add_u32 v4, {SE1S}, v4")
c(f"v_cmp_gt_u32 vcc, 13, v3\nv_cmp_gt_u32 {sMK}, 16, v5\ns_and_b64 vcc, vcc, {sMK}\nv_mov_b32 v3, {SE1S+680}\nv_cndmask_b32 v4, v3, v4, vcc")
c(f"v_mov_b32 v{A1+7}, 0")
for t in range(13):
    c(f"ds_read_u16 v{(RE+t) if t<12 else (A1+6)}, v4 offset:{26*t}")
c(f"v_mul_u32_u24 v3, 13, v9\nv_add_u32 v3, v3, v11\nv_mul_u32_u24 v4, 208, v6\nv_add_u32 v4, v4, v3\nv_lshlrev_b32 v4, 1, v4\nv_add_u32 v4, {SE2S}, v4")
for t in range(8):
    c(f"ds_read_u16 v{RE+12+t}, v4 offset:{52*t}")
c(f"v_min_u32 v3, 25, v3\nv_mul_u32_u24 v3, 416, v3\nv_mul_u32_u24 v4, 208, v6\nv_add_u32 v3, v3, v4\nv_add_u32 v3, {WCB}, v3")
wb_fix(c)
for t in range(6): c(f"v_lshl_or_b32 v{A1+t}, v{RE+2*t+1}, 16, v{RE+2*t}")
for t in range(4): c(f"v_lshl_or_b32 v{A2+t}, v{RE+12+2*t+1}, 16, v{RE+12+2*t}")
c.wait_all_lgkm()
c("s_barrier")
wc_dma(c,0)
c(f"s_lshl_b32 {sT3}, {sECH}, 4")
for j in range(13):
    r=vI+j
    c(f"v_lshlrev_b32 v4, 3, v{r}\nv_and_b32 v4, 0x70, v4\nv_lshl_or_b32 v4, v{r}, 7, v4\nv_xor_b32 v{aE+j}, {sT3}, v4")
    c(f"v_lshlrev_b32 v4, 4, v{r}\nv_add_u32 v{aT+j}, {TW}, v4\nv_lshlrev_b32 v4, 1, v{r}\nv_add_u32 v{aM+j}, {TM}, v4")
for k in range(4):
    def btw():
        if k==1:
            c(f"s_cmp_eq_u32 {sWAVE}, 4\ns_cbranch_scc0 L_nordy")
            c._emit(f"v_mov_b32 v4, 1"); c._emit(f"s_lshl_b32 {sT0}, {sP}, 2"); c._emit(f"v_mov_b32 v5, {sT0}"); c._emit("s_mov_b64 exec, 1")
            c._emit(f"buffer_atomic_add v4, v5, {sDBG}, 0 offen offset:128"); c._emit("s_mov_b64 exec, -1"); c._emit("s_branch L_rdydone")
            c.label("L_nordy")
            c._emit(f"buffer_load_dword v4, v2, {sSE1}, 0 offen")
            c.label("L_rdydone")
            c.vmq.append(('rdy',[('v',4)]))
    tile_proc(c,k,btw)
c.wait_all_lgkm()
c("s_barrier")
stamp(c,3)
Z=FA; G=FB
c(f"v_mov_b32 v{Z+7}, 0")
for j in range(13): c(f"ds_read_u16 v{(RW+j) if j<12 else (Z+6)}, v{aM+j}", tag='z')
for j in range(13): c(f"ds_read_b128 v[{RE+4*j}:{RE+4*j+3}], v{aE+j}", tag='e')
for j in range(13): c(f"ds_read_b128 v[{RT+4*j}:{RT+4*j+3}], v{aT+j}", tag='t')
c(f"s_mov_b32 {sSEL[0]}, 0x05040100\ns_mov_b32 {sSEL[1]}, 0x07060302\ns_mov_b32 {sSELZ[0]}, 0x0c0c0100\ns_mov_b32 {sSELZ[1]}, 0x0c0c0302")
c(f"v_mov_b32 v9, {f2u(C1):#x}")
c.wait_tag('wc0')
arrive(c,0,5,6)
for t in range(6): c(f"v_lshl_or_b32 v{Z+t}, v{RW+2*t+1}, 16, v{RW+2*t}")
c(f"v_mfma_f32_32x32x16_bf16 v[{T0}:{T0+15}], v[{A1}:{A1+3}], v[{Z}:{Z+3}], 0")
c(f"v_mfma_f32_32x32x16_bf16 v[{T0}:{T0+15}], v[{A1+4}:{A1+7}], v[{Z+4}:{Z+7}], v[{T0}:{T0+15}]")
gelu_batch(c,[T0+i for i in range(8)],[RW+i for i in range(8)],9)
for i in range(4): c(f"v_cvt_pk_bf16_f32 v{G+i}, v{T0+2*i}, v{T0+2*i+1}")
c(f"v_mfma_f32_32x32x16_bf16 v[{T1}:{T1+15}], v[{A2}:{A2+3}], v[{G}:{G+3}], 0")
c.wait_ltag('e')
arrive(c,3,5,6)
for j in range(13): c(f"v_mul_f32 v{T1+j}, {f2u(-1.4426950409):#x}, v{T1+j}")
for j in range(13): c(f"v_exp_f32 v{T1+j}, v{T1+j}")
for j in range(13): c(f"v_add_f32 v{T1+j}, 1.0, v{T1+j}")
for j in range(13): c(f"v_rcp_f32 v{T1+j}, v{T1+j}")
for j in range(13): c(f"v_cvt_pk_bf16_f32 v{AL+j}, v{T1+j}, 0")
for j in range(13): c(f"v_lshlrev_b32 v{AH+j}, 16, v{AL+j}")
stamp(c,4)
def read_rw():
    for j in range(13): c(f"ds_read_b128 v[{RW+4*j}:{RW+4*j+3}], v3 offset:{16*j}")
def perm_frag(F, R, e):
    wi=e>>1; hs=e&1
    for pp in range(6): c(f"v_perm_b32 v{F+pp}, v{R+4*(2*pp+1)+wi}, v{R+4*(2*pp)+wi}, {sSEL[hs]}")
    c(f"v_perm_b32 v{F+6}, v{R+48+wi}, v{R+48+wi}, {sSELZ[hs]}")
def v_frag(e):
    wi=e>>1; A=(AL if (e&1)==0 else AH)
    tmp=[4,5,6,7,8,9,10,11,255,0,2]
    for base in (0,6):
        js=list(range(base, base+6)) if base==0 else list(range(6,13))
        for n,j in enumerate(js): c(f"v_dot2_f32_bf16 v{tmp[n]}, v{RE+4*j+wi}, v{A+j}, 0")
        for n in range(0,len(js)-1,2): c(f"v_cvt_pk_bf16_f32 v{FB+(js[n]>>1)}, v{tmp[n]}, v{tmp[n+1]}")
        if base==6: c(f"v_cvt_pk_bf16_f32 v{FB+6}, v{tmp[6]}, 0")
def mm(e):
    T=T0 if (e&1)==0 else T1
    c(f"v_mfma_f32_32x32x16_bf16 v[{T}:{T+15}], v[{FA}:{FA+3}], v[{FB}:{FB+3}], 0")
    c(f"v_mfma_f32_32x32x16_bf16 v[{T}:{T+15}], v[{FA+4}:{FA+7}], v[{FB+4}:{FB+7}], v[{T}:{T+15}]")
swait(c,0,4,5,6)
read_rw()
c(f"v_mov_b32 v{FA+7}, 0\nv_mov_b32 v{FB+7}, 0")
c.wait_all_lgkm()
arrive(c,1,5,6)
first=True
def final(pair, q):
    for ii in range(13): c(f"v_cvt_pk_bf16_f32 v{T0+ii}, v{T0+ii}, v{T1+ii}")
    for ii in range(13):
        if q: dst=AQ+ii; cs="0" if pair==0 else f"v{dst}"
        else: dst=AQ+(ii&3); cs="0" if (pair==0 and ii<4) else f"v{dst}"
        c(f"v_dot2_f32_bf16 v{dst}, v{RT+4*ii+pair}, v{T0+ii}, {cs}")
for pair in range(4):
    for e in (2*pair,2*pair+1):
        if not (e==2*pair and pair>0): perm_frag(FA,RW,e); perm_frag(FB,RE,e)
        mm(e)
        if pair==0 and e==0:
            swait(c,1,4,5,6); wc_dma(c,1)
    if pair<3: perm_frag(FA,RW,2*pair+2); perm_frag(FB,RE,2*pair+2)
    final(pair,False)
c(f"v_add_f32 v{AQ}, v{AQ}, v{AQ+1}\nv_add_f32 v{AQ+2}, v{AQ+2}, v{AQ+3}\nv_add_f32 v1, v{AQ}, v{AQ+2}")
stamp(c,5)
c.wait_tag('wc1')
arrive(c,2,5,6)
v_frag(0)
swait(c,2,4,5,6)
read_rw()
for pair in range(4):
    for e in (2*pair,2*pair+1):
        if e==0: perm_frag(FA,RW,e)
        elif not (e==2*pair): perm_frag(FA,RW,e); v_frag(e)
        mm(e)
    if pair<3: perm_frag(FA,RW,2*pair+2); v_frag(2*pair+2)
    final(pair,True)
c(f"v_mov_b32 v10, v1")
for ii in range(13): c(f"v_fmac_f32 v10, v{AQ+ii}, v{AH+ii}")
c("v_mbcnt_lo_u32_b32 v1, -1, 0\nv_mbcnt_hi_u32_b32 v1, -1, v1")
stamp(c,6)
e = c
e.settle()
e.label("L_part")
e.vmq=[('x',[])]*0; e.lgq=[]
e(f"s_lshl_b32 {sT0}, {sWAVE}, 8\ns_add_u32 {sT0}, {sT0}, {PART}\nv_lshl_add_u32 v5, v1, 2, {sT0}\nds_write_b32 v5, v10")
e(f"s_lshl_b32 {sT1}, {sP}, 2\nv_mov_b32 v6, {sT1}")
e(f"s_cmp_ge_u32 {sWAVE}, 2\ns_cbranch_scc1 L_nochk")
e._emit(f"buffer_load_dword v7, v6, {sDBG}, 0 offen offset:128 sc1")
e.label("L_nochk")
e.wait_all_lgkm()
e("s_barrier")
e(f"s_cmp_ge_u32 {sWAVE}, 2\ns_cbranch_scc1 L_fin")
e(f"v_lshrrev_b32 v2, 5, v1\nv_and_b32 v3, 31, v1\nv_lshlrev_b32 v3, 2, v3")
e(f"s_lshl_b32 {sT0}, {sWAVE}, 9\ns_add_u32 {sT0}, {sT0}, {PART+1024}\nv_lshl_add_u32 v4, v2, 8, v3\nv_add_u32 v4, {sT0}, v4")
e("ds_read_b32 v10, v4\nds_read_b32 v11, v4 offset:128")
e(f"s_and_b32 {sT0}, {sMB}, 1\ns_cmp_eq_u32 {sT0}, {sWAVE}\ns_cbranch_scc0 L_nodeep")
e(f"v_lshl_add_u32 v4, v2, 9, v3\nv_add_u32 v4, {PART}, v4")
e("ds_read_b32 v12, v4\nds_read_b32 v13, v4 offset:128\nds_read_b32 v14, v4 offset:256\nds_read_b32 v15, v4 offset:384")
e("v_add_f32 v12, v12, v13\nv_add_f32 v14, v14, v15\nv_add_f32 v12, v12, v14\nv_add_f32 v11, v11, v12")
e.label("L_nodeep")
e.wait_all_lgkm()
e("v_add_f32 v10, v10, v11\nv_min_u32 v10, -2, v10")
e(f"v_lshrrev_b32 v2, 4, v1\nv_and_b32 v3, 15, v1\nv_lshlrev_b32 v3, 2, v3\nv_lshl_add_u32 v3, v2, 9, v3")
e(f"s_lshl_b32 {sT0}, {sP}, 12\ns_lshl_b32 {sT1}, {sWAVE}, 11\ns_add_u32 {sT0}, {sT0}, {sT1}\ns_lshl_b32 {sT1}, {sG8}, 6\ns_add_u32 {sT0}, {sT0}, {sT1}")
e.label("L_rdy")
e._emit("s_waitcnt vmcnt(0)")
e._emit(f"v_readfirstlane_b32 {sT3}, v7"); e._emit("s_nop 0"); e._emit(f"s_cmp_ge_u32 {sT3}, 8"); e._emit("s_cbranch_scc1 L_rdyok")
e._emit(f"s_add_u32 {sSPIN}, {sSPIN}, 64"); e._emit(f"s_cmp_ge_u32 {sSPIN}, 0x40000"); e._emit("s_cbranch_scc1 L_rdyok")
e._emit("s_sleep 8"); e._emit(f"buffer_load_dword v7, v6, {sDBG}, 0 offen offset:128 sc1"); e._emit("s_branch L_rdy")
e.label("L_rdyok")
e.vmq=[]
e(f"buffer_store_dword v10, v3, {sWS}, {sT0} offen sc1")
e(f"s_cmp_eq_u32 {sWAVE}, 0\ns_cbranch_scc0 L_fin")
e(f"v_lshlrev_b32 v3, 3, v1\ns_lshl_b32 {sT0}, s2, 9")
e.label("L_poll")
e._emit(f"buffer_load_dwordx2 v[10:11], v3, {sWS}, {sT0} offen sc1")
e._emit("s_waitcnt vmcnt(0)")
e._emit(f"s_add_u32 {sSPIN}, {sSPIN}, 64"); e._emit(f"s_cmp_ge_u32 {sSPIN}, 0x40000"); e._emit("s_cbranch_scc1 L_pollx")
e._emit("v_max_u32 v12, v10, v11"); e._emit("v_cmp_eq_u32 vcc, -1, v12"); e._emit("s_nop 4"); e._emit("s_cbranch_vccnz L_poll")
e.label("L_pollx")
e.vmq=[]
e("v_add_f32_dpp v10, v10, v10 row_ror:8 row_mask:0xf bank_mask:0xf bound_ctrl:0\nv_add_f32_dpp v11, v11, v11 row_ror:8 row_mask:0xf bank_mask:0xf bound_ctrl:0")
e("v_mov_b32 v12, v10\nv_mov_b32 v13, v11")
e("v_permlane16_swap_b32 v10, v12\nv_permlane16_swap_b32 v11, v13\nv_add_f32 v10, v10, v12\nv_add_f32 v11, v11, v13")
e("v_mov_b32 v12, v10\nv_mov_b32 v13, v11")
e("v_permlane32_swap_b32 v10, v12\nv_permlane32_swap_b32 v11, v13\nv_add_f32 v10, v10, v12\nv_add_f32 v11, v11, v13")
e(f"v_cvt_pk_bf16_f32 v10, v10, v11\nv_lshlrev_b32 v3, 2, v1\ns_lshl_b32 {sT0}, s2, 5\ns_mov_b64 exec, 0xff")
e(f"buffer_store_dword v10, v3, {sOUT}, {sT0} offen")
e("s_mov_b64 exec, -1")
e.label("L_fin")
if STAMP:
    e._emit(f"s_memtime s[70:71]"); e._emit("s_memrealtime s[100:101]"); e._emit("s_waitcnt lgkmcnt(0)")
    e._emit(f"s_and_b32 {sT0}, {sWAVE}, 3"); e._emit(f"s_cmp_lg_u32 {sT0}, 0"); e._emit("s_cbranch_scc1 L_end")
    for i in range(1,8): e._emit(f"s_sub_u32 s{STR[i]}, s{STR[i]}, s86")
    e._emit("v_mov_b32 v16, s92"); e._emit("v_mov_b32 v17, s100")
    for i in range(1,8): e._emit(f"v_mov_b32 v{17+i}, s{STR[i]}")
    if DSTAMP:
        e._emit("v_not_b32 v16, v16"); e._emit("v_mov_b32 v3, 0"); e._emit("s_mov_b64 exec, 1")
        e._emit(f"s_cmp_eq_u32 {sWAVE}, 0"); e._emit("s_cbranch_scc0 L_st4")
        for i in range(9): e._emit(f"buffer_atomic_umax v{16+i}, v3, {sDBG}, 0 offen offset:{4*i}")
        e._emit("s_branch L_end")
        e.label("L_st4")
        for i in range(5): e._emit(f"buffer_atomic_umax v{20+i}, v3, {sDBG}, 0 offen offset:{36+4*i}")
        e._emit("s_branch L_end")
    e._emit(f"s_lshl_b32 {sT0}, s2, 6"); e._emit(f"s_add_u32 {sT0}, {sT0}, 0x8000000")
    e._emit("v_mov_b32 v3, 0"); e._emit("s_mov_b64 exec, 1")
    e._emit(f"s_cmp_eq_u32 {sWAVE}, 0"); e._emit("s_cbranch_scc0 L_st4b")
    e._emit(f"buffer_store_dwordx4 v[16:19], v3, {sWS}, {sT0} offen"); e._emit(f"buffer_store_dwordx4 v[20:23], v3, {sWS}, {sT0} offen offset:16"); e._emit(f"buffer_store_dword v24, v3, {sWS}, {sT0} offen offset:32")
    e._emit("s_branch L_end")
    e.label("L_st4b")
    e._emit(f"buffer_store_dwordx4 v[20:23], v3, {sWS}, {sT0} offen offset:36"); e._emit(f"buffer_store_dword v24, v3, {sWS}, {sT0} offen offset:52")
e.label("L_end")
e._emit("s_endpgm")
out = d.text() + "\n" + e.text() + f"""
.section .rodata,"a"
.p2align 6
.amdhsa_kernel {NAME}
  .amdhsa_next_free_vgpr 256
  .amdhsa_next_free_sgpr 102
  .amdhsa_accum_offset 256
  .amdhsa_group_segment_fixed_size 0
  .amdhsa_kernarg_size 88
  .amdhsa_user_sgpr_count 2
  .amdhsa_user_sgpr_kernarg_segment_ptr 1
  .amdhsa_system_sgpr_workgroup_id_x 1
.end_amdhsa_kernel
"""
print(out)
sys.stderr.write(f"nops D {d.nops} C {c.nops}\n")
```

```python
import sys, struct
from asmlib import Asm
def opt(name, default=None):
    if name in sys.argv:
        return sys.argv[sys.argv.index(name)+1]
    return default
STAMP = '--stamp' in sys.argv
SW = int(opt('--sw', 5))
PRIO_D = int(opt('--prioD', 0)); PRIO_C = int(opt('--prioC', 0))
PRE = int(opt('--pre', 0))
NB1 = int(opt('--nb1', 4))
RAMP = int(opt('--ramp', 1))
FRONT = float(opt('--front', 0.6))
MODE = opt('--mode','v')
NR = int(opt('--nr', 10))
PRIO0 = int(opt('--prio0', 1))
NOROT = '--norot' in sys.argv
NOC = '--noC' in sys.argv; NOD = '--noD' in sys.argv
NAME = "standalone__deep_cross_fibinet__recsys_kernel"
def f2u(x): return struct.unpack('<I', struct.pack('<f', x))[0]

TW=128000; TM=144000; XR=146000
IDXS=XR; WBIS=XR+13312; SE1S=WBIS+1024; SE2S=SE1S+1024
WCB=XR; WCA=XR+11264; SYNC=163776
NQA = 6 if MODE=='v' else 2
HR = (NQA*64)//13
NQB = (676-13*HR+63)//64
SCR = WCA+NQA*1024
assert WCA+NQA*1024+(0 if MODE=='v' else 4096)<=SYNC and SE2S+1024<=SYNC
LDS_BYTES=163840
sIDX,sTABL,sSE1,sSE2,sWBI,sWC,sWD1,sWD2,sOUT,sDBG,sWS = [f"s[{4+4*i}:{7+4*i}]" for i in range(11)]
SRD_SIZES=[425984,128000,676,676,8192,173056,851968,512,8192,256,0x10000000]
sWAVE,sNB,sMB,sROT,sECH,sP,sG8,sT0,sT1,sT2,sT3,sSPIN = [f"s{i}" for i in range(48,60)]
sMK="s[98:99]"; sFL="s3"
sW0=73
sSEL=["s60","s61"]; sSELZ=["s73","s74"]; sTWc="s75"; sTMc="s76"
STR=[86,88,90,62,64,66,68,70]
sTL=["s94","s95","s96","s97"]
SPINMAX="0x40000"
C_W1,C_RP,C_W2,C_TAB,C_RED,C_RDY,C_TW,C_STG = range(8)
PF = int(opt('--pf',1))
EARLY = int(opt('--early',2))
PRIOD0 = int(opt('--priod0',2))
POST = int(opt('--post',3))
TRACE = opt('--trace','')
TRREG = [4,6,8,10,12,14,16,18,20,22,88,90,62,64]
trn = {'D':[], 'C':[], 'S':[], 'T':[]}
if TRACE in ('S','T'): TRREG=[62,64,66,68,70,88,90,82,84,62,62,62,62,62]
def tr(a, role, name):
    if TRACE==role and len(trn[role])<14:
        r=TRREG[len(trn[role])]; trn[role].append(name); a._emit(f"s_memtime s[{r}:{r+1}]")
DBG0 = '--dbg0' in sys.argv
def stamp0(a, i):
    if DBG0: a._emit(f"s_memtime s[{STR[i]}:{STR[i]+1}]")
def stamp(a, i):
    if STAMP and not TRACE and not (DBG0 and i in (1,2,4,5,6)): a._emit(f"s_memtime s[{STR[i]}:{STR[i]+1}]")
def L(text): return [x.strip() for x in text.split('\n') if x.strip()]

a = Asm()
a.raw(f"; @launch grid=(256,1,1) block=(512,1,1) lds={LDS_BYTES}")
a.raw('.amdgcn_target "amdgcn-amd-amdhsa--gfx950"')
a.raw(f".text\n.globl {NAME}\n.p2align 8\n.type {NAME},@function\n{NAME}:")
if STAMP:
    a._emit("s_memrealtime s[92:93]"); a._emit(f"s_memtime s[86:87]")
a("s_cmp_ge_u32 s2, 256\ns_cbranch_scc1 L_end")
order=[0,1,4,2,3,6,5,10,8,7,9]
for i in order: a._emit(f"s_load_dwordx2 s[{4+4*i}:{5+4*i}], s[0:1], {8*i}")
a("v_lshrrev_b32 v2, 6, v0\nv_and_b32 v1, 63, v0")
a(f"v_readfirstlane_b32 {sWAVE}, v2")
for i in range(11):
    a(f"s_mov_b32 s{6+4*i}, {SRD_SIZES[i]}\ns_mov_b32 s{7+4*i}, 0x20000")
a(f"s_and_b32 {sNB}, s2, 3\ns_lshr_b32 {sMB}, s2, 2\ns_lshr_b32 {sROT}, s2, 3\ns_lshr_b32 {sP}, s2, 3\ns_and_b32 {sG8}, s2, 7")
a(f"s_and_b32 {sT0}, {sMB}, 1\ns_lshl_b32 {sECH}, {sNB}, 1\ns_add_u32 {sECH}, {sECH}, {sT0}\ns_mov_b32 {sSPIN}, 0")
vL16=92; vT0=93; vTa=94; vTb=95; vB0=96; vTWa=97; vTMa=98; vX=99; vY=100; vC=101; vM=102; vZ=103
WB=104; BF=112; DD=128; vF=136
a(f"v_lshlrev_b32 v{vL16}, 4, v1")
a(f"v_and_b32 v{vX}, 7, v1\nv_lshrrev_b32 v{vY}, 4, v1\nv_xor_b32 v{vX}, v{vX}, v{vY}\nv_lshlrev_b32 v{vX}, 4, v{vX}")
a(f"v_lshrrev_b32 v{vY}, 3, v1\nv_lshl_or_b32 v{vT0}, v{vY}, 7, v{vX}")
a(f"v_lshlrev_b32 v{vX}, 7, v1")
a(f"s_add_u32 {sT0}, {sWAVE}, {sROT}")
for k in range(4):
    a(f"s_add_u32 {sTL[k]}, {sT0}, {8*k}\ns_and_b32 {sTL[k]}, {sTL[k]}, 31\ns_lshl_b32 {sTL[k]}, {sTL[k]}, 12\ns_min_u32 {sTL[k]}, {sTL[k]}, {121*1024}")
a(f"s_mul_i32 {sT1}, {sP}, 13312\ns_lshl_b32 {sT0}, {sWAVE}, 11\ns_add_u32 {sT2}, {sT0}, {IDXS}\ns_add_u32 {sT0}, {sT1}, {sT0}\ns_mov_b32 m0, {sT2}")
def tile_pre(k):
    return L(f"s_lshr_b32 {sFL}, {sTL[k]}, 4\ns_and_b32 {sFL}, {sFL}, 64\nv_xor_b32 v{vTa}, {sFL}, v{vT0}\nv_xor_b32 v{vTb}, 64, v{vTa}")
for o in tile_pre(0): a(o)
a(f"s_cmp_ge_u32 {sWAVE}, 6")
a._emit("s_waitcnt lgkmcnt(0)")
a("s_cbranch_scc1 L_stg67")
a(f"buffer_load_dwordx4 v{vL16}, {sIDX}, {sT0} offen lds", tag='stg')
a(f"buffer_load_dwordx4 v{vL16}, {sIDX}, {sT0} offen offset:1024 lds", tag='stg')
a("s_branch L_stgdone")
a.label("L_stg67")
a(f"s_cmp_eq_u32 {sWAVE}, 7\ns_cbranch_scc1 L_stg7")
a._emit(f"buffer_load_dwordx4 v{vL16}, {sIDX}, {sT0} offen lds")
a._emit(f"s_lshl_b32 {sT0}, {sECH}, 4"); a._emit(f"s_mov_b32 m0, {WBIS}"); a._emit("s_nop 0")
a._emit(f"buffer_load_dwordx4 v{vX}, {sWBI}, {sT0} offen lds")
a._emit("s_branch L_stgdone")
a.label("L_stg7")
a._emit(f"s_mov_b32 m0, {SE1S}"); a._emit("s_nop 0")
a._emit(f"buffer_load_dwordx4 v{vL16}, {sSE1}, 0 offen lds")
a._emit(f"s_mov_b32 m0, {SE2S}"); a._emit("s_nop 0")
a._emit(f"buffer_load_dwordx4 v{vL16}, {sSE2}, 0 offen lds")
a.label("L_stgdone")
def tdma(a, n):
    k=n>>2; q=n&3
    if q==0:
        if k>0:
            for o in tile_pre(k): a(o)
        a(f"s_mov_b32 m0, {sTL[k]}")
    a(f"buffer_load_dwordx4 v{vTb if q&1 else vTa}, {sTABL}, {sTL[k]} offen offset:{1024*q} lds", tag=f'tile{k}')
if PF:
    a(f"s_cmp_lt_u32 {sWAVE}, 2\ns_cbranch_scc0 L_nopf")
    a._emit(f"s_cmp_eq_u32 {sWAVE}, 0"); a._emit("s_cbranch_scc0 L_pf1")
    a._emit(f"s_mul_i32 {sT0}, {sROT}, {52*512}"); a._emit(f"s_lshl_b32 {sT1}, {sNB}, 7"); a._emit(f"s_add_u32 {sT0}, {sT0}, {sT1}")
    a._emit(f"v_lshlrev_b32 v9, 9, v1"); a._emit("s_mov_b32 exec_hi, 0xfffff")
    a._emit(f"buffer_load_dword v254, v9, {sWD1}, {sT0} offen"); a._emit("s_mov_b64 exec, -1"); a._emit("s_branch L_pfd")
    a.label("L_pf1")
    a._emit(f"s_mul_i32 {sT0}, {sROT}, {43*128}"); a._emit("s_mov_b32 exec_hi, 0x7ff")
    a._emit(f"buffer_load_dword v254, v{vX}, {sWC}, {sT0} offen"); a._emit("s_mov_b64 exec, -1"); a._emit("s_branch L_pfd")
    a.label("L_nopf")
    a.label("L_pfd")
tdma(a,0); tdma(a,1)
a(f"v_mov_b32 v{vX}, {SYNC}\nv_mov_b32 v{vC}, 0\nv_mov_b32 v{vM}, 0")
for o in range(0,32,8): a(f"ds_write2_b32 v{vX}, v{vC}, v{vM} offset0:{o//4} offset1:{o//4+1}")
a(f"v_and_b32 v{vM}, 15, v1\nv_lshrrev_b32 v{vY}, 4, v1\nv_lshrrev_b32 v{vC}, 1, v{vM}\nv_xor_b32 v{vC}, v{vC}, v{vY}\nv_lshlrev_b32 v{vC}, 4, v{vC}")
a(f"v_lshl_or_b32 v{vB0}, v{vM}, 7, v{vC}")
a(f"v_lshrrev_b32 v{vX}, 5, v1\nv_lshl_add_u32 v{vX}, v{vX}, 4, v{vM}\nv_lshlrev_b32 v{vTMa}, 1, v{vX}\nv_add_u32 v{vTMa}, {TM}, v{vTMa}")
a(f"v_lshlrev_b32 v{vX}, 1, v{vX}\nv_bfe_u32 v{vTWa}, v1, 4, 1\nv_add_lshl_u32 v{vTWa}, v{vX}, v{vTWa}, 3\nv_add_u32 v{vTWa}, {TW}, v{vTWa}")
tdma(a,2)
a(f"v_lshrrev_b32 v{vC}, 2, v{vM}\nv_lshl_add_u32 v{vC}, v{vY}, 3, v{vC}\nv_lshlrev_b32 v{vC}, 4, v{vC}\nv_and_b32 v{vX}, 1, v1\nv_lshl_add_u32 v{vC}, v{vX}, 3, v{vC}\nv_add_u32 v{vC}, {WBIS}, v{vC}")
a(f"v_and_b32 v5, 31, v1\nv_lshrrev_b32 v6, 5, v1\nv_mul_u32_u24 v7, 104, v5\nv_mul_u32_u24 v8, 52, v6\nv_add_u32 v7, v7, v8\nv_mov_b32 v{vZ}, 0x70")
a(f"s_mov_b32 {sSEL[0]}, 0x05040100\ns_mov_b32 {sSEL[1]}, 0x07060302")
a(f"s_cmp_ge_u32 {sWAVE}, 4\ns_cbranch_scc1 L_cross")

def wb_read():
    return [f"ds_read_b64_tr_b16 v[{WB+4*s+2*hf}:{WB+4*s+2*hf+1}], v{vC} offset:{s*512+hf*64}" for s in range(2) for hf in range(2)]
def wb_fix():
    o=L(f"v_cmp_gt_u32 {sMK}, 8, v{vM}\nv_cmp_eq_u32 vcc, 8, v{vM}\nv_mov_b32 v{vY}, 0x3c803c80\nv_cndmask_b32 v{vY}, 0, v{vY}, vcc")
    return o+[f"v_cndmask_b32 v{WB+r}, v{vY}, v{WB+r}, {sMK}" for r in range(8)]
def idx_read(dst, vb):
    o=[f"ds_read2_b32 v[{dst+2*i}:{dst+2*i+1}], v{vb} offset0:{2*i} offset1:{2*i+1}" for i in range(6)]
    return o+[f"ds_read_b32 v{dst+12}, v{vb} offset:48"]
XP = opt('--xp','')
def tileR(k):
    if 'R' in XP: return [('WT',f'tile{k}')]
    o=L(f"s_lshr_b32 {sT0}, {sTL[k]}, 4\ns_and_b32 {sT0}, {sT0}, 64\nv_xor_b32 v{vX}, {sT0}, v{vB0}\nv_add_u32 v{vX}, {sTL[k]}, v{vX}\nv_xor_b32 v{vY}, 64, v{vX}")
    o.append(('WT',f'tile{k}'))
    for sub in range(2):
        o.append(f"ds_read_b128 v[{BF+8*sub}:{BF+8*sub+3}], v{vX} offset:{sub*2048}")
        o.append(f"ds_read_b128 v[{BF+8*sub+4}:{BF+8*sub+7}], v{vY} offset:{sub*2048}")
    return o
def tileM(k):
    o=[f"v_mfma_f32_16x16x32_bf16 v[{DD+4*sub}:{DD+4*sub+3}], v[{WB}:{WB+3}], v[{BF+8*sub}:{BF+8*sub+3}], 0" for sub in range(2)]
    o+=[f"v_mfma_f32_16x16x32_bf16 v[{DD+4*sub}:{DD+4*sub+3}], v[{WB+4}:{WB+7}], v[{BF+8*sub+4}:{BF+8*sub+7}], v[{DD+4*sub}:{DD+4*sub+3}]" for sub in range(2)]
    return o
def tileC(k, H):
    h=H+4*k
    o=L(f"v_cvt_pk_bf16_f32 v{h}, v{DD}, v{DD+1}\nv_cvt_pk_bf16_f32 v{h+2}, v{DD+4}, v{DD+5}\nv_cvt_pk_bf16_f32 v{h+1}, v{DD+2}, v{DD+3}\nv_cvt_pk_bf16_f32 v{h+3}, v{DD+6}, v{DD+7}")
    return o+L(f"v_permlane32_swap_b32 v{h}, v{h+2}\nv_permlane32_swap_b32 v{h+1}, v{h+3}")
def tileW(ks, H):
    o=[]
    for k in ks: o+=L(f"s_lshr_b32 {sT1}, {sTL[k]}, 6\nv_add_u32 v{H+4*k+3}, {sT1}, v{vTMa}")
    o+=["s_mov_b32 exec_lo, 0xffff","s_mov_b32 exec_hi, 0xffff"]+[f"ds_write_b16 v{H+4*k+3}, v{H+4*k+2}" for k in ks]+["s_mov_b64 exec, -1"]
    for k in ks: o+=L(f"s_lshr_b32 {sT0}, {sTL[k]}, 3\nv_add_u32 v{vX}, {sT0}, v{vTWa}\nds_write_b64 v{vX}, v[{H+4*k}:{H+4*k+1}]")
    return o
def emit(a, ops):
    for o in ops:
        if isinstance(o,tuple):
            if o[0]=='WT': a.wait_tag(o[1])
            elif o[0]=='GRP': emit(a,o[1])
            elif o[0]=='FN': o[1]()
        else: a(o)
def spread(a, dmas, fill, frac=1.0, mark=False):
    n=len(dmas); m=int(len(fill)*frac); per=m/max(n,1); pos=0
    for i,dm in enumerate(dmas):
        dm()
        if mark and i==n-1: tr(a,'S' if a is d else 'T','T15')
        end=int(round(per*(i+1))); emit(a, fill[pos:end]); pos=end
    emit(a, fill[pos:])
def arrive(a, cnt, vA=5, vO=6):
    a(f"v_mov_b32 v{vA}, {SYNC+4*cnt}\nv_mov_b32 v{vO}, 1\ns_mov_b64 exec, 1\nds_add_u32 v{vA}, v{vO}\ns_mov_b64 exec, -1")
lab=[0]
def swait(a, cnt, n, vA=5, vO=6, sleep=0):
    lab[0]+=1; Lb=f"L_sw{lab[0]}"
    a(f"v_mov_b32 v{vA}, {SYNC+4*cnt}")
    a._emit(f"ds_read_b32 v{vO}, v{vA}"); a._emit("s_waitcnt lgkmcnt(0)"); a.lgq=[]
    a._emit(f"v_readfirstlane_b32 s100, v{vO}"); a._emit("s_nop 0"); a._emit(f"s_cmp_ge_u32 s100, {n}"); a._emit(f"s_cbranch_scc1 {Lb}x")
    a.label(Lb)
    a._emit(f"s_sleep {max(sleep,1)}")
    a._emit(f"ds_read_b32 v{vO}, v{vA}"); a._emit("s_waitcnt lgkmcnt(0)")
    a._emit(f"v_readfirstlane_b32 s100, v{vO}"); a._emit(f"s_add_u32 {sSPIN}, {sSPIN}, 1"); a._emit(f"s_cmp_ge_u32 {sSPIN}, {SPINMAX}"); a._emit(f"s_cbranch_scc1 {Lb}x")
    a._emit(f"s_cmp_ge_u32 s100, {n}"); a._emit(f"s_cbranch_scc0 {Lb}")
    a.label(Lb+"x")
C0=-2.302208198; C1=C0*0.044715
def gelu_ops(xs, ts, vC1):
    o=[]
    for x,t in zip(xs,ts): o.append(f"v_mul_f32 v{t}, v{x}, v{x}")
    for x,t in zip(xs,ts): o.append(f"v_fmaak_f32 v{t}, v{vC1}, v{t}, {f2u(C0):#x}")
    for x,t in zip(xs,ts): o.append(f"v_mul_f32 v{t}, v{t}, v{x}")
    for x,t in zip(xs,ts): o.append(f"v_exp_f32 v{t}, v{t}")
    for x,t in zip(xs,ts): o.append(f"v_add_f32 v{t}, 1.0, v{t}")
    for x,t in zip(xs,ts): o.append(f"v_rcp_f32 v{t}, v{t}")
    for x,t in zip(xs,ts): o.append(f"v_mul_f32 v{x}, v{x}, v{t}")
    return o
def send_addr(a):
    a("v_bfe_u32 v7, v1, 4, 1\nv_and_b32 v8, 15, v1\nv_lshlrev_b32 v8, 2, v8\nv_lshl_add_u32 v8, v7, 10, v8")
def send(a, sreg):
    a("v_mov_b32 v11, v10")
    a("v_permlane32_swap_b32 v10, v11")
    a("v_add_f32 v10, v10, v11\nv_min_u32 v10, -2, v10")
    a("s_mov_b32 exec_hi, 0")
    a(f"buffer_store_dword v10, v8, {sWS}, {sreg} offen sc1")
    a("s_mov_b64 exec, -1")
def swz(dst, src, tmp, sc):
    if 'A' in XP: return [f"v_lshlrev_b32 v{dst}, 7, v{src}"]
    return L(f"v_lshlrev_b32 v{tmp}, 3, v{src}\nv_bitop3_b32 v{tmp}, v{tmp}, {sc}, v{vZ} bitop3:0x28\nv_lshl_or_b32 v{dst}, v{src}, 7, v{tmp}")

c = a.fork()
d = a
if PRIOD0: d(f"s_setprio {PRIOD0}")
ACC=192; AD=140; EF=116; FF=100; RING=12; IR=192
assert RING+8*NR<=92
vWo=[2,3]
f1=L(f"s_add_u32 {sT2}, {sWAVE}, {0 if NOROT else sROT}\ns_and_b32 {sT2}, {sT2}, 3\ns_lshl_b32 s{sW0}, {sT2}, 13\ns_lshl_b32 {sT0}, {sNB}, 7\ns_add_u32 s{sW0}, s{sW0}, {sT0}\ns_lshl_b32 {sT2}, {sT2}, 5")
for k in range(1,13): f1.append(f"s_add_u32 s{sW0+k}, s{sW0}, {32768*k}")
f1+=L(f"s_and_b32 {sT0}, {sMB}, 1\ns_lshl_b32 {sT0}, {sT0}, 1\ns_lshr_b32 {sT1}, {sWAVE}, 1\ns_add_u32 {sT3}, {sT0}, {sT1}\ns_xor_b32 {sT1}, {sT1}, 1\ns_add_u32 {sT0}, {sT0}, {sT1}")
f1+=L(f"s_mul_i32 {sT3}, {sT3}, 3328\ns_mul_i32 {sT0}, {sT0}, 3328\ns_add_u32 {sT3}, {sT3}, {IDXS}\ns_add_u32 {sT0}, {sT0}, {IDXS}")
f1+=L(f"v_add_u32 v10, {sT0}, v7\nv_add_u32 v9, {sT3}, v7")
vSel=4; TT=92
if MODE=='v':
    f1+=L(f"v_mul_u32_u24 v7, {13*64}, v6\nv_bfe_u32 v8, v1, 4, 1\nv_lshl_add_u32 v7, v8, 2, v7\nv_bfe_u32 v8, v1, 3, 1\nv_add_u32 v7, v7, v8\nv_and_b32 v11, 7, v1\nv_lshlrev_b32 v11, 4, v11\nv_lshl_or_b32 v{vWo[0]}, v7, 9, v11\nv_add_u32 v{vWo[1]}, 4096, v{vWo[0]}")
    f1+=L(f"v_cmp_eq_u32 vcc, 0, v8\nv_mov_b32 v11, 0x03020706\nv_mov_b32 v{vSel}, 0x05040100\nv_cndmask_b32 v{vSel}, v11, v{vSel}, vcc")
    WOFF=1024
else:
    f1+=L(f"v_mul_u32_u24 v7, {13*64}, v6\nv_bfe_u32 v8, v1, 3, 2\nv_add_u32 v7, v7, v8\nv_and_b32 v11, 7, v1\nv_lshlrev_b32 v0, 4, v11\nv_lshl_or_b32 v{vWo[0]}, v7, 9, v0\nv_add_u32 v{vWo[1]}, 4096, v{vWo[0]}")
    f1+=L(f"s_lshl_b32 {sT0}, {sWAVE}, 10\ns_add_u32 {sT0}, {sT0}, {SCR}")
    f1+=L(f"v_bfe_u32 v8, v1, 4, 1\nv_lshlrev_b32 v8, 6, v8\nv_lshlrev_b32 v4, 4, v1\nv_xor_b32 v4, v4, v8\nv_add_u32 v4, {sT0}, v4")
    f1+=L(f"v_bfe_u32 v7, v1, 2, 2\nv_lshl_add_u32 v8, v6, 2, v7\nv_lshlrev_b32 v8, 7, v8\nv_bfe_u32 v7, v1, 3, 1\nv_lshl_or_b32 v8, v7, 6, v8\nv_bfe_u32 v7, v1, 4, 1\nv_lshl_or_b32 v8, v7, 5, v8\nv_and_b32 v7, 3, v1\nv_lshl_or_b32 v8, v7, 3, v8\nv_add_u32 v0, {sT0}, v8\nv_xor_b32 v11, 64, v8\nv_add_u32 v11, {sT0}, v11")
    WOFF=2048
spread(d,[ (lambda n=n: tdma(d,n)) for n in range(3,NB1)], f1)
stamp(d,1)
tr(d,'S','preB1')
d.wait_tag('stg'); d.wait_all_lgkm()
d("s_barrier")
tr(d,'S','B1')
stamp(d,2)
def addr_calc(ks):
    o=[]
    for k in ks:
        for mt in range(2):
            r=AD+4*k+2*mt
            o+=swz(r, IR+14*mt+k, r+1, sT2)+[f"v_xor_b32 v{r+1}, 16, v{r}"]
    return o
def wl(n,t):
    k=n>>1; cc=n&1; r=RING+8*(n%NR)
    d(f"buffer_load_dwordx4 v[{r+4*t}:{r+4*t+3}], v{vWo[cc]}, {sWD1}, s{sW0+k} offen offset:{WOFF*t}", tag=f'w{n}')
nl=0
f2=wb_read()+idx_read(IR,9)+idx_read(IR+14,10)
HD=76
f2+=wb_fix()+tileR(0)+addr_calc(range(0,2))+tileM(0)+addr_calc(range(2,4))+tileC(0,HD)+tileR(1)+addr_calc(range(4,6))+tileM(1)+addr_calc(range(6,8))+tileC(1,HD)
m_=int(len(f2)*FRONT)
spread(d,[ (lambda n=n: tdma(d,n)) for n in range(NB1,16)], f2[:m_], 1.0, True)
f2r=f2[m_:]
f3=f2r+tileR(2)+addr_calc(range(8,10))+tileM(2)+addr_calc(range(10,13))+tileC(2,HD)+tileW((0,1,2),HD)
spread(d,[(lambda n=n,t=t: wl(n,t)) for n in range(PRE) for t in range(2)], f3)
nl=PRE
tr(d,'S','f3')
emit(d, tileR(3)); tr(d,'S','t3R')
emit(d, tileM(3)+tileC(3,HD)+tileW((3,),HD))
d.wait_all_lgkm(); tr(d,'S','t3W')
d("s_barrier")
tr(d,'S','B3')
stamp(d,3); tr(d,'D','B3')
if PRIO_D!=PRIOD0: d(f"s_setprio {PRIO_D}")
QI = [int(x) for x in opt('--qi','0,2,4').split(',')]
AI = [int(x) for x in opt('--ai','8,10').split(',')]
BI = [int(x) for x in opt('--bi','17,18').split(',')]
vWC=5
S1=int(opt('--s1',9)); S2=int(opt('--s2',22))
d(f"v_lshlrev_b32 v{vWC}, 7, v1\ns_lshl_b32 {sT3}, {sECH}, 4")
def wcd(ldsbase, srcbase, i, npieces, nlines, tag):
    last=npieces-1; rem=nlines-64*last
    d(f"s_add_u32 {sT0}, {sWAVE}, {4*i}")
    if 4*i+3>=last:
        lo=min(rem,32); hi=max(rem-32,0)
        d(f"s_cmp_eq_u32 {sT0}, {last}\ns_cselect_b32 exec_lo, {hex((1<<lo)-1)}, -1\ns_cselect_b32 exec_hi, {hex((1<<hi)-1)}, -1\ns_cmp_gt_u32 {sT0}, {last}\ns_cselect_b32 exec_lo, 1, exec_lo\ns_cselect_b32 exec_hi, 0, exec_hi\ns_min_u32 {sT0}, {sT0}, {last}")
    d(f"s_lshl_b32 {sT1}, {sT0}, 10\ns_add_u32 m0, {sT1}, {ldsbase}\ns_lshl_b32 {sT0}, {sT0}, 13\ns_add_u32 {sT0}, {sT0}, {sT3}\ns_add_u32 {sT0}, {sT0}, {srcbase}")
    d(f"buffer_load_dwordx4 v{vWC}, {sWC}, {sT0} offen lds", tag=tag)
    if 4*i+3>=last: d("s_mov_b64 exec, -1")
sig={'w1':False,'w2':False}
def eread(n, mt):
    k=n>>1; cc=n&1; r=EF+8*(n%3)
    return f"ds_read_b128 v[{r+4*mt}:{r+4*mt+3}], v{AD+4*k+2*mt+cc}"
for n in range(2):
    for mt in range(2): d(eread(n,mt))
for n in range(PRE,PRE+POST):
    for t in range(2): wl(n,t)
nl=PRE+POST
if NOD:
    d("v_mov_b32 v10, 0"); d("s_branch L_dpre")
def transp(n):
    r=RING+8*(n%NR); f=FF+8*(n&1)
    if MODE=='v':
        dpp=[f"v_mov_b32_dpp v{TT+i}, v{r+i} row_ror:8 row_mask:0xf bank_mask:0xf bound_ctrl:0" for i in range(8)]
        def P(i0,rr): return f"v_perm_b32 v{f+4*(rr&1)+2*(rr>>1)+i0}, v{TT+4*i0+rr}, v{r+4*i0+rr}, v{vSel}"
        def S(r0,i0): return f"v_permlane16_swap_b32 v{f+4*r0+i0}, v{f+4*r0+2+i0}"
        return [[dpp[0],dpp[2],dpp[1],dpp[3],P(0,0),P(0,2)],[dpp[4],dpp[6],P(0,1),P(0,3),S(0,0)],[dpp[5],dpp[7],P(1,0),P(1,2),P(1,1)],[P(1,3),S(1,0),S(0,1),S(1,1)]]
    f=FF+8*(n%3) if False else f
    W=lambda i0: f"ds_write_b128 v4, v[{r+4*i0}:{r+4*i0+3}]"
    R=lambda i0,nt: f"ds_read_b64_tr_b16 v[{f+4*nt+2*i0}:{f+4*nt+2*i0+1}], v{11 if nt else 0}"
    return [[W(0),R(0,0),R(0,1)],[W(1),R(1,0),R(1,1)],[],[]]
d.wait_tag('w0')
for g in transp(0): emit(d,g)
W2=RING
def relg(): pass
for n in range(26):
    G = transp(n+1) if n+1<26 else [[],[],[],[]]
    f=FF+8*(n&1); e=EF+8*(n%3)
    mf=[]
    for nt in range(2):
        for mt in range(2):
            acc=ACC+16*(2*nt+mt)
            cs = "0" if n==0 else f"v[{acc}:{acc+15}]"
            mf.append(f"v_mfma_f32_32x32x16_bf16 v[{acc}:{acc+15}], v[{f+4*nt}:{f+4*nt+3}], v[{e+4*mt}:{e+4*mt+3}], {cs}")
    if n in (0,3,6,9,12,15,18,21,24): tr(d,'D',f'n{n}')
    vm=None
    idx=[i for i,(t,_) in enumerate(d.vmq) if t==f'w{n+1}']
    if idx: vm=len(d.vmq)-1-max(idx)
    need=set(('v',r) for r in list(range(e,e+8))+list(range(f,f+8)))
    li=[i for i,(t,dr) in enumerate(d.lgq) if need & set(dr)]
    d.wait(vm=vm, lg=(len(d.lgq)-1-max(li)) if li else None)
    todo=[]
    cnt=2 if (RAMP and n>=RAMP-1) else 1
    while cnt>0 and nl<26 and nl-NR<=n:
        todo+=[(nl,t) for t in range(2)]; nl+=1; cnt-=1
    for i in range(4):
        d(mf[i])
        if i<len(todo): wl(*todo[i])
        if MODE=='v':
            if i==2 and n+2<26: d(eread(n+2,0))
            if i==3 and n+2<26: d(eread(n+2,1))
            emit(d,G[i])
        else:
            emit(d,G[i])
            if i==2 and n+2<26: d(eread(n+2,0))
            if i==3 and n+2<26: d(eread(n+2,1))
        if i==3:
            if n in QI: wcd(WCB,86528,QI.index(n),11,676,'c1')
            if n in AI: wcd(WCA,0,AI.index(n),NQA,64*NQA,'c2')
            if n==BI[0]: swait(d,C_RP,4,6,7); relg()
            if n in BI: wcd(WCB,13*HR*128,BI.index(n),NQB,676-13*HR,'c2')
            if n==S1: d.wait_tag('c1'); arrive(d,C_W1,6,7); sig['w1']=True
            if n==S2: d.wait_tag('c2'); arrive(d,C_W2,6,7); sig['w2']=True
    if n==22:
        W2=RING+8*(20%NR)
        assert (21%NR)==(20%NR)+1
        if MODE=='v':
            d(f"v_lshrrev_b32 v8, 5, v1\nv_lshlrev_b32 v8, 6, v8\ns_lshl_b32 {sT0}, {sNB}, 7\ns_and_b32 {sT1}, {sWAVE}, 1\ns_lshl_b32 {sT1}, {sT1}, 2\ns_add_u32 {sT0}, {sT0}, {sT1}")
            for r in range(4): d(f"buffer_load_dwordx3 v[{W2+4*r}:{W2+4*r+2}], v8, {sWD2}, {sT0} offen offset:{16*r}")
        else:
            d(f"v_lshrrev_b32 v8, 5, v1\nv_lshlrev_b32 v8, 3, v8\ns_lshl_b32 {sT0}, {sNB}, 7\ns_and_b32 {sT1}, {sWAVE}, 1\ns_lshl_b32 {sT1}, {sT1}, 6\ns_add_u32 {sT0}, {sT0}, {sT1}")
            for g in range(4): d(f"buffer_load_dwordx2 v[{W2+2*g}:{W2+2*g+1}], v8, {sWD2}, {sT0} offen offset:{16*g}")
assert nl==26, nl
assert sig['w1']
if not sig['w2']:
    d.wait_tag('c2'); arrive(d,C_W2,6,7)
stamp(d,4); tr(d,'D','loop')
arrive(d,C_TAB)
d(f"v_lshlrev_b32 v7, 4, v1")
for cx in (1,2,3):
    d(f"s_xor_b32 {sT0}, {sWAVE}, {cx}\ns_mul_i32 {sT0}, {sT0}, 12288\ns_add_u32 {sT0}, {sT0}, {(cx-1)*4096}\nv_add_u32 v{176+cx}, {sT0}, v7")
d(f"s_mul_i32 {sT0}, {sWAVE}, 12288\nv_add_u32 v180, {sT0}, v7\nv_mov_b32 v9, {f2u(C1):#x}")
swait(d,C_TAB,8)
stamp(d,5); tr(d,'D','tab')
d(f"s_bitcmp1_b32 {sWAVE}, 0\ns_cbranch_scc1 L_dep1")
WV=140
def depi(d,P):
    for nt in range(2):
        for mt in range(2):
            cx=(P^nt)+2*mt
            if cx==0: continue
            acc=ACC+16*(2*nt+mt)
            for j in range(4): d(f"ds_write_b128 v{176+cx}, v[{acc+4*j}:{acc+4*j+3}] offset:{1024*j}")
    arrive(d,C_RED)
    for gp in range(4):
        for r in range(4):
            if MODE=='v': src=W2+4*r+2*(gp>>1); hi=gp&1
            else: src=W2+2*gp+(r>>1); hi=r&1
            d(f"v_and_b32 v{WV+4*gp+r}, 0xffff0000, v{src}" if hi else f"v_lshlrev_b32 v{WV+4*gp+r}, 16, v{src}")
    swait(d,C_RED,4)
    own=ACC+16*(2*P); RB=92
    for j in range(4):
        for k in range(3): d(f"ds_read_b128 v[{RB+16*k+4*j}:{RB+16*k+4*j+3}], v180 offset:{4096*k+1024*j}")
    for j in range(4):
        for i in range(4): d(f"v_add_f32 v{RB+4*j+i}, v{RB+4*j+i}, v{RB+16+4*j+i}")
        for i in range(4): d(f"v_add_f32 v{own+4*j+i}, v{own+4*j+i}, v{RB+32+4*j+i}")
        for i in range(4): d(f"v_add_f32 v{own+4*j+i}, v{own+4*j+i}, v{RB+4*j+i}")
    for o in gelu_ops([own+i for i in range(16)], [160+i for i in range(16)], 9): d(o)
    d(f"v_mul_f32 v10, v{own}, v{WV}\nv_mul_f32 v11, v{own+1}, v{WV+1}")
    for i in range(2,16): d(f"v_fmac_f32 v{10+(i&1)}, v{own+i}, v{WV+i}")
    d("v_add_f32 v10, v10, v11")
d0=d.fork(); d1=d.fork()
depi(d0,0); d0("s_branch L_dpre")
depi(d1,1)
d.lines += d0.lines; d.label("L_dep1"); d.lines += d1.lines
d.pos=d1.pos; d.w=d1.w; d.lgq=[]; d.vmq=[]
d.label("L_dpre")
send_addr(d)
d(f"s_and_b32 {sT2}, {sMB}, 1\ns_lshl_b32 {sT2}, {sT2}, 1\ns_lshr_b32 {sT1}, {sWAVE}, 1\ns_add_u32 {sT2}, {sT2}, {sT1}\ns_lshl_b32 {sT2}, {sT2}, 11")
d(f"s_lshl_b32 {sT1}, {sP}, 13\ns_add_u32 {sT2}, {sT2}, {sT1}\ns_lshl_b32 {sT1}, {sNB}, 7\ns_add_u32 {sT2}, {sT2}, {sT1}\ns_and_b32 {sT1}, {sWAVE}, 1\ns_lshl_b32 {sT1}, {sT1}, 6\ns_add_u32 {sT2}, {sT2}, {sT1}\ns_add_u32 {sT2}, {sT2}, 512")
swait(d,C_RDY,1,sleep=2)
stamp(d,6); tr(d,'D','epi')
send(d,sT2)
d(f"s_cmp_eq_u32 {sWAVE}, 0\ns_cbranch_scc0 L_fin")
d(f"v_lshlrev_b32 v3, 4, v1\ns_lshl_b32 {sT0}, s2, 10")
d.label("L_poll")
d._emit(f"buffer_load_dwordx4 v[12:15], v3, {sWS}, {sT0} offen sc1")
d._emit(f"s_add_u32 {sSPIN}, {sSPIN}, 64"); d._emit(f"s_cmp_ge_u32 {sSPIN}, {SPINMAX}"); d._emit("s_cbranch_scc1 L_pollx")
d._emit("s_waitcnt vmcnt(0)")
d._emit("v_max_u32 v4, v12, v13"); d._emit("v_max3_u32 v4, v4, v14, v15"); d._emit("v_cmp_eq_u32 vcc, -1, v4"); d._emit("s_nop 4"); d._emit("s_cbranch_vccnz L_poll")
d.label("L_pollx")
d._emit("s_waitcnt vmcnt(0)")
d.vmq=[]
for sh in (4,8):
    for r in range(4): d(f"v_add_f32_dpp v{12+r}, v{12+r}, v{12+r} row_ror:{sh} row_mask:0xf bank_mask:0xf bound_ctrl:0")
for sw in (16,32):
    for r in range(4): d(f"v_mov_b32 v{16+r}, v{12+r}")
    for r in range(4): d(f"v_permlane{sw}_swap_b32 v{12+r}, v{16+r}")
    for r in range(4): d(f"v_add_f32 v{12+r}, v{12+r}, v{16+r}")
d(f"v_cvt_pk_bf16_f32 v12, v12, v13\nv_cvt_pk_bf16_f32 v13, v14, v15\nv_lshlrev_b32 v3, 3, v1\ns_lshl_b32 {sT0}, s2, 5\ns_mov_b64 exec, 0xf")
d(f"buffer_store_dwordx2 v[12:13], v3, {sOUT}, {sT0} offen")
tr(d,'D','fin')
d("s_mov_b64 exec, -1\ns_branch L_fin")

c.label("L_cross")
if PRIO0: c(f"s_setprio {PRIO0}")
RE=12; RW=64; X=116; AA=180; FA=194; FB=180; T0=202; T1=218; DA=234
RT=X; A1=156; A2=164; HC=140
IA=RW; aE=168; aM=T1; aT=DA
vQ=4
g1=L(f"v_lshlrev_b32 v2, 7, v1\ns_sub_u32 {sT2}, {sWAVE}, 4")
g1+=L(f"s_mul_i32 {sT0}, {sT2}, 3328\ns_add_u32 {sT0}, {sT0}, {IDXS}\nv_add_u32 v7, {sT0}, v7")
g1+=L("v_lshrrev_b32 v8, 3, v5\nv_bfe_u32 v9, v5, 2, 1\nv_and_b32 v10, 3, v5")
g1+=L("v_lshl_add_u32 v11, v8, 2, v10\nv_lshl_add_u32 v3, v9, 3, v11")
g1+=L(f"v_mul_u32_u24 v250, 169, v6\nv_add_u32 v250, v250, v3\nv_lshlrev_b32 v250, 1, v250\nv_add_u32 v250, {SE1S}, v250")
g1+=L(f"v_cmp_gt_u32 vcc, 13, v3\nv_cmp_gt_u32 {sMK}, 16, v5\ns_and_b64 vcc, vcc, {sMK}\nv_mov_b32 v3, {SE1S+680}\nv_cndmask_b32 v250, v3, v250, vcc")
g1+=L(f"v_mul_u32_u24 v3, 13, v9\nv_add_u32 v3, v3, v11\nv_mul_u32_u24 v8, 208, v6\nv_add_u32 v9, v8, v3\nv_lshlrev_b32 v9, 1, v9\nv_add_u32 v9, {SE2S}, v9")
g1+=L(f"v_min_u32 v3, 25, v3\nv_mul_u32_u24 v3, 416, v3\nv_add_u32 v3, v3, v8")
g1+=L(f"v_cmp_gt_u32 vcc, {HR*208}, v3\nv_mov_b32 v10, {WCB-HR*208}\nv_mov_b32 v11, {WCA}\nv_cndmask_b32 v10, v10, v11, vcc\nv_add_u32 v{vQ}, v10, v3\nv_add_u32 v3, {WCB}, v3")
g1+=L(f"v_mov_b32 v{A1+7}, 0\ns_lshl_b32 {sT3}, {sECH}, 4\ns_lshl_b32 {sT0}, {sP}, 3\nv_mov_b32 v254, {sT0}")
g1+=L(f"s_sub_u32 s80, {sWAVE}, 5\ns_lshl_b32 s78, s80, 10\ns_lshl_b32 s77, s80, 13\ns_add_u32 s77, s77, {sT3}")
g1+=L(f"s_mov_b32 {sSELZ[0]}, 0x0c0c0100\ns_mov_b32 {sSELZ[1]}, 0x0c0c0302\ns_mov_b32 {sTWc}, {TW}\ns_mov_b32 {sTMc}, {TM}")
spread(c,[ (lambda n=n: tdma(c,n)) for n in range(3,NB1)], g1)
tr(c,'T','preB1')
c.wait_tag('stg'); c.wait_all_lgkm()
c("s_barrier")
tr(c,'T','B1')
def caddr(js):
    o=[]
    for j in js:
        r=IA+j
        o+=swz(aE+j, r, 0, sT3)+L(f"v_lshl_add_u32 v{aT+j}, v{r}, 4, {sTWc}\nv_lshl_add_u32 v{aM+j}, v{r}, 1, {sTMc}")
    return o
def w4(c, fn, name, cond="scc0"):
    c(f"s_cmp_eq_u32 {sWAVE}, 4\ns_cbranch_{cond} L_{name}")
    lg=list(c.lgq)
    fn()
    c.lgq=lg
    c.label(f"L_{name}")
def clr():
    for r in range(4): c._emit(f"v_mov_b32 v{vF+r}, -1")
    c._emit(f"s_lshl_b32 {sT0}, s2, 10"); c._emit(f"v_lshlrev_b32 v5, 4, v1")
    c._emit(f"buffer_store_dwordx4 v[{vF}:{vF+3}], v5, {sWS}, {sT0} offen sc1")
    c._emit(f"s_lshl_b32 {sT0}, s2, 5"); c._emit(f"v_mov_b32 v6, 0")
    c._emit(f"buffer_load_dword v255, v6, {sOUT}, {sT0} offen"); c._emit("s_nop 1")
def wc_dma(ldsbase, srcbase, i, npieces, tag):
    if 3*i+2 <= npieces-1:
        c(f"s_add_u32 {sT1}, s78, {ldsbase+3072*i}\ns_mov_b32 m0, {sT1}\ns_add_u32 {sT0}, s77, {srcbase+24576*i}")
    else:
        c(f"s_add_u32 {sT0}, s80, {3*i}\ns_min_u32 {sT0}, {sT0}, {npieces-1}\ns_lshl_b32 {sT1}, {sT0}, 10\ns_add_u32 {sT1}, {sT1}, {ldsbase}\ns_mov_b32 m0, {sT1}")
        c(f"s_lshl_b32 {sT0}, {sT0}, 13\ns_add_u32 {sT0}, {sT0}, {sT3}\ns_add_u32 {sT0}, {sT0}, {srcbase}")
    c(f"buffer_load_dwordx4 v2, {sWC}, {sT0} offen lds", tag=tag)
g2=wb_read()+idx_read(IA,7)
g2+=[f"ds_read_u16 v{(RE+t) if t<12 else (A1+6)}, v250 offset:{26*t}" for t in range(13)]
g2+=[f"ds_read_u16 v{RE+12+t}, v9 offset:{52*t}" for t in range(8)]
g2+=wb_fix()+tileR(0)+caddr(range(0,3))+tileM(0)+caddr(range(3,6))+tileC(0,HC)+tileR(1)+caddr(range(6,9))+tileM(1)+caddr(range(9,13))+tileC(1,HC)
spread(c,[ (lambda n=n: tdma(c,n)) for n in range(NB1,16)], g2, FRONT, True)
emit(c, tileR(2))
for t in range(6): c(f"v_lshl_or_b32 v{A1+t}, v{RE+2*t+1}, 16, v{RE+2*t}")
emit(c, tileM(2))
for t in range(4): c(f"v_lshl_or_b32 v{A2+t}, v{RE+12+2*t+1}, 16, v{RE+12+2*t}")
emit(c, tileC(2,HC)+tileW((0,1,2),HC))
tr(c,'T','g3')
emit(c, tileR(3)); tr(c,'T','t3R')
emit(c, tileM(3)+tileC(3,HC)+tileW((3,),HC))
c.wait_all_lgkm(); tr(c,'T','t3W')
c("s_barrier")
tr(c,'T','B3')
stamp(c,3); tr(c,'C','B3')
if PRIO_C!=PRIO0: c(f"s_setprio {PRIO_C}")
def rdy():
    c._emit("s_waitcnt vmcnt(0)")
    c._emit(f"v_mov_b32 v6, 1"); c._emit(f"s_lshl_b32 {sT0}, {sP}, 3"); c._emit(f"v_mov_b32 v5, {sT0}"); c._emit("s_mov_b64 exec, 1")
    c._emit(f"buffer_atomic_add v6, v5, {sDBG}, 0 offen"); c._emit("s_mov_b64 exec, -1")
def rdyissue():
    c._emit(f"buffer_load_dword v253, v254, {sDBG}, 0 offen sc1")
def rdycheck(sfx=""):
    c._emit("s_branch L_chkr"+sfx)
    c.label("L_chk"+sfx)
    c._emit(f"buffer_load_dword v253, v254, {sDBG}, 0 offen sc1")
    c.label("L_chkr"+sfx)
    c._emit("s_waitcnt vmcnt(0)")
    c._emit(f"v_readfirstlane_b32 s100, v253"); c._emit(f"s_add_u32 {sSPIN}, {sSPIN}, 64"); c._emit(f"s_cmp_ge_u32 {sSPIN}, {SPINMAX}"); c._emit("s_cbranch_scc1 L_chkx"+sfx)
    c._emit(f"s_cmp_ge_u32 s100, 8"); c._emit("s_cbranch_scc1 L_chkx"+sfx); c._emit("s_sleep 16"); c._emit("s_branch L_chk"+sfx)
    c.label("L_chkx"+sfx)
    c._emit(f"v_mov_b32 v5, {SYNC+4*C_RDY}"); c._emit("v_mov_b32 v6, 1"); c._emit("ds_write_b32 v5, v6"); c._emit("s_waitcnt lgkmcnt(0)")
def cslot():
    c(f"s_lshl_b32 s79, {sT2}, 11\ns_lshl_b32 {sT1}, {sP}, 13\ns_add_u32 s79, s79, {sT1}\ns_lshl_b32 {sT1}, {sG8}, 6\ns_add_u32 s79, s79, {sT1}")
if NOC:
    arrive(c,C_TAB); w4(c,rdy,"rdyn"); c("s_sleep 64"); w4(c,lambda: (rdyissue(), rdycheck("n")),"nchk"); cslot(); send_addr(c); swait(c,C_RDY,1,sleep=32); c("v_mov_b32 v10, 0"); c("s_branch L_csend")
Z=FA; G=FB
ZR=[RW+j for j in range(12)]+[Z+6]
for j in range(13): c(f"ds_read_u16 v{ZR[j]}, v{aM+j}", tag='z')
w4(c, clr, "clr")
c(f"v_mov_b32 v{Z+7}, 0\nv_mov_b32 v9, {f2u(C1):#x}")
EG=[f"ds_read_b128 v[{RE+4*j}:{RE+4*j+3}], v{aE+j}" for j in range(13)]
emit(c, EG[:2])
tr(c,'C','zg')
cslot(); send_addr(c)
for t in range(6): c(f"v_lshl_or_b32 v{Z+t}, v{RW+2*t+1}, 16, v{RW+2*t}")
c(f"v_mfma_f32_32x32x16_bf16 v[{T0}:{T0+15}], v[{A1}:{A1+3}], v[{Z}:{Z+3}], 0")
c(f"v_mfma_f32_32x32x16_bf16 v[{T0}:{T0+15}], v[{A1+4}:{A1+7}], v[{Z+4}:{Z+7}], v[{T0}:{T0+15}]")
emit(c, EG[2:8])
go=gelu_ops([T0+i for i in range(8)],[RW+i for i in range(8)],9)
for i,o in enumerate(go):
    c(o)
    if i in (8,16,24,32,40): c(EG[8+i//8-1])
arrive(c,C_TAB)
for i in range(4): c(f"v_cvt_pk_bf16_f32 v{G+i}, v{T0+2*i}, v{T0+2*i+1}")
c(f"v_mfma_f32_32x32x16_bf16 v[{T1}:{T1+15}], v[{A2}:{A2+3}], v[{G}:{G+3}], 0")
w4(c, rdy, "rdy")
for e_ in range(8): c(f"v_mov_b32 v{X+8*e_+7}, 0")
for j in range(13): c(f"v_mul_f32 v{AA+j}, {f2u(-1.4426950409):#x}, v{T1+j}")
for j in range(13): c(f"v_exp_f32 v{AA+j}, v{AA+j}")
for j in range(13): c(f"v_add_f32 v{AA+j}, 1.0, v{AA+j}")
for j in range(13): c(f"v_rcp_f32 v{AA+j}, v{AA+j}")
stamp(c,2); tr(c,'C','senet')
def read_rw(vb, j): return f"ds_read_b128 v[{RW+4*j}:{RW+4*j+3}], v{vb} offset:{16*j}"
def perm_frag(F, R, e):
    wi=e>>1; hs=e&1
    o=[f"v_perm_b32 v{F+pp}, v{R+4*(2*pp+1)+wi}, v{R+4*(2*pp)+wi}, {sSEL[hs]}" for pp in range(6)]
    return o+[f"v_perm_b32 v{F+6}, v{R+48+wi}, v{R+48+wi}, {sSELZ[hs]}"]
def v_frag(e):
    wi=e>>1; o=[]; F=X+8*e
    for j in range(13):
        t=T0+j
        o.append(f"v_and_b32 v{t}, 0xffff0000, v{RE+4*j+wi}" if e&1 else f"v_lshlrev_b32 v{t}, 16, v{RE+4*j+wi}")
    for j in range(13): o.append(f"v_mul_f32 v{T0+j}, v{T0+j}, v{AA+j}")
    for j in range(0,12,2): o.append(f"v_cvt_pk_bf16_f32 v{F+(j>>1)}, v{T0+j}, v{T0+j+1}")
    o.append(f"v_cvt_pk_bf16_f32 v{F+6}, v{T0+12}, 0")
    return o
VW=int(opt('--vw',6))
for e_ in range(VW): emit(c, v_frag(e_))
tr(c,'C','vf4')
w4(c, rdyissue, "rdi")
swait(c,C_W1,4)
stamp(c,4); tr(c,'C','w1all')
for j in range(13): c(read_rw(3,j))
arrive(c,C_RP)
for e_ in range(VW,8): emit(c, v_frag(e_))
w4(c, rdycheck, "nochk")
tr(c,'C','vf8')
def mm(T, B):
    return [f"v_mfma_f32_32x32x16_bf16 v[{T}:{T+15}], v[{FA}:{FA+3}], v[{B}:{B+3}], 0",
            f"v_mfma_f32_32x32x16_bf16 v[{T}:{T+15}], v[{FA+4}:{FA+7}], v[{B+4}:{B+7}], v[{T}:{T+15}]"]
def pack1(wi, q, ii):
    o=[f"v_mul_f32 v{T0+ii}, v{T0+ii}, v{AA+ii}", f"v_mul_f32 v{T1+ii}, v{T1+ii}, v{AA+ii}"] if q else []
    return o+[f"v_cvt_pk_bf16_f32 v{RW+4*ii+wi}, v{T0+ii}, v{T1+ii}"]
def diag1(ii, first): return f"v_mfma_f32_32x32x16_bf16 v[{DA}:{DA+15}], v[{RT+4*ii}:{RT+4*ii+3}], v[{RW+4*ii}:{RW+4*ii+3}], {'0' if (first and ii==0) else f'v[{DA}:{DA+15}]'}"
def rtg(j): return f"ds_read_b128 v[{RT+4*j}:{RT+4*j+3}], v{aT+j}"
c(f"v_mov_b32 v{FA+7}, 0")
emit(c, perm_frag(FA,RW,0))
for wi in range(4):
    e0,e1=2*wi,2*wi+1
    emit(c, mm(T0,X+8*e0)); emit(c, perm_frag(FA,RW,e1))
    for j in (2*e0,2*e0+1):
        if j<13: c(rtg(j))
    emit(c, mm(T1,X+8*e1))
    for j in (2*e1,2*e1+1):
        if j<13: c(rtg(j))
    if wi<3:
        emit(c, perm_frag(FA,RW,e0+2))
        for ii in range(13): c(pack1(wi,True,ii)[0])
        for ii in range(13): emit(c, pack1(wi,True,ii)[1:])
    else:
        tr(c,'C','qmm')
        for ii in range(13): c(pack1(wi,True,ii)[0])
        swait(c,C_W2,4); tr(c,'C','w2all')
        pk=[pack1(wi,True,ii)[1:] for ii in range(13)]
        emit(c, pk[0]);
        for ii in range(13):
            if ii+1<13: emit(c, pk[ii+1])
            else: c(f"v_mov_b32 v{FB+7}, 0\ns_nop 0")
            c(diag1(ii,True))
            if ii>0: c(read_rw(vQ,ii-1))
        c(read_rw(vQ,12))
stamp(c,5); tr(c,'C','diagq')
emit(c, perm_frag(FB,RE,0)); emit(c, perm_frag(FA,RW,0))
for wi in range(4):
    e0,e1=2*wi,2*wi+1
    emit(c, mm(T0,FB)); emit(c, perm_frag(FA,RW,e1)+perm_frag(FB,RE,e1)); emit(c, mm(T1,FB))
    if wi<3:
        emit(c, perm_frag(FA,RW,e0+2)+perm_frag(FB,RE,e0+2))
        for ii in range(13): emit(c, pack1(wi,False,ii))
    else:
        swait(c,C_RDY,1)
        c("s_mov_b32 s82, 0xaaaaaaaa\ns_mov_b32 s83, 0xaaaaaaaa\ns_mov_b32 s84, 0xcccccccc\ns_mov_b32 s85, 0xcccccccc\ns_mov_b32 s72, 0xff00ff00\ns_mov_b32 s73, 0xff00ff00\ns_mov_b32 s74, 0xffff0000\ns_mov_b32 s75, 0xffff0000\ns_mov_b32 s76, 0x0f0f0f0f\ns_mov_b32 s77, 0xf0f0f0f0")
        emit(c, pack1(wi,False,0)+pack1(wi,False,1)+pack1(wi,False,2))
        for ii in range(13):
            if ii+3<13: emit(c, pack1(wi,False,ii+3))
            c(diag1(ii,False))
for i in range(8): c(f"v_cndmask_b32 v{DA+2*i}, v{DA+2*i}, v{DA+2*i+1}, s[82:83]")
for i in range(4): c(f"v_cndmask_b32 v{DA+4*i}, v{DA+4*i}, v{DA+4*i+2}, s[84:85]")
for i in range(2): c(f"v_cndmask_b32 v{DA+8*i}, v{DA+8*i}, v{DA+8*i+4}, s[72:73]")
c(f"v_cndmask_b32 v{DA}, v{DA}, v{DA+8}, s[74:75]")
c(f"v_cndmask_b32 v10, 0, v{DA}, s[76:77]")
c.label("L_csend")
tr(c,'C','end')
stamp(c,6)
send(c,"s79")
e=c
e.label("L_fin")
if TRACE:
    e._emit("s_memrealtime s[100:101]"); e._emit("s_waitcnt lgkmcnt(0)")
    e._emit(f"s_cmp_eq_u32 {sWAVE}, {0 if TRACE in ('D','S') else SW}"); e._emit("s_cbranch_scc0 L_end")
    e._emit("v_mov_b32 v16, s92"); e._emit("v_mov_b32 v17, s100")
    for i in range(14): e._emit(f"s_sub_u32 s{TRREG[i]}, s{TRREG[i]}, s86"); e._emit(f"v_mov_b32 v{18+i}, s{TRREG[i]}")
    e._emit(f"s_lshl_b32 {sT0}, s2, 6"); e._emit(f"s_add_u32 {sT0}, {sT0}, 0x8000000"); e._emit("v_mov_b32 v3, 0"); e._emit("s_mov_b64 exec, 1")
    for i in range(4): e._emit(f"buffer_store_dwordx4 v[{16+4*i}:{19+4*i}], v3, {sWS}, {sT0} offen offset:{16*i}")
    sys.stderr.write(" ".join(f"{i+2}:{n}" for i,n in enumerate(trn[TRACE]))+"\n")
elif STAMP:
    e._emit(f"s_memtime s[70:71]"); e._emit("s_memrealtime s[100:101]"); e._emit("s_waitcnt lgkmcnt(0)")
    e._emit(f"s_cmp_eq_u32 {sWAVE}, 0"); e._emit(f"s_cselect_b32 {sT0}, 1, 0"); e._emit(f"s_cmp_eq_u32 {sWAVE}, {SW}"); e._emit(f"s_cselect_b32 {sT1}, 1, 0"); e._emit(f"s_or_b32 {sT0}, {sT0}, {sT1}"); e._emit("s_cbranch_scc0 L_end")
    for i in range(1,8): e._emit(f"s_sub_u32 s{STR[i]}, s{STR[i]}, s86")
    e._emit("v_mov_b32 v16, s92"); e._emit("v_mov_b32 v17, s100")
    for i in range(1,8): e._emit(f"v_mov_b32 v{17+i}, s{STR[i]}")
    e._emit(f"s_lshl_b32 {sT0}, s2, 6"); e._emit(f"s_add_u32 {sT0}, {sT0}, 0x8000000")
    e._emit("v_mov_b32 v3, 0"); e._emit("s_mov_b64 exec, 1")
    e._emit(f"s_cmp_eq_u32 {sWAVE}, 0"); e._emit("s_cbranch_scc0 L_st4b")
    e._emit(f"buffer_store_dwordx4 v[16:19], v3, {sWS}, {sT0} offen"); e._emit(f"buffer_store_dwordx4 v[20:23], v3, {sWS}, {sT0} offen offset:16"); e._emit(f"buffer_store_dword v24, v3, {sWS}, {sT0} offen offset:32")
    e._emit("s_branch L_end")
    e.label("L_st4b")
    e._emit(f"buffer_store_dwordx4 v[18:21], v3, {sWS}, {sT0} offen offset:36"); e._emit(f"buffer_store_dwordx3 v[22:24], v3, {sWS}, {sT0} offen offset:52")
e.label("L_end")
e._emit("s_endpgm")
out = d.text() + "\n" + c.text() + f"""
.section .rodata,"a"
.p2align 6
.amdhsa_kernel {NAME}
  .amdhsa_next_free_vgpr 256
  .amdhsa_next_free_sgpr 102
  .amdhsa_accum_offset 256
  .amdhsa_group_segment_fixed_size 0
  .amdhsa_kernarg_size 88
  .amdhsa_user_sgpr_count 2
  .amdhsa_user_sgpr_kernarg_segment_ptr 1
  .amdhsa_system_sgpr_workgroup_id_x 1
.end_amdhsa_kernel
"""
print(out)
sys.stderr.write(f"nops D {d.nops} C {c.nops}\n")
```

```python
import sys, struct
from asmlib import Asm
def opt(name, default=None):
    if name in sys.argv:
        return sys.argv[sys.argv.index(name)+1]
    return default
STAMP = '--stamp' in sys.argv
SW = int(opt('--sw', 5))
PRIO_D = int(opt('--prioD', 0)); PRIO_C = int(opt('--prioC', 0))
PRE = int(opt('--pre', 0))
NB1 = int(opt('--nb1', 4))
RAMP = int(opt('--ramp', 1))
FRONT = float(opt('--front', 0.6))
MODE = opt('--mode','v')
NR = int(opt('--nr', 10))
PRIO0 = int(opt('--prio0', 1))
NOROT = '--norot' in sys.argv
NOC = '--noC' in sys.argv; NOD = '--noD' in sys.argv
NAME = "standalone__deep_cross_fibinet__recsys_kernel"
def f2u(x): return struct.unpack('<I', struct.pack('<f', x))[0]

TW=128000; TM=144000; XR=146000
IDXS=XR; WBIS=XR+13312; SE1S=WBIS+1024; SE2S=SE1S+1024
WCB=XR; WCA=XR+11264; SYNC=163776
NQA = 6 if MODE=='v' else 2
HR = (NQA*64)//13
NQB = (676-13*HR+63)//64
SCR = WCA+NQA*1024
assert WCA+NQA*1024+(0 if MODE=='v' else 4096)<=SYNC and SE2S+1024<=SYNC
LDS_BYTES=163840
sIDX,sTABL,sSE1,sSE2,sWBI,sWC,sWD1,sWD2,sOUT,sDBG,sWS = [f"s[{4+4*i}:{7+4*i}]" for i in range(11)]
SRD_SIZES=[425984,128000,676,676,8192,173056,851968,512,8192,256,0x10000000]
sWAVE,sNB,sMB,sROT,sECH,sP,sG8,sT0,sT1,sT2,sT3,sSPIN = [f"s{i}" for i in range(48,60)]
sMK="s[98:99]"; sFL="s3"
sW0=73
sSEL=["s60","s61"]; sSELZ=["s73","s74"]; sTWc="s75"; sTMc="s76"
STR=[86,88,90,62,64,66,68,70]
sTL=["s94","s95","s96","s97"]
SPINMAX="0x40000"
C_W1,C_RP,C_W2,C_TAB,C_RED,C_RDY,C_TW,C_STG = range(8)
PF = int(opt('--pf',1))
EARLY = int(opt('--early',2))
PRIOD0 = int(opt('--priod0',2))
POST = int(opt('--post',3))
TRACE = opt('--trace','')
TRREG = [4,6,8,10,12,14,16,18,20,22,88,90,62,64]
trn = {'D':[], 'C':[], 'S':[], 'T':[]}
if TRACE in ('S','T'): TRREG=[62,64,66,68,70,88,90,82,84,62,62,62,62,62]
def tr(a, role, name):
    if TRACE==role and len(trn[role])<14:
        r=TRREG[len(trn[role])]; trn[role].append(name); a._emit(f"s_memtime s[{r}:{r+1}]")
DBG0 = '--dbg0' in sys.argv
def stamp0(a, i):
    if DBG0: a._emit(f"s_memtime s[{STR[i]}:{STR[i]+1}]")
def stamp(a, i):
    if STAMP and not TRACE and not (DBG0 and i in (1,2,4,5,6)): a._emit(f"s_memtime s[{STR[i]}:{STR[i]+1}]")
def L(text): return [x.strip() for x in text.split('\n') if x.strip()]

a = Asm()
a.raw(f"; @launch grid=(256,1,1) block=(512,1,1) lds={LDS_BYTES}")
a.raw('.amdgcn_target "amdgcn-amd-amdhsa--gfx950"')
a.raw(f".text\n.globl {NAME}\n.p2align 8\n.type {NAME},@function\n{NAME}:")
if STAMP:
    a._emit("s_memrealtime s[92:93]"); a._emit(f"s_memtime s[86:87]")
a("s_cmp_ge_u32 s2, 256\ns_cbranch_scc1 L_end")
order=[0,1,4,2,3,6,5,10,8,7,9]
for i in order: a._emit(f"s_load_dwordx2 s[{4+4*i}:{5+4*i}], s[0:1], {8*i}")
a("v_lshrrev_b32 v2, 6, v0\nv_and_b32 v1, 63, v0")
a(f"v_readfirstlane_b32 {sWAVE}, v2")
for i in range(11):
    a(f"s_mov_b32 s{6+4*i}, {SRD_SIZES[i]}\ns_mov_b32 s{7+4*i}, 0x20000")
a(f"s_and_b32 {sNB}, s2, 3\ns_lshr_b32 {sMB}, s2, 2\ns_lshr_b32 {sROT}, s2, 3\ns_lshr_b32 {sP}, s2, 3\ns_and_b32 {sG8}, s2, 7")
a(f"s_and_b32 {sT0}, {sMB}, 1\ns_lshl_b32 {sECH}, {sNB}, 1\ns_add_u32 {sECH}, {sECH}, {sT0}\ns_mov_b32 {sSPIN}, 0")
vL16=92; vT0=93; vTa=94; vTb=95; vB0=96; vTWa=97; vTMa=98; vX=99; vY=100; vC=101; vM=102; vZ=103
WB=104; BF=112; DD=128; vF=136
a(f"v_lshlrev_b32 v{vL16}, 4, v1")
a(f"v_and_b32 v{vX}, 7, v1\nv_lshrrev_b32 v{vY}, 4, v1\nv_xor_b32 v{vX}, v{vX}, v{vY}\nv_lshlrev_b32 v{vX}, 4, v{vX}")
a(f"v_lshrrev_b32 v{vY}, 3, v1\nv_lshl_or_b32 v{vT0}, v{vY}, 7, v{vX}")
a(f"v_lshlrev_b32 v{vX}, 7, v1")
a(f"s_add_u32 {sT0}, {sWAVE}, {sROT}")
for k in range(4):
    a(f"s_add_u32 {sTL[k]}, {sT0}, {8*k}\ns_and_b32 {sTL[k]}, {sTL[k]}, 31\ns_lshl_b32 {sTL[k]}, {sTL[k]}, 12\ns_min_u32 {sTL[k]}, {sTL[k]}, {121*1024}")
a(f"s_mul_i32 {sT1}, {sP}, 13312\ns_lshl_b32 {sT0}, {sWAVE}, 11\ns_add_u32 {sT2}, {sT0}, {IDXS}\ns_add_u32 {sT0}, {sT1}, {sT0}\ns_mov_b32 m0, {sT2}")
def tile_pre(k):
    return L(f"s_lshr_b32 {sFL}, {sTL[k]}, 4\ns_and_b32 {sFL}, {sFL}, 64\nv_xor_b32 v{vTa}, {sFL}, v{vT0}\nv_xor_b32 v{vTb}, 64, v{vTa}")
for o in tile_pre(0): a(o)
a._emit("s_waitcnt lgkmcnt(0)")
CAL=int(opt('--cal',0))
if CAL:
    a._emit(f"s_mul_i32 s60, {sROT}, {52*512}"); a._emit(f"s_lshl_b32 s61, {sNB}, 7"); a._emit(f"s_add_u32 s60, s60, s61")
    a._emit(f"v_lshlrev_b32 v9, 9, v1")
    a._emit(f"buffer_load_dword v254, v9, {sWD1}, s60 offen")
    a._emit(f"s_mul_i32 s60, {sROT}, {43*128}"); a._emit(f"buffer_load_dword v253, v{vX}, {sWC}, s60 offen")
    a._emit(f"s_mul_i32 s60, {sROT}, {32*128}"); a._emit(f"buffer_load_dword v252, v{vX}, {sTABL}, s60 offen")
    a._emit(f"buffer_load_dword v251, v{vX}, {sIDX}, {sT1} offen"); a._emit(f"s_add_u32 s60, {sT1}, 8192"); a._emit(f"buffer_load_dword v250, v{vX}, {sIDX}, s60 offen")
    a._emit(f"buffer_load_dword v249, v{vX}, {sWBI}, 0 offen"); a._emit(f"buffer_load_dword v248, v{vX}, {sSE1}, 0 offen"); a._emit(f"buffer_load_dword v247, v{vX}, {sSE2}, 0 offen"); a._emit(f"buffer_load_dword v246, v{vX}, {sWD2}, 0 offen")
    a._emit(f"buffer_load_dword v245, v{vX}, {sOUT}, 0 offen"); a._emit(f"buffer_load_dword v244, v{vX}, {sDBG}, 0 offen"); a._emit(f"s_lshl_b32 s60, s2, 10"); a._emit(f"buffer_load_dword v243, v{vL16}, {sWS}, s60 offen")
    for _ in range(CAL): a._emit("s_sleep 64")
    a._emit("s_waitcnt vmcnt(0)")
a(f"s_cmp_ge_u32 {sWAVE}, 6")
a("s_cbranch_scc1 L_stg67")
a(f"buffer_load_dwordx4 v{vL16}, {sIDX}, {sT0} offen lds", tag='stg')
a(f"buffer_load_dwordx4 v{vL16}, {sIDX}, {sT0} offen offset:1024 lds", tag='stg')
a("s_branch L_stgdone")
a.label("L_stg67")
a(f"s_cmp_eq_u32 {sWAVE}, 7\ns_cbranch_scc1 L_stg7")
a._emit(f"buffer_load_dwordx4 v{vL16}, {sIDX}, {sT0} offen lds")
a._emit(f"s_lshl_b32 {sT0}, {sECH}, 4"); a._emit(f"s_mov_b32 m0, {WBIS}"); a._emit("s_nop 0")
a._emit(f"buffer_load_dwordx4 v{vX}, {sWBI}, {sT0} offen lds")
a._emit("s_branch L_stgdone")
a.label("L_stg7")
a._emit(f"s_mov_b32 m0, {SE1S}"); a._emit("s_nop 0")
a._emit(f"buffer_load_dwordx4 v{vL16}, {sSE1}, 0 offen lds")
a._emit(f"s_mov_b32 m0, {SE2S}"); a._emit("s_nop 0")
a._emit(f"buffer_load_dwordx4 v{vL16}, {sSE2}, 0 offen lds")
a.label("L_stgdone")
def tdma(a, n):
    k=n>>2; q=n&3
    if q==0:
        if k>0:
            for o in tile_pre(k): a(o)
        a(f"s_mov_b32 m0, {sTL[k]}")
    a(f"buffer_load_dwordx4 v{vTb if q&1 else vTa}, {sTABL}, {sTL[k]} offen offset:{1024*q} lds", tag=f'tile{k}')
if PF:
    a(f"s_cmp_lt_u32 {sWAVE}, 2\ns_cbranch_scc0 L_nopf")
    a._emit(f"s_cmp_eq_u32 {sWAVE}, 0"); a._emit("s_cbranch_scc0 L_pf1")
    a._emit(f"s_mul_i32 {sT0}, {sROT}, {52*512}"); a._emit(f"s_lshl_b32 {sT1}, {sNB}, 7"); a._emit(f"s_add_u32 {sT0}, {sT0}, {sT1}")
    a._emit(f"v_lshlrev_b32 v9, 9, v1"); a._emit("s_mov_b32 exec_hi, 0xfffff")
    a._emit(f"buffer_load_dword v254, v9, {sWD1}, {sT0} offen"); a._emit("s_mov_b64 exec, -1"); a._emit("s_branch L_pfd")
    a.label("L_pf1")
    a._emit(f"s_mul_i32 {sT0}, {sROT}, {43*128}"); a._emit("s_mov_b32 exec_hi, 0x7ff")
    a._emit(f"buffer_load_dword v254, v{vX}, {sWC}, {sT0} offen"); a._emit("s_mov_b64 exec, -1"); a._emit("s_branch L_pfd")
    a.label("L_nopf")
    a.label("L_pfd")
tdma(a,0); tdma(a,1)
a(f"v_mov_b32 v{vX}, {SYNC}\nv_mov_b32 v{vC}, 0\nv_mov_b32 v{vM}, 0")
for o in range(0,32,8): a(f"ds_write2_b32 v{vX}, v{vC}, v{vM} offset0:{o//4} offset1:{o//4+1}")
a(f"v_and_b32 v{vM}, 15, v1\nv_lshrrev_b32 v{vY}, 4, v1\nv_lshrrev_b32 v{vC}, 1, v{vM}\nv_xor_b32 v{vC}, v{vC}, v{vY}\nv_lshlrev_b32 v{vC}, 4, v{vC}")
a(f"v_lshl_or_b32 v{vB0}, v{vM}, 7, v{vC}")
a(f"v_lshrrev_b32 v{vX}, 5, v1\nv_lshl_add_u32 v{vX}, v{vX}, 4, v{vM}\nv_lshlrev_b32 v{vTMa}, 1, v{vX}\nv_add_u32 v{vTMa}, {TM}, v{vTMa}")
a(f"v_lshlrev_b32 v{vX}, 1, v{vX}\nv_bfe_u32 v{vTWa}, v1, 4, 1\nv_add_lshl_u32 v{vTWa}, v{vX}, v{vTWa}, 3\nv_add_u32 v{vTWa}, {TW}, v{vTWa}")
tdma(a,2)
a(f"v_lshrrev_b32 v{vC}, 2, v{vM}\nv_lshl_add_u32 v{vC}, v{vY}, 3, v{vC}\nv_lshlrev_b32 v{vC}, 4, v{vC}\nv_and_b32 v{vX}, 1, v1\nv_lshl_add_u32 v{vC}, v{vX}, 3, v{vC}\nv_add_u32 v{vC}, {WBIS}, v{vC}")
a(f"v_and_b32 v5, 31, v1\nv_lshrrev_b32 v6, 5, v1\nv_mul_u32_u24 v7, 104, v5\nv_mul_u32_u24 v8, 52, v6\nv_add_u32 v7, v7, v8\nv_mov_b32 v{vZ}, 0x70")
a(f"s_mov_b32 {sSEL[0]}, 0x05040100\ns_mov_b32 {sSEL[1]}, 0x07060302")
a(f"s_cmp_ge_u32 {sWAVE}, 4\ns_cbranch_scc1 L_cross")

def wb_read():
    return [f"ds_read_b64_tr_b16 v[{WB+4*s+2*hf}:{WB+4*s+2*hf+1}], v{vC} offset:{s*512+hf*64}" for s in range(2) for hf in range(2)]
def wb_fix():
    o=L(f"v_cmp_gt_u32 {sMK}, 8, v{vM}\nv_cmp_eq_u32 vcc, 8, v{vM}\nv_mov_b32 v{vY}, 0x3c803c80\nv_cndmask_b32 v{vY}, 0, v{vY}, vcc")
    return o+[f"v_cndmask_b32 v{WB+r}, v{vY}, v{WB+r}, {sMK}" for r in range(8)]
def idx_read(dst, vb):
    o=[f"ds_read2_b32 v[{dst+2*i}:{dst+2*i+1}], v{vb} offset0:{2*i} offset1:{2*i+1}" for i in range(6)]
    return o+[f"ds_read_b32 v{dst+12}, v{vb} offset:48"]
XP = opt('--xp','')
def tileR(k):
    if 'R' in XP: return [('WT',f'tile{k}')]
    o=L(f"s_lshr_b32 {sT0}, {sTL[k]}, 4\ns_and_b32 {sT0}, {sT0}, 64\nv_xor_b32 v{vX}, {sT0}, v{vB0}\nv_add_u32 v{vX}, {sTL[k]}, v{vX}\nv_xor_b32 v{vY}, 64, v{vX}")
    o.append(('WT',f'tile{k}'))
    for sub in range(2):
        o.append(f"ds_read_b128 v[{BF+8*sub}:{BF+8*sub+3}], v{vX} offset:{sub*2048}")
        o.append(f"ds_read_b128 v[{BF+8*sub+4}:{BF+8*sub+7}], v{vY} offset:{sub*2048}")
    return o
def tileM(k):
    o=[f"v_mfma_f32_16x16x32_bf16 v[{DD+4*sub}:{DD+4*sub+3}], v[{WB}:{WB+3}], v[{BF+8*sub}:{BF+8*sub+3}], 0" for sub in range(2)]
    o+=[f"v_mfma_f32_16x16x32_bf16 v[{DD+4*sub}:{DD+4*sub+3}], v[{WB+4}:{WB+7}], v[{BF+8*sub+4}:{BF+8*sub+7}], v[{DD+4*sub}:{DD+4*sub+3}]" for sub in range(2)]
    return o
def tileC(k, H):
    h=H+4*k
    o=L(f"v_cvt_pk_bf16_f32 v{h}, v{DD}, v{DD+1}\nv_cvt_pk_bf16_f32 v{h+2}, v{DD+4}, v{DD+5}\nv_cvt_pk_bf16_f32 v{h+1}, v{DD+2}, v{DD+3}\nv_cvt_pk_bf16_f32 v{h+3}, v{DD+6}, v{DD+7}")
    return o+L(f"v_permlane32_swap_b32 v{h}, v{h+2}\nv_permlane32_swap_b32 v{h+1}, v{h+3}")
def tileW(ks, H):
    o=[]
    for k in ks: o+=L(f"s_lshr_b32 {sT1}, {sTL[k]}, 6\nv_add_u32 v{H+4*k+3}, {sT1}, v{vTMa}")
    o+=["s_mov_b32 exec_lo, 0xffff","s_mov_b32 exec_hi, 0xffff"]+[f"ds_write_b16 v{H+4*k+3}, v{H+4*k+2}" for k in ks]+["s_mov_b64 exec, -1"]
    for k in ks: o+=L(f"s_lshr_b32 {sT0}, {sTL[k]}, 3\nv_add_u32 v{vX}, {sT0}, v{vTWa}\nds_write_b64 v{vX}, v[{H+4*k}:{H+4*k+1}]")
    return o
def emit(a, ops):
    for o in ops:
        if isinstance(o,tuple):
            if o[0]=='WT': a.wait_tag(o[1])
            elif o[0]=='GRP': emit(a,o[1])
            elif o[0]=='FN': o[1]()
        else: a(o)
def spread(a, dmas, fill, frac=1.0, mark=False):
    n=len(dmas); m=int(len(fill)*frac); per=m/max(n,1); pos=0
    for i,dm in enumerate(dmas):
        dm()
        if mark and i==n-1: tr(a,'S' if a is d else 'T','T15')
        end=int(round(per*(i+1))); emit(a, fill[pos:end]); pos=end
    emit(a, fill[pos:])
def arrive(a, cnt, vA=5, vO=6):
    a(f"v_mov_b32 v{vA}, {SYNC+4*cnt}\nv_mov_b32 v{vO}, 1\ns_mov_b64 exec, 1\nds_add_u32 v{vA}, v{vO}\ns_mov_b64 exec, -1")
lab=[0]
def swait(a, cnt, n, vA=5, vO=6, sleep=0):
    lab[0]+=1; Lb=f"L_sw{lab[0]}"
    a(f"v_mov_b32 v{vA}, {SYNC+4*cnt}")
    a._emit(f"ds_read_b32 v{vO}, v{vA}"); a._emit("s_waitcnt lgkmcnt(0)"); a.lgq=[]
    a._emit(f"v_readfirstlane_b32 s100, v{vO}"); a._emit("s_nop 0"); a._emit(f"s_cmp_ge_u32 s100, {n}"); a._emit(f"s_cbranch_scc1 {Lb}x")
    a.label(Lb)
    a._emit(f"s_sleep {max(sleep,1)}")
    a._emit(f"ds_read_b32 v{vO}, v{vA}"); a._emit("s_waitcnt lgkmcnt(0)")
    a._emit(f"v_readfirstlane_b32 s100, v{vO}"); a._emit(f"s_add_u32 {sSPIN}, {sSPIN}, 1"); a._emit(f"s_cmp_ge_u32 {sSPIN}, {SPINMAX}"); a._emit(f"s_cbranch_scc1 {Lb}x")
    a._emit(f"s_cmp_ge_u32 s100, {n}"); a._emit(f"s_cbranch_scc0 {Lb}")
    a.label(Lb+"x")
C0=-2.302208198; C1=C0*0.044715
def gelu_ops(xs, ts, vC1):
    o=[]
    for x,t in zip(xs,ts): o.append(f"v_mul_f32 v{t}, v{x}, v{x}")
    for x,t in zip(xs,ts): o.append(f"v_fmaak_f32 v{t}, v{vC1}, v{t}, {f2u(C0):#x}")
    for x,t in zip(xs,ts): o.append(f"v_mul_f32 v{t}, v{t}, v{x}")
    for x,t in zip(xs,ts): o.append(f"v_exp_f32 v{t}, v{t}")
    for x,t in zip(xs,ts): o.append(f"v_add_f32 v{t}, 1.0, v{t}")
    for x,t in zip(xs,ts): o.append(f"v_rcp_f32 v{t}, v{t}")
    for x,t in zip(xs,ts): o.append(f"v_mul_f32 v{x}, v{x}, v{t}")
    return o
def send_addr(a):
    a("v_bfe_u32 v7, v1, 4, 1\nv_and_b32 v8, 15, v1\nv_lshlrev_b32 v8, 2, v8\nv_lshl_add_u32 v8, v7, 10, v8")
def send(a, sreg):
    a("v_mov_b32 v11, v10")
    a("v_permlane32_swap_b32 v10, v11")
    a("v_add_f32 v10, v10, v11\nv_min_u32 v10, -2, v10")
    a("s_mov_b32 exec_hi, 0")
    a(f"buffer_store_dword v10, v8, {sWS}, {sreg} offen sc1")
    a("s_mov_b64 exec, -1")
def swz(dst, src, tmp, sc):
    if 'A' in XP: return [f"v_lshlrev_b32 v{dst}, 7, v{src}"]
    return L(f"v_lshlrev_b32 v{tmp}, 3, v{src}\nv_bitop3_b32 v{tmp}, v{tmp}, {sc}, v{vZ} bitop3:0x28\nv_lshl_or_b32 v{dst}, v{src}, 7, v{tmp}")

c = a.fork()
d = a
if PRIOD0: d(f"s_setprio {PRIOD0}")
ACC=192; AD=140; EF=116; FF=100; RING=12; IR=192
assert RING+8*NR<=92
vWo=[2,3]
f1=L(f"s_add_u32 {sT2}, {sWAVE}, {0 if NOROT else sROT}\ns_and_b32 {sT2}, {sT2}, 3\ns_lshl_b32 s{sW0}, {sT2}, 13\ns_lshl_b32 {sT0}, {sNB}, 7\ns_add_u32 s{sW0}, s{sW0}, {sT0}\ns_lshl_b32 {sT2}, {sT2}, 5")
for k in range(1,13): f1.append(f"s_add_u32 s{sW0+k}, s{sW0}, {32768*k}")
f1+=L(f"s_and_b32 {sT0}, {sMB}, 1\ns_lshl_b32 {sT0}, {sT0}, 1\ns_lshr_b32 {sT1}, {sWAVE}, 1\ns_add_u32 {sT3}, {sT0}, {sT1}\ns_xor_b32 {sT1}, {sT1}, 1\ns_add_u32 {sT0}, {sT0}, {sT1}")
f1+=L(f"s_mul_i32 {sT3}, {sT3}, 3328\ns_mul_i32 {sT0}, {sT0}, 3328\ns_add_u32 {sT3}, {sT3}, {IDXS}\ns_add_u32 {sT0}, {sT0}, {IDXS}")
f1+=L(f"v_add_u32 v10, {sT0}, v7\nv_add_u32 v9, {sT3}, v7")
vSel=4; TT=92
if MODE=='v':
    f1+=L(f"v_mul_u32_u24 v7, {13*64}, v6\nv_bfe_u32 v8, v1, 4, 1\nv_lshl_add_u32 v7, v8, 2, v7\nv_bfe_u32 v8, v1, 3, 1\nv_add_u32 v7, v7, v8\nv_and_b32 v11, 7, v1\nv_lshlrev_b32 v11, 4, v11\nv_lshl_or_b32 v{vWo[0]}, v7, 9, v11\nv_add_u32 v{vWo[1]}, 4096, v{vWo[0]}")
    f1+=L(f"v_cmp_eq_u32 vcc, 0, v8\nv_mov_b32 v11, 0x03020706\nv_mov_b32 v{vSel}, 0x05040100\nv_cndmask_b32 v{vSel}, v11, v{vSel}, vcc")
    WOFF=1024
else:
    f1+=L(f"v_mul_u32_u24 v7, {13*64}, v6\nv_bfe_u32 v8, v1, 3, 2\nv_add_u32 v7, v7, v8\nv_and_b32 v11, 7, v1\nv_lshlrev_b32 v0, 4, v11\nv_lshl_or_b32 v{vWo[0]}, v7, 9, v0\nv_add_u32 v{vWo[1]}, 4096, v{vWo[0]}")
    f1+=L(f"s_lshl_b32 {sT0}, {sWAVE}, 10\ns_add_u32 {sT0}, {sT0}, {SCR}")
    f1+=L(f"v_bfe_u32 v8, v1, 4, 1\nv_lshlrev_b32 v8, 6, v8\nv_lshlrev_b32 v4, 4, v1\nv_xor_b32 v4, v4, v8\nv_add_u32 v4, {sT0}, v4")
    f1+=L(f"v_bfe_u32 v7, v1, 2, 2\nv_lshl_add_u32 v8, v6, 2, v7\nv_lshlrev_b32 v8, 7, v8\nv_bfe_u32 v7, v1, 3, 1\nv_lshl_or_b32 v8, v7, 6, v8\nv_bfe_u32 v7, v1, 4, 1\nv_lshl_or_b32 v8, v7, 5, v8\nv_and_b32 v7, 3, v1\nv_lshl_or_b32 v8, v7, 3, v8\nv_add_u32 v0, {sT0}, v8\nv_xor_b32 v11, 64, v8\nv_add_u32 v11, {sT0}, v11")
    WOFF=2048
spread(d,[ (lambda n=n: tdma(d,n)) for n in range(3,NB1)], f1)
stamp(d,1)
tr(d,'S','preB1')
d.wait_tag('stg'); d.wait_all_lgkm()
d("s_barrier")
tr(d,'S','B1')
stamp(d,2)
def addr_calc(ks):
    o=[]
    for k in ks:
        for mt in range(2):
            r=AD+4*k+2*mt
            o+=swz(r, IR+14*mt+k, r+1, sT2)+[f"v_xor_b32 v{r+1}, 16, v{r}"]
    return o
def wl(n,t):
    k=n>>1; cc=n&1; r=RING+8*(n%NR)
    d(f"buffer_load_dwordx4 v[{r+4*t}:{r+4*t+3}], v{vWo[cc]}, {sWD1}, s{sW0+k} offen offset:{WOFF*t}", tag=f'w{n}')
nl=0
f2=wb_read()+idx_read(IR,9)+idx_read(IR+14,10)
HD=76
f2+=wb_fix()+tileR(0)+addr_calc(range(0,2))+tileM(0)+addr_calc(range(2,4))+tileC(0,HD)+tileR(1)+addr_calc(range(4,6))+tileM(1)+addr_calc(range(6,8))+tileC(1,HD)
m_=int(len(f2)*FRONT)
spread(d,[ (lambda n=n: tdma(d,n)) for n in range(NB1,16)], f2[:m_], 1.0, True)
f2r=f2[m_:]
f3=f2r+tileR(2)+addr_calc(range(8,10))+tileM(2)+addr_calc(range(10,13))+tileC(2,HD)+tileW((0,1,2),HD)
spread(d,[(lambda n=n,t=t: wl(n,t)) for n in range(PRE) for t in range(2)], f3)
nl=PRE
tr(d,'S','f3')
emit(d, tileR(3)); tr(d,'S','t3R')
emit(d, tileM(3)+tileC(3,HD)+tileW((3,),HD))
d.wait_all_lgkm(); tr(d,'S','t3W')
d("s_barrier")
tr(d,'S','B3')
stamp(d,3); tr(d,'D','B3')
if PRIO_D!=PRIOD0: d(f"s_setprio {PRIO_D}")
QI = [int(x) for x in opt('--qi','0,2,4').split(',')]
AI = [int(x) for x in opt('--ai','8,10').split(',')]
BI = [int(x) for x in opt('--bi','17,18').split(',')]
vWC=5
S1=int(opt('--s1',9)); S2=int(opt('--s2',22))
d(f"v_lshlrev_b32 v{vWC}, 7, v1\ns_lshl_b32 {sT3}, {sECH}, 4")
def wcd(ldsbase, srcbase, i, npieces, nlines, tag):
    last=npieces-1; rem=nlines-64*last
    d(f"s_add_u32 {sT0}, {sWAVE}, {4*i}")
    if 4*i+3>=last:
        lo=min(rem,32); hi=max(rem-32,0)
        d(f"s_cmp_eq_u32 {sT0}, {last}\ns_cselect_b32 exec_lo, {hex((1<<lo)-1)}, -1\ns_cselect_b32 exec_hi, {hex((1<<hi)-1)}, -1\ns_cmp_gt_u32 {sT0}, {last}\ns_cselect_b32 exec_lo, 1, exec_lo\ns_cselect_b32 exec_hi, 0, exec_hi\ns_min_u32 {sT0}, {sT0}, {last}")
    d(f"s_lshl_b32 {sT1}, {sT0}, 10\ns_add_u32 m0, {sT1}, {ldsbase}\ns_lshl_b32 {sT0}, {sT0}, 13\ns_add_u32 {sT0}, {sT0}, {sT3}\ns_add_u32 {sT0}, {sT0}, {srcbase}")
    d(f"buffer_load_dwordx4 v{vWC}, {sWC}, {sT0} offen lds", tag=tag)
    if 4*i+3>=last: d("s_mov_b64 exec, -1")
sig={'w1':False,'w2':False}
def eread(n, mt):
    k=n>>1; cc=n&1; r=EF+8*(n%3)
    return f"ds_read_b128 v[{r+4*mt}:{r+4*mt+3}], v{AD+4*k+2*mt+cc}"
for n in range(2):
    for mt in range(2): d(eread(n,mt))
for n in range(PRE,PRE+POST):
    for t in range(2): wl(n,t)
nl=PRE+POST
if NOD:
    d("v_mov_b32 v10, 0"); d("s_branch L_dpre")
def transp(n):
    r=RING+8*(n%NR); f=FF+8*(n&1)
    if MODE=='v':
        dpp=[f"v_mov_b32_dpp v{TT+i}, v{r+i} row_ror:8 row_mask:0xf bank_mask:0xf bound_ctrl:0" for i in range(8)]
        def P(i0,rr): return f"v_perm_b32 v{f+4*(rr&1)+2*(rr>>1)+i0}, v{TT+4*i0+rr}, v{r+4*i0+rr}, v{vSel}"
        def S(r0,i0): return f"v_permlane16_swap_b32 v{f+4*r0+i0}, v{f+4*r0+2+i0}"
        return [[dpp[0],dpp[2],dpp[1],dpp[3],P(0,0),P(0,2)],[dpp[4],dpp[6],P(0,1),P(0,3),S(0,0)],[dpp[5],dpp[7],P(1,0),P(1,2),P(1,1)],[P(1,3),S(1,0),S(0,1),S(1,1)]]
    f=FF+8*(n%3) if False else f
    W=lambda i0: f"ds_write_b128 v4, v[{r+4*i0}:{r+4*i0+3}]"
    R=lambda i0,nt: f"ds_read_b64_tr_b16 v[{f+4*nt+2*i0}:{f+4*nt+2*i0+1}], v{11 if nt else 0}"
    return [[W(0),R(0,0),R(0,1)],[W(1),R(1,0),R(1,1)],[],[]]
d.wait_tag('w0')
for g in transp(0): emit(d,g)
W2=RING
def relg(): pass
for n in range(26):
    G = transp(n+1) if n+1<26 else [[],[],[],[]]
    f=FF+8*(n&1); e=EF+8*(n%3)
    mf=[]
    for nt in range(2):
        for mt in range(2):
            acc=ACC+16*(2*nt+mt)
            cs = "0" if n==0 else f"v[{acc}:{acc+15}]"
            mf.append(f"v_mfma_f32_32x32x16_bf16 v[{acc}:{acc+15}], v[{f+4*nt}:{f+4*nt+3}], v[{e+4*mt}:{e+4*mt+3}], {cs}")
    if n in (0,3,6,9,12,15,18,21,24): tr(d,'D',f'n{n}')
    vm=None
    idx=[i for i,(t,_) in enumerate(d.vmq) if t==f'w{n+1}']
    if idx: vm=len(d.vmq)-1-max(idx)
    need=set(('v',r) for r in list(range(e,e+8))+list(range(f,f+8)))
    li=[i for i,(t,dr) in enumerate(d.lgq) if need & set(dr)]
    d.wait(vm=vm, lg=(len(d.lgq)-1-max(li)) if li else None)
    todo=[]
    cnt=2 if (RAMP and n>=RAMP-1) else 1
    while cnt>0 and nl<26 and nl-NR<=n:
        todo+=[(nl,t) for t in range(2)]; nl+=1; cnt-=1
    for i in range(4):
        d(mf[i])
        if i<len(todo): wl(*todo[i])
        if MODE=='v':
            if i==2 and n+2<26: d(eread(n+2,0))
            if i==3 and n+2<26: d(eread(n+2,1))
            emit(d,G[i])
        else:
            emit(d,G[i])
            if i==2 and n+2<26: d(eread(n+2,0))
            if i==3 and n+2<26: d(eread(n+2,1))
        if i==3:
            if n in QI: wcd(WCB,86528,QI.index(n),11,676,'c1')
            if n in AI: wcd(WCA,0,AI.index(n),NQA,64*NQA,'c2')
            if n==BI[0]: swait(d,C_RP,4,6,7); relg()
            if n in BI: wcd(WCB,13*HR*128,BI.index(n),NQB,676-13*HR,'c2')
            if n==S1: d.wait_tag('c1'); arrive(d,C_W1,6,7); sig['w1']=True
            if n==S2: d.wait_tag('c2'); arrive(d,C_W2,6,7); sig['w2']=True
    if n==22:
        W2=RING+8*(20%NR)
        assert (21%NR)==(20%NR)+1
        if MODE=='v':
            d(f"v_lshrrev_b32 v8, 5, v1\nv_lshlrev_b32 v8, 6, v8\ns_lshl_b32 {sT0}, {sNB}, 7\ns_and_b32 {sT1}, {sWAVE}, 1\ns_lshl_b32 {sT1}, {sT1}, 2\ns_add_u32 {sT0}, {sT0}, {sT1}")
            for r in range(4): d(f"buffer_load_dwordx3 v[{W2+4*r}:{W2+4*r+2}], v8, {sWD2}, {sT0} offen offset:{16*r}")
        else:
            d(f"v_lshrrev_b32 v8, 5, v1\nv_lshlrev_b32 v8, 3, v8\ns_lshl_b32 {sT0}, {sNB}, 7\ns_and_b32 {sT1}, {sWAVE}, 1\ns_lshl_b32 {sT1}, {sT1}, 6\ns_add_u32 {sT0}, {sT0}, {sT1}")
            for g in range(4): d(f"buffer_load_dwordx2 v[{W2+2*g}:{W2+2*g+1}], v8, {sWD2}, {sT0} offen offset:{16*g}")
assert nl==26, nl
assert sig['w1']
if not sig['w2']:
    d.wait_tag('c2'); arrive(d,C_W2,6,7)
stamp(d,4); tr(d,'D','loop')
arrive(d,C_TAB)
d(f"v_lshlrev_b32 v7, 4, v1")
for cx in (1,2,3):
    d(f"s_xor_b32 {sT0}, {sWAVE}, {cx}\ns_mul_i32 {sT0}, {sT0}, 12288\ns_add_u32 {sT0}, {sT0}, {(cx-1)*4096}\nv_add_u32 v{176+cx}, {sT0}, v7")
d(f"s_mul_i32 {sT0}, {sWAVE}, 12288\nv_add_u32 v180, {sT0}, v7\nv_mov_b32 v9, {f2u(C1):#x}")
swait(d,C_TAB,8)
stamp(d,5); tr(d,'D','tab')
d(f"s_bitcmp1_b32 {sWAVE}, 0\ns_cbranch_scc1 L_dep1")
WV=140
def depi(d,P):
    for nt in range(2):
        for mt in range(2):
            cx=(P^nt)+2*mt
            if cx==0: continue
            acc=ACC+16*(2*nt+mt)
            for j in range(4): d(f"ds_write_b128 v{176+cx}, v[{acc+4*j}:{acc+4*j+3}] offset:{1024*j}")
    arrive(d,C_RED)
    for gp in range(4):
        for r in range(4):
            if MODE=='v': src=W2+4*r+2*(gp>>1); hi=gp&1
            else: src=W2+2*gp+(r>>1); hi=r&1
            d(f"v_and_b32 v{WV+4*gp+r}, 0xffff0000, v{src}" if hi else f"v_lshlrev_b32 v{WV+4*gp+r}, 16, v{src}")
    swait(d,C_RED,4)
    own=ACC+16*(2*P); RB=92
    for j in range(4):
        for k in range(3): d(f"ds_read_b128 v[{RB+16*k+4*j}:{RB+16*k+4*j+3}], v180 offset:{4096*k+1024*j}")
    for j in range(4):
        for i in range(4): d(f"v_add_f32 v{RB+4*j+i}, v{RB+4*j+i}, v{RB+16+4*j+i}")
        for i in range(4): d(f"v_add_f32 v{own+4*j+i}, v{own+4*j+i}, v{RB+32+4*j+i}")
        for i in range(4): d(f"v_add_f32 v{own+4*j+i}, v{own+4*j+i}, v{RB+4*j+i}")
    for o in gelu_ops([own+i for i in range(16)], [160+i for i in range(16)], 9): d(o)
    d(f"v_mul_f32 v10, v{own}, v{WV}\nv_mul_f32 v11, v{own+1}, v{WV+1}")
    for i in range(2,16): d(f"v_fmac_f32 v{10+(i&1)}, v{own+i}, v{WV+i}")
    d("v_add_f32 v10, v10, v11")
d0=d.fork(); d1=d.fork()
depi(d0,0); d0("s_branch L_dpre")
depi(d1,1)
d.lines += d0.lines; d.label("L_dep1"); d.lines += d1.lines
d.pos=d1.pos; d.w=d1.w; d.lgq=[]; d.vmq=[]
d.label("L_dpre")
send_addr(d)
d(f"s_and_b32 {sT2}, {sMB}, 1\ns_lshl_b32 {sT2}, {sT2}, 1\ns_lshr_b32 {sT1}, {sWAVE}, 1\ns_add_u32 {sT2}, {sT2}, {sT1}\ns_lshl_b32 {sT2}, {sT2}, 11")
d(f"s_lshl_b32 {sT1}, {sP}, 13\ns_add_u32 {sT2}, {sT2}, {sT1}\ns_lshl_b32 {sT1}, {sNB}, 7\ns_add_u32 {sT2}, {sT2}, {sT1}\ns_and_b32 {sT1}, {sWAVE}, 1\ns_lshl_b32 {sT1}, {sT1}, 6\ns_add_u32 {sT2}, {sT2}, {sT1}\ns_add_u32 {sT2}, {sT2}, 512")
swait(d,C_RDY,1,sleep=2)
stamp(d,6); tr(d,'D','epi')
send(d,sT2)
d(f"s_cmp_eq_u32 {sWAVE}, 0\ns_cbranch_scc0 L_fin")
d(f"v_lshlrev_b32 v3, 4, v1\ns_lshl_b32 {sT0}, s2, 10")
d.label("L_poll")
d._emit(f"buffer_load_dwordx4 v[12:15], v3, {sWS}, {sT0} offen sc1")
d._emit(f"s_add_u32 {sSPIN}, {sSPIN}, 64"); d._emit(f"s_cmp_ge_u32 {sSPIN}, {SPINMAX}"); d._emit("s_cbranch_scc1 L_pollx")
d._emit("s_waitcnt vmcnt(0)")
d._emit("v_max_u32 v4, v12, v13"); d._emit("v_max3_u32 v4, v4, v14, v15"); d._emit("v_cmp_eq_u32 vcc, -1, v4"); d._emit("s_nop 4"); d._emit("s_cbranch_vccnz L_poll")
d.label("L_pollx")
d._emit("s_waitcnt vmcnt(0)")
d.vmq=[]
for sh in (4,8):
    for r in range(4): d(f"v_add_f32_dpp v{12+r}, v{12+r}, v{12+r} row_ror:{sh} row_mask:0xf bank_mask:0xf bound_ctrl:0")
for sw in (16,32):
    for r in range(4): d(f"v_mov_b32 v{16+r}, v{12+r}")
    for r in range(4): d(f"v_permlane{sw}_swap_b32 v{12+r}, v{16+r}")
    for r in range(4): d(f"v_add_f32 v{12+r}, v{12+r}, v{16+r}")
d(f"v_cvt_pk_bf16_f32 v12, v12, v13\nv_cvt_pk_bf16_f32 v13, v14, v15\nv_lshlrev_b32 v3, 3, v1\ns_lshl_b32 {sT0}, s2, 5\ns_mov_b64 exec, 0xf")
d(f"buffer_store_dwordx2 v[12:13], v3, {sOUT}, {sT0} offen")
tr(d,'D','fin')
d("s_mov_b64 exec, -1\ns_branch L_fin")

c.label("L_cross")
if PRIO0: c(f"s_setprio {PRIO0}")
RE=12; RW=64; X=116; AA=180; FA=194; FB=180; T0=202; T1=218; DA=234
RT=X; A1=156; A2=164; HC=140
IA=RW; aE=168; aM=T1; aT=DA
vQ=4
g1=L(f"v_lshlrev_b32 v2, 7, v1\ns_sub_u32 {sT2}, {sWAVE}, 4")
g1+=L(f"s_mul_i32 {sT0}, {sT2}, 3328\ns_add_u32 {sT0}, {sT0}, {IDXS}\nv_add_u32 v7, {sT0}, v7")
g1+=L("v_lshrrev_b32 v8, 3, v5\nv_bfe_u32 v9, v5, 2, 1\nv_and_b32 v10, 3, v5")
g1+=L("v_lshl_add_u32 v11, v8, 2, v10\nv_lshl_add_u32 v3, v9, 3, v11")
g1+=L(f"v_mul_u32_u24 v250, 169, v6\nv_add_u32 v250, v250, v3\nv_lshlrev_b32 v250, 1, v250\nv_add_u32 v250, {SE1S}, v250")
g1+=L(f"v_cmp_gt_u32 vcc, 13, v3\nv_cmp_gt_u32 {sMK}, 16, v5\ns_and_b64 vcc, vcc, {sMK}\nv_mov_b32 v3, {SE1S+680}\nv_cndmask_b32 v250, v3, v250, vcc")
g1+=L(f"v_mul_u32_u24 v3, 13, v9\nv_add_u32 v3, v3, v11\nv_mul_u32_u24 v8, 208, v6\nv_add_u32 v9, v8, v3\nv_lshlrev_b32 v9, 1, v9\nv_add_u32 v9, {SE2S}, v9")
g1+=L(f"v_min_u32 v3, 25, v3\nv_mul_u32_u24 v3, 416, v3\nv_add_u32 v3, v3, v8")
g1+=L(f"v_cmp_gt_u32 vcc, {HR*208}, v3\nv_mov_b32 v10, {WCB-HR*208}\nv_mov_b32 v11, {WCA}\nv_cndmask_b32 v10, v10, v11, vcc\nv_add_u32 v{vQ}, v10, v3\nv_add_u32 v3, {WCB}, v3")
g1+=L(f"v_mov_b32 v{A1+7}, 0\ns_lshl_b32 {sT3}, {sECH}, 4\ns_lshl_b32 {sT0}, {sP}, 3\nv_mov_b32 v254, {sT0}")
g1+=L(f"s_sub_u32 s80, {sWAVE}, 5\ns_lshl_b32 s78, s80, 10\ns_lshl_b32 s77, s80, 13\ns_add_u32 s77, s77, {sT3}")
g1+=L(f"s_mov_b32 {sSELZ[0]}, 0x0c0c0100\ns_mov_b32 {sSELZ[1]}, 0x0c0c0302\ns_mov_b32 {sTWc}, {TW}\ns_mov_b32 {sTMc}, {TM}")
spread(c,[ (lambda n=n: tdma(c,n)) for n in range(3,NB1)], g1)
tr(c,'T','preB1')
c.wait_tag('stg'); c.wait_all_lgkm()
c("s_barrier")
tr(c,'T','B1')
def caddr(js):
    o=[]
    for j in js:
        r=IA+j
        o+=swz(aE+j, r, 0, sT3)+L(f"v_lshl_add_u32 v{aT+j}, v{r}, 4, {sTWc}\nv_lshl_add_u32 v{aM+j}, v{r}, 1, {sTMc}")
    return o
def w4(c, fn, name, cond="scc0"):
    c(f"s_cmp_eq_u32 {sWAVE}, 4\ns_cbranch_{cond} L_{name}")
    lg=list(c.lgq)
    fn()
    c.lgq=lg
    c.label(f"L_{name}")
def clr():
    for r in range(4): c._emit(f"v_mov_b32 v{vF+r}, -1")
    c._emit(f"s_lshl_b32 {sT0}, s2, 10"); c._emit(f"v_lshlrev_b32 v5, 4, v1")
    c._emit(f"buffer_store_dwordx4 v[{vF}:{vF+3}], v5, {sWS}, {sT0} offen sc1")
    c._emit(f"s_lshl_b32 {sT0}, s2, 5"); c._emit(f"v_mov_b32 v6, 0")
    c._emit(f"buffer_load_dword v255, v6, {sOUT}, {sT0} offen"); c._emit("s_nop 1")
def wc_dma(ldsbase, srcbase, i, npieces, tag):
    if 3*i+2 <= npieces-1:
        c(f"s_add_u32 {sT1}, s78, {ldsbase+3072*i}\ns_mov_b32 m0, {sT1}\ns_add_u32 {sT0}, s77, {srcbase+24576*i}")
    else:
        c(f"s_add_u32 {sT0}, s80, {3*i}\ns_min_u32 {sT0}, {sT0}, {npieces-1}\ns_lshl_b32 {sT1}, {sT0}, 10\ns_add_u32 {sT1}, {sT1}, {ldsbase}\ns_mov_b32 m0, {sT1}")
        c(f"s_lshl_b32 {sT0}, {sT0}, 13\ns_add_u32 {sT0}, {sT0}, {sT3}\ns_add_u32 {sT0}, {sT0}, {srcbase}")
    c(f"buffer_load_dwordx4 v2, {sWC}, {sT0} offen lds", tag=tag)
g2=wb_read()+idx_read(IA,7)
g2+=[f"ds_read_u16 v{(RE+t) if t<12 else (A1+6)}, v250 offset:{26*t}" for t in range(13)]
g2+=[f"ds_read_u16 v{RE+12+t}, v9 offset:{52*t}" for t in range(8)]
g2+=wb_fix()+tileR(0)+caddr(range(0,3))+tileM(0)+caddr(range(3,6))+tileC(0,HC)+tileR(1)+caddr(range(6,9))+tileM(1)+caddr(range(9,13))+tileC(1,HC)
spread(c,[ (lambda n=n: tdma(c,n)) for n in range(NB1,16)], g2, FRONT, True)
emit(c, tileR(2))
for t in range(6): c(f"v_lshl_or_b32 v{A1+t}, v{RE+2*t+1}, 16, v{RE+2*t}")
emit(c, tileM(2))
for t in range(4): c(f"v_lshl_or_b32 v{A2+t}, v{RE+12+2*t+1}, 16, v{RE+12+2*t}")
emit(c, tileC(2,HC)+tileW((0,1,2),HC))
tr(c,'T','g3')
emit(c, tileR(3)); tr(c,'T','t3R')
emit(c, tileM(3)+tileC(3,HC)+tileW((3,),HC))
c.wait_all_lgkm(); tr(c,'T','t3W')
c("s_barrier")
tr(c,'T','B3')
stamp(c,3); tr(c,'C','B3')
if PRIO_C!=PRIO0: c(f"s_setprio {PRIO_C}")
def rdy():
    c._emit("s_waitcnt vmcnt(0)")
    c._emit(f"v_mov_b32 v6, 1"); c._emit(f"s_lshl_b32 {sT0}, {sP}, 3"); c._emit(f"v_mov_b32 v5, {sT0}"); c._emit("s_mov_b64 exec, 1")
    c._emit(f"buffer_atomic_add v6, v5, {sDBG}, 0 offen"); c._emit("s_mov_b64 exec, -1")
def rdyissue():
    c._emit(f"buffer_load_dword v253, v254, {sDBG}, 0 offen sc1")
def rdycheck(sfx=""):
    c._emit("s_branch L_chkr"+sfx)
    c.label("L_chk"+sfx)
    c._emit(f"buffer_load_dword v253, v254, {sDBG}, 0 offen sc1")
    c.label("L_chkr"+sfx)
    c._emit("s_waitcnt vmcnt(0)")
    c._emit(f"v_readfirstlane_b32 s100, v253"); c._emit(f"s_add_u32 {sSPIN}, {sSPIN}, 64"); c._emit(f"s_cmp_ge_u32 {sSPIN}, {SPINMAX}"); c._emit("s_cbranch_scc1 L_chkx"+sfx)
    c._emit(f"s_cmp_ge_u32 s100, 8"); c._emit("s_cbranch_scc1 L_chkx"+sfx); c._emit("s_sleep 16"); c._emit("s_branch L_chk"+sfx)
    c.label("L_chkx"+sfx)
    c._emit(f"v_mov_b32 v5, {SYNC+4*C_RDY}"); c._emit("v_mov_b32 v6, 1"); c._emit("ds_write_b32 v5, v6"); c._emit("s_waitcnt lgkmcnt(0)")
def cslot():
    c(f"s_lshl_b32 s79, {sT2}, 11\ns_lshl_b32 {sT1}, {sP}, 13\ns_add_u32 s79, s79, {sT1}\ns_lshl_b32 {sT1}, {sG8}, 6\ns_add_u32 s79, s79, {sT1}")
if NOC:
    arrive(c,C_TAB); w4(c,rdy,"rdyn"); c("s_sleep 64"); w4(c,lambda: (rdyissue(), rdycheck("n")),"nchk"); cslot(); send_addr(c); swait(c,C_RDY,1,sleep=32); c("v_mov_b32 v10, 0"); c("s_branch L_csend")
Z=FA; G=FB
ZR=[RW+j for j in range(12)]+[Z+6]
for j in range(13): c(f"ds_read_u16 v{ZR[j]}, v{aM+j}", tag='z')
w4(c, clr, "clr")
c(f"v_mov_b32 v{Z+7}, 0\nv_mov_b32 v9, {f2u(C1):#x}")
EG=[f"ds_read_b128 v[{RE+4*j}:{RE+4*j+3}], v{aE+j}" for j in range(13)]
emit(c, EG[:2])
tr(c,'C','zg')
cslot(); send_addr(c)
for t in range(6): c(f"v_lshl_or_b32 v{Z+t}, v{RW+2*t+1}, 16, v{RW+2*t}")
c(f"v_mfma_f32_32x32x16_bf16 v[{T0}:{T0+15}], v[{A1}:{A1+3}], v[{Z}:{Z+3}], 0")
c(f"v_mfma_f32_32x32x16_bf16 v[{T0}:{T0+15}], v[{A1+4}:{A1+7}], v[{Z+4}:{Z+7}], v[{T0}:{T0+15}]")
emit(c, EG[2:8])
go=gelu_ops([T0+i for i in range(8)],[RW+i for i in range(8)],9)
for i,o in enumerate(go):
    c(o)
    if i in (8,16,24,32,40): c(EG[8+i//8-1])
arrive(c,C_TAB)
for i in range(4): c(f"v_cvt_pk_bf16_f32 v{G+i}, v{T0+2*i}, v{T0+2*i+1}")
c(f"v_mfma_f32_32x32x16_bf16 v[{T1}:{T1+15}], v[{A2}:{A2+3}], v[{G}:{G+3}], 0")
w4(c, rdy, "rdy")
for e_ in range(8): c(f"v_mov_b32 v{X+8*e_+7}, 0")
for j in range(13): c(f"v_mul_f32 v{AA+j}, {f2u(-1.4426950409):#x}, v{T1+j}")
for j in range(13): c(f"v_exp_f32 v{AA+j}, v{AA+j}")
for j in range(13): c(f"v_add_f32 v{AA+j}, 1.0, v{AA+j}")
for j in range(13): c(f"v_rcp_f32 v{AA+j}, v{AA+j}")
stamp(c,2); tr(c,'C','senet')
def read_rw(vb, j): return f"ds_read_b128 v[{RW+4*j}:{RW+4*j+3}], v{vb} offset:{16*j}"
def perm_frag(F, R, e):
    wi=e>>1; hs=e&1
    o=[f"v_perm_b32 v{F+pp}, v{R+4*(2*pp+1)+wi}, v{R+4*(2*pp)+wi}, {sSEL[hs]}" for pp in range(6)]
    return o+[f"v_perm_b32 v{F+6}, v{R+48+wi}, v{R+48+wi}, {sSELZ[hs]}"]
def v_frag(e):
    wi=e>>1; o=[]; F=X+8*e
    for j in range(13):
        t=T0+j
        o.append(f"v_and_b32 v{t}, 0xffff0000, v{RE+4*j+wi}" if e&1 else f"v_lshlrev_b32 v{t}, 16, v{RE+4*j+wi}")
    for j in range(13): o.append(f"v_mul_f32 v{T0+j}, v{T0+j}, v{AA+j}")
    for j in range(0,12,2): o.append(f"v_cvt_pk_bf16_f32 v{F+(j>>1)}, v{T0+j}, v{T0+j+1}")
    o.append(f"v_cvt_pk_bf16_f32 v{F+6}, v{T0+12}, 0")
    return o
VW=int(opt('--vw',6))
for e_ in range(VW): emit(c, v_frag(e_))
tr(c,'C','vf4')
w4(c, rdyissue, "rdi")
swait(c,C_W1,4)
stamp(c,4); tr(c,'C','w1all')
for j in range(13): c(read_rw(3,j))
arrive(c,C_RP)
for e_ in range(VW,8): emit(c, v_frag(e_))
w4(c, rdycheck, "nochk")
tr(c,'C','vf8')
def mm(T, B):
    return [f"v_mfma_f32_32x32x16_bf16 v[{T}:{T+15}], v[{FA}:{FA+3}], v[{B}:{B+3}], 0",
            f"v_mfma_f32_32x32x16_bf16 v[{T}:{T+15}], v[{FA+4}:{FA+7}], v[{B+4}:{B+7}], v[{T}:{T+15}]"]
def pack1(wi, q, ii):
    o=[f"v_mul_f32 v{T0+ii}, v{T0+ii}, v{AA+ii}", f"v_mul_f32 v{T1+ii}, v{T1+ii}, v{AA+ii}"] if q else []
    return o+[f"v_cvt_pk_bf16_f32 v{RW+4*ii+wi}, v{T0+ii}, v{T1+ii}"]
def diag1(ii, first): return f"v_mfma_f32_32x32x16_bf16 v[{DA}:{DA+15}], v[{RT+4*ii}:{RT+4*ii+3}], v[{RW+4*ii}:{RW+4*ii+3}], {'0' if (first and ii==0) else f'v[{DA}:{DA+15}]'}"
def rtg(j): return f"ds_read_b128 v[{RT+4*j}:{RT+4*j+3}], v{aT+j}"
c(f"v_mov_b32 v{FA+7}, 0")
emit(c, perm_frag(FA,RW,0))
for wi in range(4):
    e0,e1=2*wi,2*wi+1
    emit(c, mm(T0,X+8*e0)); emit(c, perm_frag(FA,RW,e1))
    for j in (2*e0,2*e0+1):
        if j<13: c(rtg(j))
    emit(c, mm(T1,X+8*e1))
    for j in (2*e1,2*e1+1):
        if j<13: c(rtg(j))
    if wi<3:
        emit(c, perm_frag(FA,RW,e0+2))
        for ii in range(13): c(pack1(wi,True,ii)[0])
        for ii in range(13): emit(c, pack1(wi,True,ii)[1:])
    else:
        tr(c,'C','qmm')
        for ii in range(13): c(pack1(wi,True,ii)[0])
        swait(c,C_W2,4); tr(c,'C','w2all')
        pk=[pack1(wi,True,ii)[1:] for ii in range(13)]
        emit(c, pk[0]);
        for ii in range(13):
            if ii+1<13: emit(c, pk[ii+1])
            else: c(f"v_mov_b32 v{FB+7}, 0\ns_nop 0")
            c(diag1(ii,True))
            if ii>0: c(read_rw(vQ,ii-1))
        c(read_rw(vQ,12))
stamp(c,5); tr(c,'C','diagq')
emit(c, perm_frag(FB,RE,0)); emit(c, perm_frag(FA,RW,0))
for wi in range(4):
    e0,e1=2*wi,2*wi+1
    emit(c, mm(T0,FB)); emit(c, perm_frag(FA,RW,e1)+perm_frag(FB,RE,e1)); emit(c, mm(T1,FB))
    if wi<3:
        emit(c, perm_frag(FA,RW,e0+2)+perm_frag(FB,RE,e0+2))
        for ii in range(13): emit(c, pack1(wi,False,ii))
    else:
        swait(c,C_RDY,1)
        c("s_mov_b32 s82, 0xaaaaaaaa\ns_mov_b32 s83, 0xaaaaaaaa\ns_mov_b32 s84, 0xcccccccc\ns_mov_b32 s85, 0xcccccccc\ns_mov_b32 s72, 0xff00ff00\ns_mov_b32 s73, 0xff00ff00\ns_mov_b32 s74, 0xffff0000\ns_mov_b32 s75, 0xffff0000\ns_mov_b32 s76, 0x0f0f0f0f\ns_mov_b32 s77, 0xf0f0f0f0")
        emit(c, pack1(wi,False,0)+pack1(wi,False,1)+pack1(wi,False,2))
        for ii in range(13):
            if ii+3<13: emit(c, pack1(wi,False,ii+3))
            c(diag1(ii,False))
for i in range(8): c(f"v_cndmask_b32 v{DA+2*i}, v{DA+2*i}, v{DA+2*i+1}, s[82:83]")
for i in range(4): c(f"v_cndmask_b32 v{DA+4*i}, v{DA+4*i}, v{DA+4*i+2}, s[84:85]")
for i in range(2): c(f"v_cndmask_b32 v{DA+8*i}, v{DA+8*i}, v{DA+8*i+4}, s[72:73]")
c(f"v_cndmask_b32 v{DA}, v{DA}, v{DA+8}, s[74:75]")
c(f"v_cndmask_b32 v10, 0, v{DA}, s[76:77]")
c.label("L_csend")
tr(c,'C','end')
stamp(c,6)
send(c,"s79")
e=c
e.label("L_fin")
if TRACE:
    e._emit("s_memrealtime s[100:101]"); e._emit("s_waitcnt lgkmcnt(0)")
    e._emit(f"s_cmp_eq_u32 {sWAVE}, {0 if TRACE in ('D','S') else SW}"); e._emit("s_cbranch_scc0 L_end")
    e._emit("v_mov_b32 v16, s92"); e._emit("v_mov_b32 v17, s100")
    for i in range(14): e._emit(f"s_sub_u32 s{TRREG[i]}, s{TRREG[i]}, s86"); e._emit(f"v_mov_b32 v{18+i}, s{TRREG[i]}")
    e._emit(f"s_lshl_b32 {sT0}, s2, 6"); e._emit(f"s_add_u32 {sT0}, {sT0}, 0x8000000"); e._emit("v_mov_b32 v3, 0"); e._emit("s_mov_b64 exec, 1")
    for i in range(4): e._emit(f"buffer_store_dwordx4 v[{16+4*i}:{19+4*i}], v3, {sWS}, {sT0} offen offset:{16*i}")
    sys.stderr.write(" ".join(f"{i+2}:{n}" for i,n in enumerate(trn[TRACE]))+"\n")
elif STAMP:
    e._emit(f"s_memtime s[70:71]"); e._emit("s_memrealtime s[100:101]"); e._emit("s_waitcnt lgkmcnt(0)")
    e._emit(f"s_cmp_eq_u32 {sWAVE}, 0"); e._emit(f"s_cselect_b32 {sT0}, 1, 0"); e._emit(f"s_cmp_eq_u32 {sWAVE}, {SW}"); e._emit(f"s_cselect_b32 {sT1}, 1, 0"); e._emit(f"s_or_b32 {sT0}, {sT0}, {sT1}"); e._emit("s_cbranch_scc0 L_end")
    for i in range(1,8): e._emit(f"s_sub_u32 s{STR[i]}, s{STR[i]}, s86")
    e._emit("v_mov_b32 v16, s92"); e._emit("v_mov_b32 v17, s100")
    for i in range(1,8): e._emit(f"v_mov_b32 v{17+i}, s{STR[i]}")
    e._emit(f"s_lshl_b32 {sT0}, s2, 6"); e._emit(f"s_add_u32 {sT0}, {sT0}, 0x8000000")
    e._emit("v_mov_b32 v3, 0"); e._emit("s_mov_b64 exec, 1")
    e._emit(f"s_cmp_eq_u32 {sWAVE}, 0"); e._emit("s_cbranch_scc0 L_st4b")
    e._emit(f"buffer_store_dwordx4 v[16:19], v3, {sWS}, {sT0} offen"); e._emit(f"buffer_store_dwordx4 v[20:23], v3, {sWS}, {sT0} offen offset:16"); e._emit(f"buffer_store_dword v24, v3, {sWS}, {sT0} offen offset:32")
    e._emit("s_branch L_end")
    e.label("L_st4b")
    e._emit(f"buffer_store_dwordx4 v[18:21], v3, {sWS}, {sT0} offen offset:36"); e._emit(f"buffer_store_dwordx3 v[22:24], v3, {sWS}, {sT0} offen offset:52")
e.label("L_end")
e._emit("s_endpgm")
out = d.text() + "\n" + c.text() + f"""
.section .rodata,"a"
.p2align 6
.amdhsa_kernel {NAME}
  .amdhsa_next_free_vgpr 256
  .amdhsa_next_free_sgpr 102
  .amdhsa_accum_offset 256
  .amdhsa_group_segment_fixed_size 0
  .amdhsa_kernarg_size 88
  .amdhsa_user_sgpr_count 2
  .amdhsa_user_sgpr_kernarg_segment_ptr 1
  .amdhsa_system_sgpr_workgroup_id_x 1
.end_amdhsa_kernel
"""
print(out)
sys.stderr.write(f"nops D {d.nops} C {c.nops}\n")
```

```python
import sys, struct
from asmlib import Asm
def opt(name, default=None):
    if name in sys.argv:
        return sys.argv[sys.argv.index(name)+1]
    return default
STAMP = '--stamp' in sys.argv
SW = int(opt('--sw', 5))
PRIO_D = int(opt('--prioD', 0)); PRIO_C = int(opt('--prioC', 0))
PRE = int(opt('--pre', 0))
NB1 = int(opt('--nb1', 4))
RAMP = int(opt('--ramp', 1))
FRONT = float(opt('--front', 0.6))
MODE = opt('--mode','v')
NR = int(opt('--nr', 10))
PRIO0 = int(opt('--prio0', 1))
NOROT = '--norot' in sys.argv
NOC = '--noC' in sys.argv; NOD = '--noD' in sys.argv
NAME = "standalone__deep_cross_fibinet__recsys_kernel"
def f2u(x): return struct.unpack('<I', struct.pack('<f', x))[0]

TW=128000; TM=144000; XR=146000
IDXS=XR; WBIS=XR+13312; SE1S=WBIS+1024; SE2S=SE1S+1024
WCB=XR; WCA=XR+11264; SYNC=163776
NQA = 6 if MODE=='v' else 2
HR = (NQA*64)//13
NQB = (676-13*HR+63)//64
SCR = WCA+NQA*1024
assert WCA+NQA*1024+(0 if MODE=='v' else 4096)<=SYNC and SE2S+1024<=SYNC
LDS_BYTES=163840
sIDX,sTABL,sSE1,sSE2,sWBI,sWC,sWD1,sWD2,sOUT,sDBG,sWS = [f"s[{4+4*i}:{7+4*i}]" for i in range(11)]
SRD_SIZES=[425984,128000,676,676,8192,173056,851968,512,8192,256,0x10000000]
sWAVE,sNB,sMB,sROT,sECH,sP,sG8,sT0,sT1,sT2,sT3,sSPIN = [f"s{i}" for i in range(48,60)]
sMK="s[98:99]"; sFL="s3"
sW0=73
sSEL=["s60","s61"]; sSELZ=["s73","s74"]; sTWc="s75"; sTMc="s76"
STR=[86,88,90,62,64,66,68,70]
sTL=["s94","s95","s96","s97"]
SPINMAX="0x40000"
C_W1,C_RP,C_W2,C_TAB,C_RED,C_RDY,C_TW,C_STG = range(8)
PF = int(opt('--pf',1))
EARLY = int(opt('--early',2))
PRIOD0 = int(opt('--priod0',2))
POST = int(opt('--post',3))
TRACE = opt('--trace','')
TRREG = [4,6,8,10,12,14,16,18,20,22,88,90,62,64]
trn = {'D':[], 'C':[], 'S':[], 'T':[]}
if TRACE in ('S','T'): TRREG=[62,64,66,68,70,88,90,82,84,62,62,62,62,62]
def tr(a, role, name):
    if TRACE==role and len(trn[role])<14:
        r=TRREG[len(trn[role])]; trn[role].append(name); a._emit(f"s_memtime s[{r}:{r+1}]")
DBG0 = '--dbg0' in sys.argv
def stamp0(a, i):
    if DBG0: a._emit(f"s_memtime s[{STR[i]}:{STR[i]+1}]")
def stamp(a, i):
    if STAMP and not TRACE and not (DBG0 and i in (1,2,4,5,6)): a._emit(f"s_memtime s[{STR[i]}:{STR[i]+1}]")
def L(text): return [x.strip() for x in text.split('\n') if x.strip()]

a = Asm()
a.raw(f"; @launch grid=(256,1,1) block=(512,1,1) lds={LDS_BYTES}")
a.raw('.amdgcn_target "amdgcn-amd-amdhsa--gfx950"')
a.raw(f".text\n.globl {NAME}\n.p2align 8\n.type {NAME},@function\n{NAME}:")
if STAMP:
    a._emit("s_memrealtime s[92:93]"); a._emit(f"s_memtime s[86:87]")
PAD=int(opt('--pad',0))
if PAD: a._emit("s_memrealtime s[92:93]")
a("s_cmp_ge_u32 s2, 256\ns_cbranch_scc1 L_end")
order=[0,1,4,2,3,6,5,10,8,7,9]
for i in order: a._emit(f"s_load_dwordx2 s[{4+4*i}:{5+4*i}], s[0:1], {8*i}")
a("v_lshrrev_b32 v2, 6, v0\nv_and_b32 v1, 63, v0")
a(f"v_readfirstlane_b32 {sWAVE}, v2")
for i in range(11):
    a(f"s_mov_b32 s{6+4*i}, {SRD_SIZES[i]}\ns_mov_b32 s{7+4*i}, 0x20000")
a(f"s_and_b32 {sNB}, s2, 3\ns_lshr_b32 {sMB}, s2, 2\ns_lshr_b32 {sROT}, s2, 3\ns_lshr_b32 {sP}, s2, 3\ns_and_b32 {sG8}, s2, 7")
a(f"s_and_b32 {sT0}, {sMB}, 1\ns_lshl_b32 {sECH}, {sNB}, 1\ns_add_u32 {sECH}, {sECH}, {sT0}\ns_mov_b32 {sSPIN}, 0")
vL16=92; vT0=93; vTa=94; vTb=95; vB0=96; vTWa=97; vTMa=98; vX=99; vY=100; vC=101; vM=102; vZ=103
WB=104; BF=112; DD=128; vF=136
a(f"v_lshlrev_b32 v{vL16}, 4, v1")
a(f"v_and_b32 v{vX}, 7, v1\nv_lshrrev_b32 v{vY}, 4, v1\nv_xor_b32 v{vX}, v{vX}, v{vY}\nv_lshlrev_b32 v{vX}, 4, v{vX}")
a(f"v_lshrrev_b32 v{vY}, 3, v1\nv_lshl_or_b32 v{vT0}, v{vY}, 7, v{vX}")
a(f"v_lshlrev_b32 v{vX}, 7, v1")
a(f"s_add_u32 {sT0}, {sWAVE}, {sROT}")
for k in range(4):
    a(f"s_add_u32 {sTL[k]}, {sT0}, {8*k}\ns_and_b32 {sTL[k]}, {sTL[k]}, 31\ns_lshl_b32 {sTL[k]}, {sTL[k]}, 12\ns_min_u32 {sTL[k]}, {sTL[k]}, {121*1024}")
a(f"s_mul_i32 {sT1}, {sP}, 13312\ns_lshl_b32 {sT0}, {sWAVE}, 11\ns_add_u32 {sT2}, {sT0}, {IDXS}\ns_add_u32 {sT0}, {sT1}, {sT0}\ns_mov_b32 m0, {sT2}")
def tile_pre(k):
    return L(f"s_lshr_b32 {sFL}, {sTL[k]}, 4\ns_and_b32 {sFL}, {sFL}, 64\nv_xor_b32 v{vTa}, {sFL}, v{vT0}\nv_xor_b32 v{vTb}, 64, v{vTa}")
for o in tile_pre(0): a(o)
a._emit("s_waitcnt lgkmcnt(0)")
CAL=int(opt('--cal',0))
if CAL:
    a._emit(f"s_mul_i32 s60, {sROT}, {52*512}"); a._emit(f"s_lshl_b32 s61, {sNB}, 7"); a._emit(f"s_add_u32 s60, s60, s61")
    a._emit(f"v_lshlrev_b32 v9, 9, v1")
    a._emit(f"buffer_load_dword v254, v9, {sWD1}, s60 offen")
    a._emit(f"s_mul_i32 s60, {sROT}, {43*128}"); a._emit(f"buffer_load_dword v253, v{vX}, {sWC}, s60 offen")
    a._emit(f"s_mul_i32 s60, {sROT}, {32*128}"); a._emit(f"buffer_load_dword v252, v{vX}, {sTABL}, s60 offen")
    a._emit(f"buffer_load_dword v251, v{vX}, {sIDX}, {sT1} offen"); a._emit(f"s_add_u32 s60, {sT1}, 8192"); a._emit(f"buffer_load_dword v250, v{vX}, {sIDX}, s60 offen")
    a._emit(f"buffer_load_dword v249, v{vX}, {sWBI}, 0 offen"); a._emit(f"buffer_load_dword v248, v{vX}, {sSE1}, 0 offen"); a._emit(f"buffer_load_dword v247, v{vX}, {sSE2}, 0 offen"); a._emit(f"buffer_load_dword v246, v{vX}, {sWD2}, 0 offen")
    a._emit(f"buffer_load_dword v245, v{vX}, {sOUT}, 0 offen"); a._emit(f"buffer_load_dword v244, v{vX}, {sDBG}, 0 offen"); a._emit(f"s_lshl_b32 s60, s2, 10"); a._emit(f"buffer_load_dword v243, v{vL16}, {sWS}, s60 offen")
    for _ in range(CAL): a._emit("s_sleep 64")
    a._emit("s_waitcnt vmcnt(0)")
a(f"s_cmp_ge_u32 {sWAVE}, 6")
a("s_cbranch_scc1 L_stg67")
a(f"buffer_load_dwordx4 v{vL16}, {sIDX}, {sT0} offen lds", tag='stg')
a(f"buffer_load_dwordx4 v{vL16}, {sIDX}, {sT0} offen offset:1024 lds", tag='stg')
a("s_branch L_stgdone")
a.label("L_stg67")
a(f"s_cmp_eq_u32 {sWAVE}, 7\ns_cbranch_scc1 L_stg7")
a._emit(f"buffer_load_dwordx4 v{vL16}, {sIDX}, {sT0} offen lds")
a._emit(f"s_lshl_b32 {sT0}, {sECH}, 4"); a._emit(f"s_mov_b32 m0, {WBIS}"); a._emit("s_nop 0")
a._emit(f"buffer_load_dwordx4 v{vX}, {sWBI}, {sT0} offen lds")
a._emit("s_branch L_stgdone")
a.label("L_stg7")
a._emit(f"s_mov_b32 m0, {SE1S}"); a._emit("s_nop 0")
a._emit(f"buffer_load_dwordx4 v{vL16}, {sSE1}, 0 offen lds")
a._emit(f"s_mov_b32 m0, {SE2S}"); a._emit("s_nop 0")
a._emit(f"buffer_load_dwordx4 v{vL16}, {sSE2}, 0 offen lds")
a.label("L_stgdone")
def tdma(a, n):
    k=n>>2; q=n&3
    if q==0:
        if k>0:
            for o in tile_pre(k): a(o)
        a(f"s_mov_b32 m0, {sTL[k]}")
    a(f"buffer_load_dwordx4 v{vTb if q&1 else vTa}, {sTABL}, {sTL[k]} offen offset:{1024*q} lds", tag=f'tile{k}')
if PF:
    a(f"s_cmp_lt_u32 {sWAVE}, 2\ns_cbranch_scc0 L_nopf")
    a._emit(f"s_cmp_eq_u32 {sWAVE}, 0"); a._emit("s_cbranch_scc0 L_pf1")
    a._emit(f"s_mul_i32 {sT0}, {sROT}, {52*512}"); a._emit(f"s_lshl_b32 {sT1}, {sNB}, 7"); a._emit(f"s_add_u32 {sT0}, {sT0}, {sT1}")
    a._emit(f"v_lshlrev_b32 v9, 9, v1"); a._emit("s_mov_b32 exec_hi, 0xfffff")
    a._emit(f"buffer_load_dword v254, v9, {sWD1}, {sT0} offen"); a._emit("s_mov_b64 exec, -1"); a._emit("s_branch L_pfd")
    a.label("L_pf1")
    a._emit(f"s_mul_i32 {sT0}, {sROT}, {43*128}"); a._emit("s_mov_b32 exec_hi, 0x7ff")
    a._emit(f"buffer_load_dword v254, v{vX}, {sWC}, {sT0} offen"); a._emit("s_mov_b64 exec, -1"); a._emit("s_branch L_pfd")
    a.label("L_nopf")
    a.label("L_pfd")
tdma(a,0); tdma(a,1)
a(f"v_mov_b32 v{vX}, {SYNC}\nv_mov_b32 v{vC}, 0\nv_mov_b32 v{vM}, 0")
for o in range(0,32,8): a(f"ds_write2_b32 v{vX}, v{vC}, v{vM} offset0:{o//4} offset1:{o//4+1}")
a(f"v_and_b32 v{vM}, 15, v1\nv_lshrrev_b32 v{vY}, 4, v1\nv_lshrrev_b32 v{vC}, 1, v{vM}\nv_xor_b32 v{vC}, v{vC}, v{vY}\nv_lshlrev_b32 v{vC}, 4, v{vC}")
a(f"v_lshl_or_b32 v{vB0}, v{vM}, 7, v{vC}")
a(f"v_lshrrev_b32 v{vX}, 5, v1\nv_lshl_add_u32 v{vX}, v{vX}, 4, v{vM}\nv_lshlrev_b32 v{vTMa}, 1, v{vX}\nv_add_u32 v{vTMa}, {TM}, v{vTMa}")
a(f"v_lshlrev_b32 v{vX}, 1, v{vX}\nv_bfe_u32 v{vTWa}, v1, 4, 1\nv_add_lshl_u32 v{vTWa}, v{vX}, v{vTWa}, 3\nv_add_u32 v{vTWa}, {TW}, v{vTWa}")
tdma(a,2)
a(f"v_lshrrev_b32 v{vC}, 2, v{vM}\nv_lshl_add_u32 v{vC}, v{vY}, 3, v{vC}\nv_lshlrev_b32 v{vC}, 4, v{vC}\nv_and_b32 v{vX}, 1, v1\nv_lshl_add_u32 v{vC}, v{vX}, 3, v{vC}\nv_add_u32 v{vC}, {WBIS}, v{vC}")
a(f"v_and_b32 v5, 31, v1\nv_lshrrev_b32 v6, 5, v1\nv_mul_u32_u24 v7, 104, v5\nv_mul_u32_u24 v8, 52, v6\nv_add_u32 v7, v7, v8\nv_mov_b32 v{vZ}, 0x70")
a(f"s_mov_b32 {sSEL[0]}, 0x05040100\ns_mov_b32 {sSEL[1]}, 0x07060302")
a(f"s_cmp_ge_u32 {sWAVE}, 4\ns_cbranch_scc1 L_cross")

def wb_read():
    return [f"ds_read_b64_tr_b16 v[{WB+4*s+2*hf}:{WB+4*s+2*hf+1}], v{vC} offset:{s*512+hf*64}" for s in range(2) for hf in range(2)]
def wb_fix():
    o=L(f"v_cmp_gt_u32 {sMK}, 8, v{vM}\nv_cmp_eq_u32 vcc, 8, v{vM}\nv_mov_b32 v{vY}, 0x3c803c80\nv_cndmask_b32 v{vY}, 0, v{vY}, vcc")
    return o+[f"v_cndmask_b32 v{WB+r}, v{vY}, v{WB+r}, {sMK}" for r in range(8)]
def idx_read(dst, vb):
    o=[f"ds_read2_b32 v[{dst+2*i}:{dst+2*i+1}], v{vb} offset0:{2*i} offset1:{2*i+1}" for i in range(6)]
    return o+[f"ds_read_b32 v{dst+12}, v{vb} offset:48"]
XP = opt('--xp','')
def tileR(k):
    if 'R' in XP: return [('WT',f'tile{k}')]
    o=L(f"s_lshr_b32 {sT0}, {sTL[k]}, 4\ns_and_b32 {sT0}, {sT0}, 64\nv_xor_b32 v{vX}, {sT0}, v{vB0}\nv_add_u32 v{vX}, {sTL[k]}, v{vX}\nv_xor_b32 v{vY}, 64, v{vX}")
    o.append(('WT',f'tile{k}'))
    for sub in range(2):
        o.append(f"ds_read_b128 v[{BF+8*sub}:{BF+8*sub+3}], v{vX} offset:{sub*2048}")
        o.append(f"ds_read_b128 v[{BF+8*sub+4}:{BF+8*sub+7}], v{vY} offset:{sub*2048}")
    return o
def tileM(k):
    o=[f"v_mfma_f32_16x16x32_bf16 v[{DD+4*sub}:{DD+4*sub+3}], v[{WB}:{WB+3}], v[{BF+8*sub}:{BF+8*sub+3}], 0" for sub in range(2)]
    o+=[f"v_mfma_f32_16x16x32_bf16 v[{DD+4*sub}:{DD+4*sub+3}], v[{WB+4}:{WB+7}], v[{BF+8*sub+4}:{BF+8*sub+7}], v[{DD+4*sub}:{DD+4*sub+3}]" for sub in range(2)]
    return o
def tileC(k, H):
    h=H+4*k
    o=L(f"v_cvt_pk_bf16_f32 v{h}, v{DD}, v{DD+1}\nv_cvt_pk_bf16_f32 v{h+2}, v{DD+4}, v{DD+5}\nv_cvt_pk_bf16_f32 v{h+1}, v{DD+2}, v{DD+3}\nv_cvt_pk_bf16_f32 v{h+3}, v{DD+6}, v{DD+7}")
    return o+L(f"v_permlane32_swap_b32 v{h}, v{h+2}\nv_permlane32_swap_b32 v{h+1}, v{h+3}")
def tileW(ks, H):
    o=[]
    for k in ks: o+=L(f"s_lshr_b32 {sT1}, {sTL[k]}, 6\nv_add_u32 v{H+4*k+3}, {sT1}, v{vTMa}")
    o+=["s_mov_b32 exec_lo, 0xffff","s_mov_b32 exec_hi, 0xffff"]+[f"ds_write_b16 v{H+4*k+3}, v{H+4*k+2}" for k in ks]+["s_mov_b64 exec, -1"]
    for k in ks: o+=L(f"s_lshr_b32 {sT0}, {sTL[k]}, 3\nv_add_u32 v{vX}, {sT0}, v{vTWa}\nds_write_b64 v{vX}, v[{H+4*k}:{H+4*k+1}]")
    return o
def emit(a, ops):
    for o in ops:
        if isinstance(o,tuple):
            if o[0]=='WT': a.wait_tag(o[1])
            elif o[0]=='GRP': emit(a,o[1])
            elif o[0]=='FN': o[1]()
        else: a(o)
def spread(a, dmas, fill, frac=1.0, mark=False):
    n=len(dmas); m=int(len(fill)*frac); per=m/max(n,1); pos=0
    for i,dm in enumerate(dmas):
        dm()
        if mark and i==n-1: tr(a,'S' if a is d else 'T','T15')
        end=int(round(per*(i+1))); emit(a, fill[pos:end]); pos=end
    emit(a, fill[pos:])
def arrive(a, cnt, vA=5, vO=6):
    a(f"v_mov_b32 v{vA}, {SYNC+4*cnt}\nv_mov_b32 v{vO}, 1\ns_mov_b64 exec, 1\nds_add_u32 v{vA}, v{vO}\ns_mov_b64 exec, -1")
lab=[0]
def swait(a, cnt, n, vA=5, vO=6, sleep=0):
    lab[0]+=1; Lb=f"L_sw{lab[0]}"
    a(f"v_mov_b32 v{vA}, {SYNC+4*cnt}")
    a._emit(f"ds_read_b32 v{vO}, v{vA}"); a._emit("s_waitcnt lgkmcnt(0)"); a.lgq=[]
    a._emit(f"v_readfirstlane_b32 s100, v{vO}"); a._emit("s_nop 0"); a._emit(f"s_cmp_ge_u32 s100, {n}"); a._emit(f"s_cbranch_scc1 {Lb}x")
    a.label(Lb)
    a._emit(f"s_sleep {max(sleep,1)}")
    a._emit(f"ds_read_b32 v{vO}, v{vA}"); a._emit("s_waitcnt lgkmcnt(0)")
    a._emit(f"v_readfirstlane_b32 s100, v{vO}"); a._emit(f"s_add_u32 {sSPIN}, {sSPIN}, 1"); a._emit(f"s_cmp_ge_u32 {sSPIN}, {SPINMAX}"); a._emit(f"s_cbranch_scc1 {Lb}x")
    a._emit(f"s_cmp_ge_u32 s100, {n}"); a._emit(f"s_cbranch_scc0 {Lb}")
    a.label(Lb+"x")
C0=-2.302208198; C1=C0*0.044715
def gelu_ops(xs, ts, vC1):
    o=[]
    for x,t in zip(xs,ts): o.append(f"v_mul_f32 v{t}, v{x}, v{x}")
    for x,t in zip(xs,ts): o.append(f"v_fmaak_f32 v{t}, v{vC1}, v{t}, {f2u(C0):#x}")
    for x,t in zip(xs,ts): o.append(f"v_mul_f32 v{t}, v{t}, v{x}")
    for x,t in zip(xs,ts): o.append(f"v_exp_f32 v{t}, v{t}")
    for x,t in zip(xs,ts): o.append(f"v_add_f32 v{t}, 1.0, v{t}")
    for x,t in zip(xs,ts): o.append(f"v_rcp_f32 v{t}, v{t}")
    for x,t in zip(xs,ts): o.append(f"v_mul_f32 v{x}, v{x}, v{t}")
    return o
def send_addr(a):
    a("v_bfe_u32 v7, v1, 4, 1\nv_and_b32 v8, 15, v1\nv_lshlrev_b32 v8, 2, v8\nv_lshl_add_u32 v8, v7, 10, v8")
def send(a, sreg):
    a("v_mov_b32 v11, v10")
    a("v_permlane32_swap_b32 v10, v11")
    a("v_add_f32 v10, v10, v11\nv_min_u32 v10, -2, v10")
    a("s_mov_b32 exec_hi, 0")
    a(f"buffer_store_dword v10, v8, {sWS}, {sreg} offen sc1")
    a("s_mov_b64 exec, -1")
def swz(dst, src, tmp, sc):
    if 'A' in XP: return [f"v_lshlrev_b32 v{dst}, 7, v{src}"]
    return L(f"v_lshlrev_b32 v{tmp}, 3, v{src}\nv_bitop3_b32 v{tmp}, v{tmp}, {sc}, v{vZ} bitop3:0x28\nv_lshl_or_b32 v{dst}, v{src}, 7, v{tmp}")

c = a.fork()
d = a
if PRIOD0: d(f"s_setprio {PRIOD0}")
ACC=192; AD=140; EF=116; FF=100; RING=12; IR=192
assert RING+8*NR<=92
vWo=[2,3]
f1=L(f"s_add_u32 {sT2}, {sWAVE}, {0 if NOROT else sROT}\ns_and_b32 {sT2}, {sT2}, 3\ns_lshl_b32 s{sW0}, {sT2}, 13\ns_lshl_b32 {sT0}, {sNB}, 7\ns_add_u32 s{sW0}, s{sW0}, {sT0}\ns_lshl_b32 {sT2}, {sT2}, 5")
for k in range(1,13): f1.append(f"s_add_u32 s{sW0+k}, s{sW0}, {32768*k}")
f1+=L(f"s_and_b32 {sT0}, {sMB}, 1\ns_lshl_b32 {sT0}, {sT0}, 1\ns_lshr_b32 {sT1}, {sWAVE}, 1\ns_add_u32 {sT3}, {sT0}, {sT1}\ns_xor_b32 {sT1}, {sT1}, 1\ns_add_u32 {sT0}, {sT0}, {sT1}")
f1+=L(f"s_mul_i32 {sT3}, {sT3}, 3328\ns_mul_i32 {sT0}, {sT0}, 3328\ns_add_u32 {sT3}, {sT3}, {IDXS}\ns_add_u32 {sT0}, {sT0}, {IDXS}")
f1+=L(f"v_add_u32 v10, {sT0}, v7\nv_add_u32 v9, {sT3}, v7")
vSel=4; TT=92
if MODE=='v':
    f1+=L(f"v_mul_u32_u24 v7, {13*64}, v6\nv_bfe_u32 v8, v1, 4, 1\nv_lshl_add_u32 v7, v8, 2, v7\nv_bfe_u32 v8, v1, 3, 1\nv_add_u32 v7, v7, v8\nv_and_b32 v11, 7, v1\nv_lshlrev_b32 v11, 4, v11\nv_lshl_or_b32 v{vWo[0]}, v7, 9, v11\nv_add_u32 v{vWo[1]}, 4096, v{vWo[0]}")
    f1+=L(f"v_cmp_eq_u32 vcc, 0, v8\nv_mov_b32 v11, 0x03020706\nv_mov_b32 v{vSel}, 0x05040100\nv_cndmask_b32 v{vSel}, v11, v{vSel}, vcc")
    WOFF=1024
else:
    f1+=L(f"v_mul_u32_u24 v7, {13*64}, v6\nv_bfe_u32 v8, v1, 3, 2\nv_add_u32 v7, v7, v8\nv_and_b32 v11, 7, v1\nv_lshlrev_b32 v0, 4, v11\nv_lshl_or_b32 v{vWo[0]}, v7, 9, v0\nv_add_u32 v{vWo[1]}, 4096, v{vWo[0]}")
    f1+=L(f"s_lshl_b32 {sT0}, {sWAVE}, 10\ns_add_u32 {sT0}, {sT0}, {SCR}")
    f1+=L(f"v_bfe_u32 v8, v1, 4, 1\nv_lshlrev_b32 v8, 6, v8\nv_lshlrev_b32 v4, 4, v1\nv_xor_b32 v4, v4, v8\nv_add_u32 v4, {sT0}, v4")
    f1+=L(f"v_bfe_u32 v7, v1, 2, 2\nv_lshl_add_u32 v8, v6, 2, v7\nv_lshlrev_b32 v8, 7, v8\nv_bfe_u32 v7, v1, 3, 1\nv_lshl_or_b32 v8, v7, 6, v8\nv_bfe_u32 v7, v1, 4, 1\nv_lshl_or_b32 v8, v7, 5, v8\nv_and_b32 v7, 3, v1\nv_lshl_or_b32 v8, v7, 3, v8\nv_add_u32 v0, {sT0}, v8\nv_xor_b32 v11, 64, v8\nv_add_u32 v11, {sT0}, v11")
    WOFF=2048
spread(d,[ (lambda n=n: tdma(d,n)) for n in range(3,NB1)], f1)
stamp(d,1)
tr(d,'S','preB1')
d.wait_tag('stg'); d.wait_all_lgkm()
d("s_barrier")
tr(d,'S','B1')
stamp(d,2)
def addr_calc(ks):
    o=[]
    for k in ks:
        for mt in range(2):
            r=AD+4*k+2*mt
            o+=swz(r, IR+14*mt+k, r+1, sT2)+[f"v_xor_b32 v{r+1}, 16, v{r}"]
    return o
def wl(n,t):
    k=n>>1; cc=n&1; r=RING+8*(n%NR)
    d(f"buffer_load_dwordx4 v[{r+4*t}:{r+4*t+3}], v{vWo[cc]}, {sWD1}, s{sW0+k} offen offset:{WOFF*t}", tag=f'w{n}')
nl=0
f2=wb_read()+idx_read(IR,9)+idx_read(IR+14,10)
HD=76
f2+=wb_fix()+tileR(0)+addr_calc(range(0,2))+tileM(0)+addr_calc(range(2,4))+tileC(0,HD)+tileR(1)+addr_calc(range(4,6))+tileM(1)+addr_calc(range(6,8))+tileC(1,HD)
m_=int(len(f2)*FRONT)
spread(d,[ (lambda n=n: tdma(d,n)) for n in range(NB1,16)], f2[:m_], 1.0, True)
f2r=f2[m_:]
f3=f2r+tileR(2)+addr_calc(range(8,10))+tileM(2)+addr_calc(range(10,13))+tileC(2,HD)+tileW((0,1,2),HD)
spread(d,[(lambda n=n,t=t: wl(n,t)) for n in range(PRE) for t in range(2)], f3)
nl=PRE
tr(d,'S','f3')
emit(d, tileR(3)); tr(d,'S','t3R')
emit(d, tileM(3)+tileC(3,HD)+tileW((3,),HD))
d.wait_all_lgkm(); tr(d,'S','t3W')
d("s_barrier")
tr(d,'S','B3')
stamp(d,3); tr(d,'D','B3')
if PRIO_D!=PRIOD0: d(f"s_setprio {PRIO_D}")
QI = [int(x) for x in opt('--qi','0,2,4').split(',')]
AI = [int(x) for x in opt('--ai','8,10').split(',')]
BI = [int(x) for x in opt('--bi','17,18').split(',')]
vWC=5
S1=int(opt('--s1',9)); S2=int(opt('--s2',22))
d(f"v_lshlrev_b32 v{vWC}, 7, v1\ns_lshl_b32 {sT3}, {sECH}, 4")
def wcd(ldsbase, srcbase, i, npieces, nlines, tag):
    last=npieces-1; rem=nlines-64*last
    d(f"s_add_u32 {sT0}, {sWAVE}, {4*i}")
    if 4*i+3>=last:
        lo=min(rem,32); hi=max(rem-32,0)
        d(f"s_cmp_eq_u32 {sT0}, {last}\ns_cselect_b32 exec_lo, {hex((1<<lo)-1)}, -1\ns_cselect_b32 exec_hi, {hex((1<<hi)-1)}, -1\ns_cmp_gt_u32 {sT0}, {last}\ns_cselect_b32 exec_lo, 1, exec_lo\ns_cselect_b32 exec_hi, 0, exec_hi\ns_min_u32 {sT0}, {sT0}, {last}")
    d(f"s_lshl_b32 {sT1}, {sT0}, 10\ns_add_u32 m0, {sT1}, {ldsbase}\ns_lshl_b32 {sT0}, {sT0}, 13\ns_add_u32 {sT0}, {sT0}, {sT3}\ns_add_u32 {sT0}, {sT0}, {srcbase}")
    d(f"buffer_load_dwordx4 v{vWC}, {sWC}, {sT0} offen lds", tag=tag)
    if 4*i+3>=last: d("s_mov_b64 exec, -1")
sig={'w1':False,'w2':False}
def eread(n, mt):
    k=n>>1; cc=n&1; r=EF+8*(n%3)
    return f"ds_read_b128 v[{r+4*mt}:{r+4*mt+3}], v{AD+4*k+2*mt+cc}"
for n in range(2):
    for mt in range(2): d(eread(n,mt))
for n in range(PRE,PRE+POST):
    for t in range(2): wl(n,t)
nl=PRE+POST
if NOD:
    d("v_mov_b32 v10, 0"); d("s_branch L_dpre")
def transp(n):
    r=RING+8*(n%NR); f=FF+8*(n&1)
    if MODE=='v':
        dpp=[f"v_mov_b32_dpp v{TT+i}, v{r+i} row_ror:8 row_mask:0xf bank_mask:0xf bound_ctrl:0" for i in range(8)]
        def P(i0,rr): return f"v_perm_b32 v{f+4*(rr&1)+2*(rr>>1)+i0}, v{TT+4*i0+rr}, v{r+4*i0+rr}, v{vSel}"
        def S(r0,i0): return f"v_permlane16_swap_b32 v{f+4*r0+i0}, v{f+4*r0+2+i0}"
        return [[dpp[0],dpp[2],dpp[1],dpp[3],P(0,0),P(0,2)],[dpp[4],dpp[6],P(0,1),P(0,3),S(0,0)],[dpp[5],dpp[7],P(1,0),P(1,2),P(1,1)],[P(1,3),S(1,0),S(0,1),S(1,1)]]
    f=FF+8*(n%3) if False else f
    W=lambda i0: f"ds_write_b128 v4, v[{r+4*i0}:{r+4*i0+3}]"
    R=lambda i0,nt: f"ds_read_b64_tr_b16 v[{f+4*nt+2*i0}:{f+4*nt+2*i0+1}], v{11 if nt else 0}"
    return [[W(0),R(0,0),R(0,1)],[W(1),R(1,0),R(1,1)],[],[]]
d.wait_tag('w0')
for g in transp(0): emit(d,g)
W2=RING
def relg(): pass
for n in range(26):
    G = transp(n+1) if n+1<26 else [[],[],[],[]]
    f=FF+8*(n&1); e=EF+8*(n%3)
    mf=[]
    for nt in range(2):
        for mt in range(2):
            acc=ACC+16*(2*nt+mt)
            cs = "0" if n==0 else f"v[{acc}:{acc+15}]"
            mf.append(f"v_mfma_f32_32x32x16_bf16 v[{acc}:{acc+15}], v[{f+4*nt}:{f+4*nt+3}], v[{e+4*mt}:{e+4*mt+3}], {cs}")
    if n in (0,3,6,9,12,15,18,21,24): tr(d,'D',f'n{n}')
    vm=None
    idx=[i for i,(t,_) in enumerate(d.vmq) if t==f'w{n+1}']
    if idx: vm=len(d.vmq)-1-max(idx)
    need=set(('v',r) for r in list(range(e,e+8))+list(range(f,f+8)))
    li=[i for i,(t,dr) in enumerate(d.lgq) if need & set(dr)]
    d.wait(vm=vm, lg=(len(d.lgq)-1-max(li)) if li else None)
    todo=[]
    cnt=2 if (RAMP and n>=RAMP-1) else 1
    while cnt>0 and nl<26 and nl-NR<=n:
        todo+=[(nl,t) for t in range(2)]; nl+=1; cnt-=1
    for i in range(4):
        d(mf[i])
        if i<len(todo): wl(*todo[i])
        if MODE=='v':
            if i==2 and n+2<26: d(eread(n+2,0))
            if i==3 and n+2<26: d(eread(n+2,1))
            emit(d,G[i])
        else:
            emit(d,G[i])
            if i==2 and n+2<26: d(eread(n+2,0))
            if i==3 and n+2<26: d(eread(n+2,1))
        if i==3:
            if n in QI: wcd(WCB,86528,QI.index(n),11,676,'c1')
            if n in AI: wcd(WCA,0,AI.index(n),NQA,64*NQA,'c2')
            if n==BI[0]: swait(d,C_RP,4,6,7); relg()
            if n in BI: wcd(WCB,13*HR*128,BI.index(n),NQB,676-13*HR,'c2')
            if n==S1: d.wait_tag('c1'); arrive(d,C_W1,6,7); sig['w1']=True
            if n==S2: d.wait_tag('c2'); arrive(d,C_W2,6,7); sig['w2']=True
    if n==22:
        W2=RING+8*(20%NR)
        assert (21%NR)==(20%NR)+1
        if MODE=='v':
            d(f"v_lshrrev_b32 v8, 5, v1\nv_lshlrev_b32 v8, 6, v8\ns_lshl_b32 {sT0}, {sNB}, 7\ns_and_b32 {sT1}, {sWAVE}, 1\ns_lshl_b32 {sT1}, {sT1}, 2\ns_add_u32 {sT0}, {sT0}, {sT1}")
            for r in range(4): d(f"buffer_load_dwordx3 v[{W2+4*r}:{W2+4*r+2}], v8, {sWD2}, {sT0} offen offset:{16*r}")
        else:
            d(f"v_lshrrev_b32 v8, 5, v1\nv_lshlrev_b32 v8, 3, v8\ns_lshl_b32 {sT0}, {sNB}, 7\ns_and_b32 {sT1}, {sWAVE}, 1\ns_lshl_b32 {sT1}, {sT1}, 6\ns_add_u32 {sT0}, {sT0}, {sT1}")
            for g in range(4): d(f"buffer_load_dwordx2 v[{W2+2*g}:{W2+2*g+1}], v8, {sWD2}, {sT0} offen offset:{16*g}")
assert nl==26, nl
assert sig['w1']
if not sig['w2']:
    d.wait_tag('c2'); arrive(d,C_W2,6,7)
stamp(d,4); tr(d,'D','loop')
arrive(d,C_TAB)
d(f"v_lshlrev_b32 v7, 4, v1")
for cx in (1,2,3):
    d(f"s_xor_b32 {sT0}, {sWAVE}, {cx}\ns_mul_i32 {sT0}, {sT0}, 12288\ns_add_u32 {sT0}, {sT0}, {(cx-1)*4096}\nv_add_u32 v{176+cx}, {sT0}, v7")
d(f"s_mul_i32 {sT0}, {sWAVE}, 12288\nv_add_u32 v180, {sT0}, v7\nv_mov_b32 v9, {f2u(C1):#x}")
swait(d,C_TAB,8)
stamp(d,5); tr(d,'D','tab')
d(f"s_bitcmp1_b32 {sWAVE}, 0\ns_cbranch_scc1 L_dep1")
WV=140
def depi(d,P):
    for nt in range(2):
        for mt in range(2):
            cx=(P^nt)+2*mt
            if cx==0: continue
            acc=ACC+16*(2*nt+mt)
            for j in range(4): d(f"ds_write_b128 v{176+cx}, v[{acc+4*j}:{acc+4*j+3}] offset:{1024*j}")
    arrive(d,C_RED)
    for gp in range(4):
        for r in range(4):
            if MODE=='v': src=W2+4*r+2*(gp>>1); hi=gp&1
            else: src=W2+2*gp+(r>>1); hi=r&1
            d(f"v_and_b32 v{WV+4*gp+r}, 0xffff0000, v{src}" if hi else f"v_lshlrev_b32 v{WV+4*gp+r}, 16, v{src}")
    swait(d,C_RED,4)
    own=ACC+16*(2*P); RB=92
    for j in range(4):
        for k in range(3): d(f"ds_read_b128 v[{RB+16*k+4*j}:{RB+16*k+4*j+3}], v180 offset:{4096*k+1024*j}")
    for j in range(4):
        for i in range(4): d(f"v_add_f32 v{RB+4*j+i}, v{RB+4*j+i}, v{RB+16+4*j+i}")
        for i in range(4): d(f"v_add_f32 v{own+4*j+i}, v{own+4*j+i}, v{RB+32+4*j+i}")
        for i in range(4): d(f"v_add_f32 v{own+4*j+i}, v{own+4*j+i}, v{RB+4*j+i}")
    for o in gelu_ops([own+i for i in range(16)], [160+i for i in range(16)], 9): d(o)
    d(f"v_mul_f32 v10, v{own}, v{WV}\nv_mul_f32 v11, v{own+1}, v{WV+1}")
    for i in range(2,16): d(f"v_fmac_f32 v{10+(i&1)}, v{own+i}, v{WV+i}")
    d("v_add_f32 v10, v10, v11")
d0=d.fork(); d1=d.fork()
depi(d0,0); d0("s_branch L_dpre")
depi(d1,1)
d.lines += d0.lines; d.label("L_dep1"); d.lines += d1.lines
d.pos=d1.pos; d.w=d1.w; d.lgq=[]; d.vmq=[]
d.label("L_dpre")
send_addr(d)
d(f"s_and_b32 {sT2}, {sMB}, 1\ns_lshl_b32 {sT2}, {sT2}, 1\ns_lshr_b32 {sT1}, {sWAVE}, 1\ns_add_u32 {sT2}, {sT2}, {sT1}\ns_lshl_b32 {sT2}, {sT2}, 11")
d(f"s_lshl_b32 {sT1}, {sP}, 13\ns_add_u32 {sT2}, {sT2}, {sT1}\ns_lshl_b32 {sT1}, {sNB}, 7\ns_add_u32 {sT2}, {sT2}, {sT1}\ns_and_b32 {sT1}, {sWAVE}, 1\ns_lshl_b32 {sT1}, {sT1}, 6\ns_add_u32 {sT2}, {sT2}, {sT1}\ns_add_u32 {sT2}, {sT2}, 512")
swait(d,C_RDY,1,sleep=2)
stamp(d,6); tr(d,'D','epi')
send(d,sT2)
d(f"s_cmp_eq_u32 {sWAVE}, 0\ns_cbranch_scc0 L_fin")
d(f"v_lshlrev_b32 v3, 4, v1\ns_lshl_b32 {sT0}, s2, 10")
d.label("L_poll")
d._emit(f"buffer_load_dwordx4 v[12:15], v3, {sWS}, {sT0} offen sc1")
d._emit(f"s_add_u32 {sSPIN}, {sSPIN}, 64"); d._emit(f"s_cmp_ge_u32 {sSPIN}, {SPINMAX}"); d._emit("s_cbranch_scc1 L_pollx")
d._emit("s_waitcnt vmcnt(0)")
d._emit("v_max_u32 v4, v12, v13"); d._emit("v_max3_u32 v4, v4, v14, v15"); d._emit("v_cmp_eq_u32 vcc, -1, v4"); d._emit("s_nop 4"); d._emit("s_cbranch_vccnz L_poll")
d.label("L_pollx")
d._emit("s_waitcnt vmcnt(0)")
d.vmq=[]
for sh in (4,8):
    for r in range(4): d(f"v_add_f32_dpp v{12+r}, v{12+r}, v{12+r} row_ror:{sh} row_mask:0xf bank_mask:0xf bound_ctrl:0")
for sw in (16,32):
    for r in range(4): d(f"v_mov_b32 v{16+r}, v{12+r}")
    for r in range(4): d(f"v_permlane{sw}_swap_b32 v{12+r}, v{16+r}")
    for r in range(4): d(f"v_add_f32 v{12+r}, v{12+r}, v{16+r}")
d(f"v_cvt_pk_bf16_f32 v12, v12, v13\nv_cvt_pk_bf16_f32 v13, v14, v15\nv_lshlrev_b32 v3, 3, v1\ns_lshl_b32 {sT0}, s2, 5\ns_mov_b64 exec, 0xf")
d(f"buffer_store_dwordx2 v[12:13], v3, {sOUT}, {sT0} offen")
tr(d,'D','fin')
d("s_mov_b64 exec, -1\ns_branch L_fin")

c.label("L_cross")
if PRIO0: c(f"s_setprio {PRIO0}")
RE=12; RW=64; X=116; AA=180; FA=194; FB=180; T0=202; T1=218; DA=234
RT=X; A1=156; A2=164; HC=140
IA=RW; aE=168; aM=T1; aT=DA
vQ=4
g1=L(f"v_lshlrev_b32 v2, 7, v1\ns_sub_u32 {sT2}, {sWAVE}, 4")
g1+=L(f"s_mul_i32 {sT0}, {sT2}, 3328\ns_add_u32 {sT0}, {sT0}, {IDXS}\nv_add_u32 v7, {sT0}, v7")
g1+=L("v_lshrrev_b32 v8, 3, v5\nv_bfe_u32 v9, v5, 2, 1\nv_and_b32 v10, 3, v5")
g1+=L("v_lshl_add_u32 v11, v8, 2, v10\nv_lshl_add_u32 v3, v9, 3, v11")
g1+=L(f"v_mul_u32_u24 v250, 169, v6\nv_add_u32 v250, v250, v3\nv_lshlrev_b32 v250, 1, v250\nv_add_u32 v250, {SE1S}, v250")
g1+=L(f"v_cmp_gt_u32 vcc, 13, v3\nv_cmp_gt_u32 {sMK}, 16, v5\ns_and_b64 vcc, vcc, {sMK}\nv_mov_b32 v3, {SE1S+680}\nv_cndmask_b32 v250, v3, v250, vcc")
g1+=L(f"v_mul_u32_u24 v3, 13, v9\nv_add_u32 v3, v3, v11\nv_mul_u32_u24 v8, 208, v6\nv_add_u32 v9, v8, v3\nv_lshlrev_b32 v9, 1, v9\nv_add_u32 v9, {SE2S}, v9")
g1+=L(f"v_min_u32 v3, 25, v3\nv_mul_u32_u24 v3, 416, v3\nv_add_u32 v3, v3, v8")
g1+=L(f"v_cmp_gt_u32 vcc, {HR*208}, v3\nv_mov_b32 v10, {WCB-HR*208}\nv_mov_b32 v11, {WCA}\nv_cndmask_b32 v10, v10, v11, vcc\nv_add_u32 v{vQ}, v10, v3\nv_add_u32 v3, {WCB}, v3")
g1+=L(f"v_mov_b32 v{A1+7}, 0\ns_lshl_b32 {sT3}, {sECH}, 4\ns_lshl_b32 {sT0}, {sP}, 3\nv_mov_b32 v254, {sT0}")
g1+=L(f"s_sub_u32 s80, {sWAVE}, 5\ns_lshl_b32 s78, s80, 10\ns_lshl_b32 s77, s80, 13\ns_add_u32 s77, s77, {sT3}")
g1+=L(f"s_mov_b32 {sSELZ[0]}, 0x0c0c0100\ns_mov_b32 {sSELZ[1]}, 0x0c0c0302\ns_mov_b32 {sTWc}, {TW}\ns_mov_b32 {sTMc}, {TM}")
spread(c,[ (lambda n=n: tdma(c,n)) for n in range(3,NB1)], g1)
tr(c,'T','preB1')
c.wait_tag('stg'); c.wait_all_lgkm()
c("s_barrier")
tr(c,'T','B1')
def caddr(js):
    o=[]
    for j in js:
        r=IA+j
        o+=swz(aE+j, r, 0, sT3)+L(f"v_lshl_add_u32 v{aT+j}, v{r}, 4, {sTWc}\nv_lshl_add_u32 v{aM+j}, v{r}, 1, {sTMc}")
    return o
def w4(c, fn, name, cond="scc0"):
    c(f"s_cmp_eq_u32 {sWAVE}, 4\ns_cbranch_{cond} L_{name}")
    lg=list(c.lgq)
    fn()
    c.lgq=lg
    c.label(f"L_{name}")
def clr():
    for r in range(4): c._emit(f"v_mov_b32 v{vF+r}, -1")
    c._emit(f"s_lshl_b32 {sT0}, s2, 10"); c._emit(f"v_lshlrev_b32 v5, 4, v1")
    c._emit(f"buffer_store_dwordx4 v[{vF}:{vF+3}], v5, {sWS}, {sT0} offen sc1")
    c._emit(f"s_lshl_b32 {sT0}, s2, 5"); c._emit(f"v_mov_b32 v6, 0")
    c._emit(f"buffer_load_dword v255, v6, {sOUT}, {sT0} offen"); c._emit("s_nop 1")
def wc_dma(ldsbase, srcbase, i, npieces, tag):
    if 3*i+2 <= npieces-1:
        c(f"s_add_u32 {sT1}, s78, {ldsbase+3072*i}\ns_mov_b32 m0, {sT1}\ns_add_u32 {sT0}, s77, {srcbase+24576*i}")
    else:
        c(f"s_add_u32 {sT0}, s80, {3*i}\ns_min_u32 {sT0}, {sT0}, {npieces-1}\ns_lshl_b32 {sT1}, {sT0}, 10\ns_add_u32 {sT1}, {sT1}, {ldsbase}\ns_mov_b32 m0, {sT1}")
        c(f"s_lshl_b32 {sT0}, {sT0}, 13\ns_add_u32 {sT0}, {sT0}, {sT3}\ns_add_u32 {sT0}, {sT0}, {srcbase}")
    c(f"buffer_load_dwordx4 v2, {sWC}, {sT0} offen lds", tag=tag)
g2=wb_read()+idx_read(IA,7)
g2+=[f"ds_read_u16 v{(RE+t) if t<12 else (A1+6)}, v250 offset:{26*t}" for t in range(13)]
g2+=[f"ds_read_u16 v{RE+12+t}, v9 offset:{52*t}" for t in range(8)]
g2+=wb_fix()+tileR(0)+caddr(range(0,3))+tileM(0)+caddr(range(3,6))+tileC(0,HC)+tileR(1)+caddr(range(6,9))+tileM(1)+caddr(range(9,13))+tileC(1,HC)
spread(c,[ (lambda n=n: tdma(c,n)) for n in range(NB1,16)], g2, FRONT, True)
emit(c, tileR(2))
for t in range(6): c(f"v_lshl_or_b32 v{A1+t}, v{RE+2*t+1}, 16, v{RE+2*t}")
emit(c, tileM(2))
for t in range(4): c(f"v_lshl_or_b32 v{A2+t}, v{RE+12+2*t+1}, 16, v{RE+12+2*t}")
emit(c, tileC(2,HC)+tileW((0,1,2),HC))
tr(c,'T','g3')
emit(c, tileR(3)); tr(c,'T','t3R')
emit(c, tileM(3)+tileC(3,HC)+tileW((3,),HC))
c.wait_all_lgkm(); tr(c,'T','t3W')
c("s_barrier")
tr(c,'T','B3')
stamp(c,3); tr(c,'C','B3')
if PRIO_C!=PRIO0: c(f"s_setprio {PRIO_C}")
def rdy():
    c._emit("s_waitcnt vmcnt(0)")
    c._emit(f"v_mov_b32 v6, 1"); c._emit(f"s_lshl_b32 {sT0}, {sP}, 3"); c._emit(f"v_mov_b32 v5, {sT0}"); c._emit("s_mov_b64 exec, 1")
    c._emit(f"buffer_atomic_add v6, v5, {sDBG}, 0 offen"); c._emit("s_mov_b64 exec, -1")
def rdyissue():
    c._emit(f"buffer_load_dword v253, v254, {sDBG}, 0 offen sc1")
def rdycheck(sfx=""):
    c._emit("s_branch L_chkr"+sfx)
    c.label("L_chk"+sfx)
    c._emit(f"buffer_load_dword v253, v254, {sDBG}, 0 offen sc1")
    c.label("L_chkr"+sfx)
    c._emit("s_waitcnt vmcnt(0)")
    c._emit(f"v_readfirstlane_b32 s100, v253"); c._emit(f"s_add_u32 {sSPIN}, {sSPIN}, 64"); c._emit(f"s_cmp_ge_u32 {sSPIN}, {SPINMAX}"); c._emit("s_cbranch_scc1 L_chkx"+sfx)
    c._emit(f"s_cmp_ge_u32 s100, 8"); c._emit("s_cbranch_scc1 L_chkx"+sfx); c._emit("s_sleep 16"); c._emit("s_branch L_chk"+sfx)
    c.label("L_chkx"+sfx)
    c._emit(f"v_mov_b32 v5, {SYNC+4*C_RDY}"); c._emit("v_mov_b32 v6, 1"); c._emit("ds_write_b32 v5, v6"); c._emit("s_waitcnt lgkmcnt(0)")
def cslot():
    c(f"s_lshl_b32 s79, {sT2}, 11\ns_lshl_b32 {sT1}, {sP}, 13\ns_add_u32 s79, s79, {sT1}\ns_lshl_b32 {sT1}, {sG8}, 6\ns_add_u32 s79, s79, {sT1}")
if NOC:
    arrive(c,C_TAB); w4(c,rdy,"rdyn"); c("s_sleep 64"); w4(c,lambda: (rdyissue(), rdycheck("n")),"nchk"); cslot(); send_addr(c); swait(c,C_RDY,1,sleep=32); c("v_mov_b32 v10, 0"); c("s_branch L_csend")
Z=FA; G=FB
ZR=[RW+j for j in range(12)]+[Z+6]
for j in range(13): c(f"ds_read_u16 v{ZR[j]}, v{aM+j}", tag='z')
w4(c, clr, "clr")
c(f"v_mov_b32 v{Z+7}, 0\nv_mov_b32 v9, {f2u(C1):#x}")
EG=[f"ds_read_b128 v[{RE+4*j}:{RE+4*j+3}], v{aE+j}" for j in range(13)]
emit(c, EG[:2])
tr(c,'C','zg')
cslot(); send_addr(c)
for t in range(6): c(f"v_lshl_or_b32 v{Z+t}, v{RW+2*t+1}, 16, v{RW+2*t}")
c(f"v_mfma_f32_32x32x16_bf16 v[{T0}:{T0+15}], v[{A1}:{A1+3}], v[{Z}:{Z+3}], 0")
c(f"v_mfma_f32_32x32x16_bf16 v[{T0}:{T0+15}], v[{A1+4}:{A1+7}], v[{Z+4}:{Z+7}], v[{T0}:{T0+15}]")
emit(c, EG[2:8])
go=gelu_ops([T0+i for i in range(8)],[RW+i for i in range(8)],9)
for i,o in enumerate(go):
    c(o)
    if i in (8,16,24,32,40): c(EG[8+i//8-1])
arrive(c,C_TAB)
for i in range(4): c(f"v_cvt_pk_bf16_f32 v{G+i}, v{T0+2*i}, v{T0+2*i+1}")
c(f"v_mfma_f32_32x32x16_bf16 v[{T1}:{T1+15}], v[{A2}:{A2+3}], v[{G}:{G+3}], 0")
w4(c, rdy, "rdy")
for e_ in range(8): c(f"v_mov_b32 v{X+8*e_+7}, 0")
for j in range(13): c(f"v_mul_f32 v{AA+j}, {f2u(-1.4426950409):#x}, v{T1+j}")
for j in range(13): c(f"v_exp_f32 v{AA+j}, v{AA+j}")
for j in range(13): c(f"v_add_f32 v{AA+j}, 1.0, v{AA+j}")
for j in range(13): c(f"v_rcp_f32 v{AA+j}, v{AA+j}")
stamp(c,2); tr(c,'C','senet')
def read_rw(vb, j): return f"ds_read_b128 v[{RW+4*j}:{RW+4*j+3}], v{vb} offset:{16*j}"
def perm_frag(F, R, e):
    wi=e>>1; hs=e&1
    o=[f"v_perm_b32 v{F+pp}, v{R+4*(2*pp+1)+wi}, v{R+4*(2*pp)+wi}, {sSEL[hs]}" for pp in range(6)]
    return o+[f"v_perm_b32 v{F+6}, v{R+48+wi}, v{R+48+wi}, {sSELZ[hs]}"]
def v_frag(e):
    wi=e>>1; o=[]; F=X+8*e
    for j in range(13):
        t=T0+j
        o.append(f"v_and_b32 v{t}, 0xffff0000, v{RE+4*j+wi}" if e&1 else f"v_lshlrev_b32 v{t}, 16, v{RE+4*j+wi}")
    for j in range(13): o.append(f"v_mul_f32 v{T0+j}, v{T0+j}, v{AA+j}")
    for j in range(0,12,2): o.append(f"v_cvt_pk_bf16_f32 v{F+(j>>1)}, v{T0+j}, v{T0+j+1}")
    o.append(f"v_cvt_pk_bf16_f32 v{F+6}, v{T0+12}, 0")
    return o
VW=int(opt('--vw',6))
for e_ in range(VW): emit(c, v_frag(e_))
tr(c,'C','vf4')
w4(c, rdyissue, "rdi")
swait(c,C_W1,4)
stamp(c,4); tr(c,'C','w1all')
for j in range(13): c(read_rw(3,j))
arrive(c,C_RP)
for e_ in range(VW,8): emit(c, v_frag(e_))
w4(c, rdycheck, "nochk")
tr(c,'C','vf8')
def mm(T, B):
    return [f"v_mfma_f32_32x32x16_bf16 v[{T}:{T+15}], v[{FA}:{FA+3}], v[{B}:{B+3}], 0",
            f"v_mfma_f32_32x32x16_bf16 v[{T}:{T+15}], v[{FA+4}:{FA+7}], v[{B+4}:{B+7}], v[{T}:{T+15}]"]
def pack1(wi, q, ii):
    o=[f"v_mul_f32 v{T0+ii}, v{T0+ii}, v{AA+ii}", f"v_mul_f32 v{T1+ii}, v{T1+ii}, v{AA+ii}"] if q else []
    return o+[f"v_cvt_pk_bf16_f32 v{RW+4*ii+wi}, v{T0+ii}, v{T1+ii}"]
def diag1(ii, first): return f"v_mfma_f32_32x32x16_bf16 v[{DA}:{DA+15}], v[{RT+4*ii}:{RT+4*ii+3}], v[{RW+4*ii}:{RW+4*ii+3}], {'0' if (first and ii==0) else f'v[{DA}:{DA+15}]'}"
def rtg(j): return f"ds_read_b128 v[{RT+4*j}:{RT+4*j+3}], v{aT+j}"
c(f"v_mov_b32 v{FA+7}, 0")
emit(c, perm_frag(FA,RW,0))
for wi in range(4):
    e0,e1=2*wi,2*wi+1
    emit(c, mm(T0,X+8*e0)); emit(c, perm_frag(FA,RW,e1))
    for j in (2*e0,2*e0+1):
        if j<13: c(rtg(j))
    emit(c, mm(T1,X+8*e1))
    for j in (2*e1,2*e1+1):
        if j<13: c(rtg(j))
    if wi<3:
        emit(c, perm_frag(FA,RW,e0+2))
        for ii in range(13): c(pack1(wi,True,ii)[0])
        for ii in range(13): emit(c, pack1(wi,True,ii)[1:])
    else:
        tr(c,'C','qmm')
        for ii in range(13): c(pack1(wi,True,ii)[0])
        swait(c,C_W2,4); tr(c,'C','w2all')
        pk=[pack1(wi,True,ii)[1:] for ii in range(13)]
        emit(c, pk[0]);
        for ii in range(13):
            if ii+1<13: emit(c, pk[ii+1])
            else: c(f"v_mov_b32 v{FB+7}, 0\ns_nop 0")
            c(diag1(ii,True))
            if ii>0: c(read_rw(vQ,ii-1))
        c(read_rw(vQ,12))
stamp(c,5); tr(c,'C','diagq')
emit(c, perm_frag(FB,RE,0)); emit(c, perm_frag(FA,RW,0))
for wi in range(4):
    e0,e1=2*wi,2*wi+1
    emit(c, mm(T0,FB)); emit(c, perm_frag(FA,RW,e1)+perm_frag(FB,RE,e1)); emit(c, mm(T1,FB))
    if wi<3:
        emit(c, perm_frag(FA,RW,e0+2)+perm_frag(FB,RE,e0+2))
        for ii in range(13): emit(c, pack1(wi,False,ii))
    else:
        swait(c,C_RDY,1)
        c("s_mov_b32 s82, 0xaaaaaaaa\ns_mov_b32 s83, 0xaaaaaaaa\ns_mov_b32 s84, 0xcccccccc\ns_mov_b32 s85, 0xcccccccc\ns_mov_b32 s72, 0xff00ff00\ns_mov_b32 s73, 0xff00ff00\ns_mov_b32 s74, 0xffff0000\ns_mov_b32 s75, 0xffff0000\ns_mov_b32 s76, 0x0f0f0f0f\ns_mov_b32 s77, 0xf0f0f0f0")
        emit(c, pack1(wi,False,0)+pack1(wi,False,1)+pack1(wi,False,2))
        for ii in range(13):
            if ii+3<13: emit(c, pack1(wi,False,ii+3))
            c(diag1(ii,False))
for i in range(8): c(f"v_cndmask_b32 v{DA+2*i}, v{DA+2*i}, v{DA+2*i+1}, s[82:83]")
for i in range(4): c(f"v_cndmask_b32 v{DA+4*i}, v{DA+4*i}, v{DA+4*i+2}, s[84:85]")
for i in range(2): c(f"v_cndmask_b32 v{DA+8*i}, v{DA+8*i}, v{DA+8*i+4}, s[72:73]")
c(f"v_cndmask_b32 v{DA}, v{DA}, v{DA+8}, s[74:75]")
c(f"v_cndmask_b32 v10, 0, v{DA}, s[76:77]")
c.label("L_csend")
tr(c,'C','end')
stamp(c,6)
send(c,"s79")
e=c
e.label("L_fin")
if PAD:
    e.label("L_pad")
    e._emit("s_memrealtime s[100:101]"); e._emit("s_waitcnt lgkmcnt(0)"); e._emit("s_sub_u32 s100, s100, s92"); e._emit(f"s_cmp_lt_u32 s100, {PAD}"); e._emit("s_cbranch_scc1 L_pad")
if TRACE:
    e._emit("s_memrealtime s[100:101]"); e._emit("s_waitcnt lgkmcnt(0)")
    e._emit(f"s_cmp_eq_u32 {sWAVE}, {0 if TRACE in ('D','S') else SW}"); e._emit("s_cbranch_scc0 L_end")
    e._emit("v_mov_b32 v16, s92"); e._emit("v_mov_b32 v17, s100")
    for i in range(14): e._emit(f"s_sub_u32 s{TRREG[i]}, s{TRREG[i]}, s86"); e._emit(f"v_mov_b32 v{18+i}, s{TRREG[i]}")
    e._emit(f"s_lshl_b32 {sT0}, s2, 6"); e._emit(f"s_add_u32 {sT0}, {sT0}, 0x8000000"); e._emit("v_mov_b32 v3, 0"); e._emit("s_mov_b64 exec, 1")
    for i in range(4): e._emit(f"buffer_store_dwordx4 v[{16+4*i}:{19+4*i}], v3, {sWS}, {sT0} offen offset:{16*i}")
    sys.stderr.write(" ".join(f"{i+2}:{n}" for i,n in enumerate(trn[TRACE]))+"\n")
elif STAMP:
    e._emit(f"s_memtime s[70:71]"); e._emit("s_memrealtime s[100:101]"); e._emit("s_waitcnt lgkmcnt(0)")
    e._emit(f"s_cmp_eq_u32 {sWAVE}, 0"); e._emit(f"s_cselect_b32 {sT0}, 1, 0"); e._emit(f"s_cmp_eq_u32 {sWAVE}, {SW}"); e._emit(f"s_cselect_b32 {sT1}, 1, 0"); e._emit(f"s_or_b32 {sT0}, {sT0}, {sT1}"); e._emit("s_cbranch_scc0 L_end")
    for i in range(1,8): e._emit(f"s_sub_u32 s{STR[i]}, s{STR[i]}, s86")
    e._emit("v_mov_b32 v16, s92"); e._emit("v_mov_b32 v17, s100")
    for i in range(1,8): e._emit(f"v_mov_b32 v{17+i}, s{STR[i]}")
    e._emit(f"s_lshl_b32 {sT0}, s2, 6"); e._emit(f"s_add_u32 {sT0}, {sT0}, 0x8000000")
    e._emit("v_mov_b32 v3, 0"); e._emit("s_mov_b64 exec, 1")
    e._emit(f"s_cmp_eq_u32 {sWAVE}, 0"); e._emit("s_cbranch_scc0 L_st4b")
    e._emit(f"buffer_store_dwordx4 v[16:19], v3, {sWS}, {sT0} offen"); e._emit(f"buffer_store_dwordx4 v[20:23], v3, {sWS}, {sT0} offen offset:16"); e._emit(f"buffer_store_dword v24, v3, {sWS}, {sT0} offen offset:32")
    e._emit("s_branch L_end")
    e.label("L_st4b")
    e._emit(f"buffer_store_dwordx4 v[18:21], v3, {sWS}, {sT0} offen offset:36"); e._emit(f"buffer_store_dwordx3 v[22:24], v3, {sWS}, {sT0} offen offset:52")
e.label("L_end")
e._emit("s_endpgm")
out = d.text() + "\n" + c.text() + f"""
.section .rodata,"a"
.p2align 6
.amdhsa_kernel {NAME}
  .amdhsa_next_free_vgpr 256
  .amdhsa_next_free_sgpr 102
  .amdhsa_accum_offset 256
  .amdhsa_group_segment_fixed_size 0
  .amdhsa_kernarg_size 88
  .amdhsa_user_sgpr_count 2
  .amdhsa_user_sgpr_kernarg_segment_ptr 1
  .amdhsa_system_sgpr_workgroup_id_x 1
.end_amdhsa_kernel
"""
print(out)
sys.stderr.write(f"nops D {d.nops} C {c.nops}\n")
```

```python
import sys, struct
from asmlib import Asm
def opt(name, default=None):
    if name in sys.argv:
        return sys.argv[sys.argv.index(name)+1]
    return default
STAMP = '--stamp' in sys.argv
SW = int(opt('--sw', 5))
PRIO_D = int(opt('--prioD', 0)); PRIO_C = int(opt('--prioC', 0))
PRE = int(opt('--pre', 6))
NB1 = int(opt('--nb1', 8))
RAMP = int(opt('--ramp', 1))
FRONT = float(opt('--front', 1.0))
MODE = opt('--mode','v')
NR = int(opt('--nr', 10))
PRIO0 = int(opt('--prio0', 1))
NOROT = '--norot' in sys.argv
NOC = '--noC' in sys.argv; NOD = '--noD' in sys.argv
NAME = "standalone__deep_cross_fibinet__recsys_kernel"
def f2u(x): return struct.unpack('<I', struct.pack('<f', x))[0]

TW=128000; TM=144000; XR=146000
IDXS=XR; WBIS=XR+13312; SE1S=WBIS+1024; SE2S=SE1S+1024
WCB=XR; WCA=XR+11264; SYNC=163776
NQA = 6 if MODE=='v' else 2
HR = (NQA*64)//13
NQB = (676-13*HR+63)//64
SCR = WCA+NQA*1024
assert WCA+NQA*1024+(0 if MODE=='v' else 4096)<=SYNC and SE2S+1024<=SYNC
LDS_BYTES=163840
sIDX,sTABL,sSE1,sSE2,sWBI,sWC,sWD1,sWD2,sOUT,sDBG,sWS = [f"s[{4+4*i}:{7+4*i}]" for i in range(11)]
SRD_SIZES=[425984,128000,676,676,8192,173056,851968,512,8192,256,0x10000000]
sWAVE,sNB,sMB,sROT,sECH,sP,sG8,sT0,sT1,sT2,sT3,sSPIN = [f"s{i}" for i in range(48,60)]
sMK="s[98:99]"; sFL="s3"
sW0=73
sSEL=["s60","s61"]; sSELZ=["s73","s74"]; sTWc="s75"; sTMc="s76"
STR=[86,88,90,62,64,66,68,70]
sTL=["s94","s95","s96","s97","s85"]
SPINMAX="0x40000"
C_W1,C_RP,C_W2,C_TAB,C_RED,C_RDY,C_TW,C_STG = range(8)
PF = int(opt('--pf',1))
EARLY = int(opt('--early',2))
PRIOD0 = int(opt('--priod0',0))
POST = int(opt('--post',2))
TRACE = opt('--trace','')
TRREG = [4,6,8,10,12,14,16,18,20,22,88,90,62,64]
trn = {'D':[], 'C':[], 'S':[], 'T':[], 'H':[]}
if TRACE=='S': TRREG=[88,90,62,64,66,68,70,60,62,62,62,62,62,62]
if TRACE=='T': TRREG=[88,90,62,64,66,68,70,82,62,62,62,62,62,62]
def tr(a, role, name):
    if TRACE==role and len(trn[role])<14:
        r=TRREG[len(trn[role])]; trn[role].append(name); a._emit(f"s_memtime s[{r}:{r+1}]")
DBG0 = '--dbg0' in sys.argv
def stamp0(a, i):
    if DBG0: a._emit(f"s_memtime s[{STR[i]}:{STR[i]+1}]")
def stamp(a, i):
    if STAMP and not TRACE and not (DBG0 and i in (1,2,4,5,6)): a._emit(f"s_memtime s[{STR[i]}:{STR[i]+1}]")
def L(text): return [x.strip() for x in text.split('\n') if x.strip()]

a = Asm()
a.raw(f"; @launch grid=(256,1,1) block=(512,1,1) lds={LDS_BYTES}")
a.raw('.amdgcn_target "amdgcn-amd-amdhsa--gfx950"')
a.raw(f".text\n.globl {NAME}\n.p2align 8\n.type {NAME},@function\n{NAME}:")
if STAMP:
    a._emit("s_memrealtime s[92:93]"); a._emit(f"s_memtime s[86:87]")
PAD=int(opt('--pad',0))
if PAD: a._emit("s_memrealtime s[92:93]")
a("s_cmp_ge_u32 s2, 256\ns_cbranch_scc1 L_end")
a._emit("s_load_dwordx16 s[60:75], s[0:1], 0"); a._emit("s_load_dwordx4 s[76:79], s[0:1], 64"); a._emit("s_load_dwordx2 s[44:45], s[0:1], 80")
a("v_lshrrev_b32 v2, 6, v0\nv_and_b32 v1, 63, v0")
CPF=int(opt('--cpf',6))
if CPF:
    a._emit("s_getpc_b64 s[82:83]")
    a._emit("s_lshr_b32 s84, s2, 3"); a._emit(f"s_mul_i32 s84, s84, {CPF*128}"); a._emit("v_lshlrev_b32 v3, 7, v0"); a._emit("v_add_u32 v3, s84, v3")
    a._emit(f"v_min_u32 v3, CODE_END-{NAME}-64, v3")
    a._emit(f"v_cmp_gt_u32 vcc, {CPF}, v0"); a._emit("s_and_saveexec_b64 s[84:85], vcc"); a._emit("s_cbranch_execz L_nocpf")
    a._emit("global_load_dword v253, v3, s[82:83]")
    a.label("L_nocpf")
    a._emit("s_mov_b64 exec, -1")
a(f"v_readfirstlane_b32 {sWAVE}, v2")
vL16=92; vT0=93; vTa=94; vTb=95; vB0=96; vTWa=97; vTMa=98; vX=99; vY=100; vC=101; vM=102; vZ=103
WB=104; BF=112; DD=128; vF=136; vW7=137
a(f"v_mov_b32 v{vX}, {SYNC}\nv_mov_b32 v{vC}, 0\nv_lshl_add_u32 v{vX}, v1, 2, v{vX}\ns_mov_b64 exec, 0xff\nds_write_b32 v{vX}, v{vC}\ns_mov_b64 exec, -1")
for i in range(11):
    a(f"s_mov_b32 s{6+4*i}, {SRD_SIZES[i]}\ns_mov_b32 s{7+4*i}, 0x20000")
XL = int(opt('--xl',1))
a(f"s_lshr_b32 {sROT}, s2, 3")
if XL:
    a(f"s_and_b32 {sT0}, s2, 7\ns_lshl_b32 s2, {sT0}, 5\ns_add_u32 s2, s2, {sROT}")
a(f"s_and_b32 {sNB}, s2, 3\ns_lshr_b32 {sMB}, s2, 2\ns_lshr_b32 {sP}, s2, 3\ns_and_b32 {sG8}, s2, 7")
a(f"s_and_b32 {sT0}, {sMB}, 1\ns_lshl_b32 {sECH}, {sNB}, 1\ns_add_u32 {sECH}, {sECH}, {sT0}\ns_mov_b32 {sSPIN}, 0")
a(f"v_lshlrev_b32 v{vL16}, 4, v1")
a(f"v_and_b32 v{vX}, 7, v1\nv_lshrrev_b32 v{vY}, 4, v1\nv_xor_b32 v{vX}, v{vX}, v{vY}\nv_lshlrev_b32 v{vX}, 4, v{vX}")
a(f"v_lshrrev_b32 v{vC}, 3, v1\nv_lshl_or_b32 v{vT0}, v{vC}, 7, v{vX}")
a(f"v_lshlrev_b32 v{vW7}, 7, v1")
a(f"s_add_u32 {sT0}, {sWAVE}, 11\ns_cmp_eq_u32 {sWAVE}, 4\ns_cselect_b32 {sT0}, 31, {sT0}\ns_cmp_lt_u32 {sWAVE}, 4\ns_cselect_b32 {sT0}, {sWAVE}, {sT0}\ns_cselect_b32 {sT1}, 4, 3\ns_add_u32 {sT0}, {sT0}, {sROT}")
def tl_calc(a,k): a(f"s_and_b32 {sTL[k]}, {sT0}, 31\ns_lshl_b32 {sTL[k]}, {sTL[k]}, 12\ns_min_u32 {sTL[k]}, {sTL[k]}, {121*1024}\ns_add_u32 {sT0}, {sT0}, {sT1}")
for k in range(5): tl_calc(a,k)
def tile_pre(k):
    return L(f"s_lshr_b32 {sFL}, {sTL[k]}, 4\ns_and_b32 {sFL}, {sFL}, 64\nv_xor_b32 v{vTa}, {sFL}, v{vT0}\nv_xor_b32 v{vTb}, 64, v{vTa}")
for o in tile_pre(0): a(o)
a(f"v_and_b32 v{vM}, 15, v1\nv_lshrrev_b32 v{vC}, 1, v{vM}\nv_xor_b32 v{vC}, v{vC}, v{vY}\nv_lshlrev_b32 v{vC}, 4, v{vC}")
a(f"v_lshl_or_b32 v{vB0}, v{vM}, 7, v{vC}")
a(f"v_lshrrev_b32 v6, 5, v1\nv_lshl_add_u32 v{vX}, v6, 4, v{vM}\nv_lshlrev_b32 v{vX}, 1, v{vX}\nv_add_u32 v{vTMa}, {TM}, v{vX}")
a(f"v_bfe_u32 v{vTWa}, v1, 4, 1\nv_add_lshl_u32 v{vTWa}, v{vX}, v{vTWa}, 3\nv_add_u32 v{vTWa}, {TW}, v{vTWa}")
a(f"v_lshrrev_b32 v{vC}, 2, v{vM}\nv_lshl_add_u32 v{vC}, v{vY}, 3, v{vC}\nv_and_b32 v{vX}, 1, v1\nv_lshl_add_u32 v{vC}, v{vC}, 1, v{vX}\nv_lshlrev_b32 v{vC}, 3, v{vC}\nv_add_u32 v{vC}, {WBIS}, v{vC}")
a(f"v_and_b32 v5, 31, v1\nv_lshl_add_u32 v7, v5, 1, v6\nv_mul_u32_u24 v7, 52, v7\nv_mov_b32 v{vZ}, 0x70")
a(f"s_mul_i32 s80, {sP}, 13312\ns_lshl_b32 {sT0}, {sWAVE}, 11\ns_add_u32 s81, {sT0}, {IDXS}\ns_add_u32 s80, s80, {sT0}\ns_mov_b32 m0, s81\ns_lshl_b32 s81, {sECH}, 4")
DREF=[None]; PB={}
def tdma(a, n):
    k=n>>2; q=n&3
    if q==0: a(f"s_mov_b32 m0, {sTL[k]}")
    va,vb=(vTa,vTb) if k==0 else (PB[id(a)]+4*NTS[PB[id(a)]]+2*k, PB[id(a)]+4*NTS[PB[id(a)]]+1+2*k)
    a(f"buffer_load_dwordx4 v{vb if q&1 else va}, {sTABL}, {sTL[k]} offen offset:{1024*q} lds", tag=f'tile{k}')
def prefetch(a):
    a(f"s_cmp_eq_u32 {sWAVE}, 2\ns_cbranch_scc0 L_pf0")
    a._emit("s_mov_b64 exec, 0xf"); a._emit(f"buffer_load_dword v254, v{vW7}, {sWD2}, 0 offen"); a._emit("s_mov_b64 exec, -1")
    a.label("L_pf0")
    a(f"s_cmp_lt_u32 {sWAVE}, 2\ns_cbranch_scc0 L_nopf")
    a._emit(f"s_cmp_eq_u32 {sWAVE}, 0"); a._emit("s_cbranch_scc0 L_pf1")
    if XL:
        a._emit(f"s_lshr_b32 s100, {sROT}, 2"); a._emit(f"s_mul_i32 s100, s100, {208*512}")
    else: a._emit(f"s_mul_i32 s100, {sROT}, {52*512}")
    a._emit(f"s_lshl_b32 s101, {sNB}, 7"); a._emit(f"s_add_u32 s100, s100, s101")
    a._emit(f"v_lshlrev_b32 v255, 9, v1"); a._emit("s_mov_b32 exec_hi, 0xfffff")
    for i in range(4 if XL else 1):
        a._emit(f"buffer_load_dword v254, v255, {sWD1}, s100 offen"); a._emit(f"s_add_u32 s100, s100, {52*512}")
    a._emit("s_mov_b64 exec, -1"); a._emit("s_branch L_pfd")
    a.label("L_pf1")
    a._emit(f"s_mul_i32 s100, {sROT}, {43*128}"); a._emit("s_mov_b32 exec_hi, 0x7ff")
    a._emit(f"buffer_load_dword v254, v{vW7}, {sWC}, s100 offen"); a._emit("s_mov_b64 exec, -1"); a._emit("s_branch L_pfd")
    a.label("L_nopf")
    a.label("L_pfd")
PFPOS=int(opt('--pfpos',7))
def srd(a, ids):
    for i in ids:
        src = 60+2*i if i<8 else 76+2*(i-8)
        a(f"s_mov_b64 s[{4+4*i}:{5+4*i}], s[{src}:{src+1}]")
def kwait(a):
    a._emit("s_waitcnt lgkmcnt(0)"); a.lgq=[]
a(f"s_cmp_ge_u32 {sWAVE}, 6")
kwait(a)
srd(a,[0,1])
a("s_cbranch_scc1 L_stg67")
a(f"buffer_load_dwordx4 v{vL16}, {sIDX}, s80 offen lds", tag='stg')
a(f"buffer_load_dwordx4 v{vL16}, {sIDX}, s80 offen offset:1024 lds", tag='stg')
a("s_branch L_stgdone")
a.label("L_stg67")
srd(a,[2,3,4])
a(f"s_cmp_eq_u32 {sWAVE}, 7\ns_cbranch_scc1 L_stg7")
a._emit(f"buffer_load_dwordx4 v{vL16}, {sIDX}, s80 offen lds")
a._emit(f"s_mov_b32 m0, {WBIS}"); a._emit("s_nop 0")
a._emit(f"buffer_load_dwordx4 v{vW7}, {sWBI}, s81 offen lds")
a._emit("s_branch L_stgdone")
a.label("L_stg7")
a._emit(f"s_mov_b32 m0, {SE1S}"); a._emit("s_nop 0")
a._emit(f"buffer_load_dwordx4 v{vL16}, {sSE1}, 0 offen lds")
a._emit(f"s_mov_b32 m0, {SE2S}"); a._emit("s_nop 0")
a._emit(f"buffer_load_dwordx4 v{vL16}, {sSE2}, 0 offen lds")
a.label("L_stgdone")
for n in range(4): tdma(a,n)
srd(a,[5,6,7,8,9])
a(f"s_cmp_ge_u32 {sWAVE}, 4\ns_cbranch_scc1 L_cross")

def wb_read():
    return [f"ds_read_b64_tr_b16 v[{WB+4*s+2*hf}:{WB+4*s+2*hf+1}], v{vC} offset:{s*512+hf*64}" for s in range(2) for hf in range(2)]
NTS={}
def static_tiles(P, NT, ks=None):
    NTS[P]=NT; o=[]
    for k in (range(NT) if ks is None else ks):
        o+=L(f"s_lshr_b32 {sFL}, {sTL[k]}, 4\ns_and_b32 {sFL}, {sFL}, 64\nv_xor_b32 v{P+k}, {sFL}, v{vB0}\nv_add_u32 v{P+k}, {sTL[k]}, v{P+k}\nv_xor_b32 v{P+NT+k}, 64, v{P+k}")
        if k>0: o+=L(f"v_xor_b32 v{P+4*NT+2*k}, {sFL}, v{vT0}\nv_xor_b32 v{P+4*NT+1+2*k}, 64, v{P+4*NT+2*k}")
        o+=L(f"s_lshr_b32 {sFL}, {sTL[k]}, 3\nv_add_u32 v{P+2*NT+k}, {sFL}, v{vTWa}\ns_lshr_b32 {sFL}, {sTL[k]}, 6\nv_add_u32 v{P+3*NT+k}, {sFL}, v{vTMa}")
    o+=L(f"v_cmp_gt_u32 {sMK}, 8, v{vM}\nv_cmp_eq_u32 vcc, 8, v{vM}\nv_mov_b32 v{vY}, 0x3c803c80\nv_cndmask_b32 v{vY}, 0, v{vY}, vcc")
    return o
def wb_fix():
    return [f"v_cndmask_b32 v{WB+r}, v{vY}, v{WB+r}, {sMK}" for r in range(8)]
def idx_read(dst, vb):
    o=[f"ds_read2_b32 v[{dst+2*i}:{dst+2*i+1}], v{vb} offset0:{2*i} offset1:{2*i+1}" for i in range(6)]
    return o+[f"ds_read_b32 v{dst+12}, v{vb} offset:48"]
XP = opt('--xp','')
def tileR(k,P):
    o=[('WT',f'tile{k}')]
    for sub in range(2):
        o.append(f"ds_read_b128 v[{BF+8*sub}:{BF+8*sub+3}], v{P+k} offset:{sub*2048}")
        o.append(f"ds_read_b128 v[{BF+8*sub+4}:{BF+8*sub+7}], v{P+NTS[P]+k} offset:{sub*2048}")
    return o
def tileM(k):
    o=[f"v_mfma_f32_16x16x32_bf16 v[{DD+4*sub}:{DD+4*sub+3}], v[{WB}:{WB+3}], v[{BF+8*sub}:{BF+8*sub+3}], 0" for sub in range(2)]
    o+=[f"v_mfma_f32_16x16x32_bf16 v[{DD+4*sub}:{DD+4*sub+3}], v[{WB+4}:{WB+7}], v[{BF+8*sub+4}:{BF+8*sub+7}], v[{DD+4*sub}:{DD+4*sub+3}]" for sub in range(2)]
    return o
def tileC(k, H):
    h=H+4*k
    o=L(f"v_cvt_pk_bf16_f32 v{h}, v{DD}, v{DD+1}\nv_cvt_pk_bf16_f32 v{h+2}, v{DD+4}, v{DD+5}\nv_cvt_pk_bf16_f32 v{h+1}, v{DD+2}, v{DD+3}\nv_cvt_pk_bf16_f32 v{h+3}, v{DD+6}, v{DD+7}")
    return o+L(f"v_permlane32_swap_b32 v{h}, v{h+2}\nv_permlane32_swap_b32 v{h+1}, v{h+3}")
def tileW(ks, H, P):
    o=["s_mov_b32 exec_lo, 0xffff","s_mov_b32 exec_hi, 0xffff"]+[f"ds_write_b16 v{P+3*NTS[P]+k}, v{H+4*k+2}" for k in ks]+["s_mov_b64 exec, -1"]
    return [('GRP',o)]+[f"ds_write_b64 v{P+2*NTS[P]+k}, v[{H+4*k}:{H+4*k+1}]" for k in ks]
def emit(a, ops):
    for o in ops:
        if isinstance(o,tuple):
            if o[0]=='WT': a.wait_tag(o[1])
            elif o[0]=='GRP': emit(a,o[1])
            elif o[0]=='FN': o[1]()
        else: a(o)
def spread(a, dmas, fill, frac=1.0, mark=False):
    n=len(dmas); m=int(len(fill)*frac); per=m/max(n,1); pos=0
    for i,dm in enumerate(dmas):
        dm()
        if mark and i==n-1: tr(a,'S' if a is d else 'T','T15')
        end=int(round(per*(i+1))); emit(a, fill[pos:end]); pos=end
    emit(a, fill[pos:])
SY={}
def arrive(a, cnt, vA=5, vO=6):
    vS,v1_,_=SYX(a)
    a(f"s_mov_b64 exec, 1\nds_add_u32 v{vS}, v{v1_} offset:{4*cnt}\ns_mov_b64 exec, -1")
def SYX(a): return a.sy
lab=[0]
def swait(a, cnt, n, vA=5, vO=6, sleep=0):
    lab[0]+=1; Lb=f"L_sw{lab[0]}"
    vA,_,vO=SYX(a)
    a._emit(f"ds_read_b32 v{vO}, v{vA} offset:{4*cnt}"); a._emit("s_waitcnt lgkmcnt(0)"); a.lgq=[]
    a._emit(f"v_readfirstlane_b32 s100, v{vO}"); a._emit("s_nop 0"); a._emit(f"s_cmp_ge_u32 s100, {n}"); a._emit(f"s_cbranch_scc1 {Lb}x")
    a.label(Lb)
    a._emit(f"s_sleep {max(sleep,1)}")
    a._emit(f"ds_read_b32 v{vO}, v{vA} offset:{4*cnt}"); a._emit("s_waitcnt lgkmcnt(0)")
    a._emit(f"v_readfirstlane_b32 s100, v{vO}"); a._emit(f"s_add_u32 {sSPIN}, {sSPIN}, 1"); a._emit(f"s_cmp_ge_u32 {sSPIN}, {SPINMAX}"); a._emit(f"s_cbranch_scc1 {Lb}x")
    a._emit(f"s_cmp_ge_u32 s100, {n}"); a._emit(f"s_cbranch_scc0 {Lb}")
    a.label(Lb+"x")
C0=-2.302208198; C1=C0*0.044715
def gelu_ops(xs, ts, vC1, k=None):
    o=[]
    for x,t in zip(xs,ts): o.append(f"v_mul_f32 v{t}, v{x}, v{x}")
    for x,t in zip(xs,ts): o.append(f"v_fmaak_f32 v{t}, v{vC1}, v{t}, {f2u(C0):#x}")
    for x,t in zip(xs,ts): o.append(f"v_mul_f32 v{t}, v{t}, v{x}")
    for x,t in zip(xs,ts): o.append(f"v_exp_f32 v{t}, v{t}")
    for x,t in zip(xs,ts): o.append(f"v_add_f32 v{t}, 1.0, v{t}" if k is None else f"v_fma_f32 v{t}, v{t}, {k}, {k}")
    for x,t in zip(xs,ts): o.append(f"v_rcp_f32 v{t}, v{t}")
    for x,t in zip(xs,ts): o.append(f"v_mul_f32 v{x}, v{x}, v{t}")
    return o
def send_addr(a):
    a("v_bfe_u32 v7, v1, 4, 1\nv_and_b32 v8, 15, v1\nv_lshlrev_b32 v8, 2, v8\nv_lshl_add_u32 v8, v7, 10, v8")
def send(a, sreg, sflag, q=12):
    a("v_mov_b32 v11, v10")
    a("v_permlane32_swap_b32 v10, v11")
    a(f"v_add_f32 v10, v10, v11\nv_min_u32 v{q}, -2, v10")
    for i in (1,2,3): a(f"v_mov_b32_dpp v{q+i}, v{q} quad_perm:[{i},{i},{i},{i}] row_mask:0xf bank_mask:0xf bound_ctrl:0")
    a("s_mov_b32 exec_lo, 0x11111111\ns_mov_b32 exec_hi, 0")
    lab[0]+=1; Lb=f"L_sn{lab[0]}"
    a(f"s_cmp_eq_u32 {sflag}, 2\ns_cbranch_scc1 {Lb}f")
    a(f"buffer_store_dwordx4 v[{q}:{q+3}], v8, {sWS}, {sreg} offen sc1")
    a(f"s_branch {Lb}d")
    a.label(Lb+"f")
    a._emit(f"buffer_store_dwordx4 v[{q}:{q+3}], v8, {sWS}, {sreg} offen")
    a.label(Lb+"d")
    a("s_mov_b64 exec, -1")
def swz(dst, src, tmp, sc):
    if 'A' in XP: return [f"v_lshlrev_b32 v{dst}, 7, v{src}"]
    return L(f"v_lshlrev_b32 v{tmp}, 3, v{src}\nv_bitop3_b32 v{tmp}, v{tmp}, {sc}, v{vZ} bitop3:0x28\nv_lshl_or_b32 v{dst}, v{src}, 7, v{tmp}")

c = a.fork()
d = a; DREF[0]=d; d.sy=(0,10,7)
if PRIOD0: d(f"s_setprio {PRIOD0}")
ACC=192; AD=140; EF=116; FF=100; RING=12; IR=192
assert RING+8*NR<=92
vWo=[2,3]
vSel=4; TT=92; WOFF=1024
d(f"s_and_b32 {sT0}, {sMB}, 1\ns_lshl_b32 {sT0}, {sT0}, 1\ns_lshr_b32 {sT1}, {sWAVE}, 1\ns_add_u32 {sT3}, {sT0}, {sT1}\ns_xor_b32 {sT1}, {sT1}, 1\ns_add_u32 {sT0}, {sT0}, {sT1}")
d(f"s_mul_i32 {sT3}, {sT3}, 3328\ns_mul_i32 {sT0}, {sT0}, 3328\ns_add_u32 {sT3}, {sT3}, {IDXS}\ns_add_u32 {sT0}, {sT0}, {IDXS}")
d(f"v_add_u32 v10, {sT0}, v7\nv_add_u32 v9, {sT3}, v7")
d(f"v_mul_u32_u24 v7, {13*64}, v6\nv_bfe_u32 v8, v1, 4, 1\nv_lshl_add_u32 v7, v8, 2, v7\nv_bfe_u32 v8, v1, 3, 1\nv_add_u32 v7, v7, v8\nv_and_b32 v11, 7, v1\nv_lshlrev_b32 v11, 4, v11\nv_lshl_or_b32 v{vWo[0]}, v7, 9, v11\nv_add_u32 v{vWo[1]}, 4096, v{vWo[0]}")
d(f"v_cmp_eq_u32 vcc, 0, v8\nv_mov_b32 v11, 0x03020706\nv_mov_b32 v{vSel}, 0x05040100\nv_cndmask_b32 v{vSel}, v11, v{vSel}, vcc")
d(f"s_lshr_b32 s101, {sROT}, {2 if XL else 0}")
d(f"s_add_u32 {sT2}, {sWAVE}, s101\ns_and_b32 {sT2}, {sT2}, 3\ns_lshl_b32 {sT3}, {sT2}, 13\ns_lshl_b32 {sT0}, {sNB}, 7\ns_add_u32 {sT3}, {sT3}, {sT0}\ns_lshl_b32 {sT2}, {sT2}, 5")
PD=224; PB[id(d)]=PD
tr(d,'S','karg')
for k in range(13): d(f"s_add_u32 s{sW0+k}, {sT3}, {32768*k}")
emit(d, static_tiles(PD,4))
for n in range(4,NB1): tdma(d,n)
tr(d,'S','preB1')
d.wait_tag('stg')
d("s_barrier")
tr(d,'S','B1')
def adr(k,mt,cc):
    if cc==1: return AD+14*mt+k
    if mt==0: return AD+27+k
    return AD+40+k if k<12 else AD+13
LZ=int(opt('--lazy',4))
def addr_calc(ks):
    o=[]
    for k in ks:
        for mt in range(2):
            r0=adr(k,mt,0); r1=adr(k,mt,1)
            o+=swz(r0, r1, r0, sT2)+[f"v_xor_b32 v{r1}, 16, v{r0}"]
    return o
def wl(n,t):
    k=n>>1; cc=n&1; r=RING+8*(n%NR)
    d(f"buffer_load_dwordx4 v[{r+4*t}:{r+4*t+3}], v{vWo[cc]}, {sWD1}, s{sW0+k} offen offset:{WOFF*t}", tag=f'w{n}')
nl=0
f2=wb_read()+idx_read(AD,9)+idx_read(AD+14,10)
HD=76
ac=addr_calc(range(LZ)); q_=len(ac)//4
f2+=wb_fix()+tileR(0,PD)+ac[:q_]+tileM(0)+ac[q_:2*q_]+tileC(0,HD)+tileR(1,PD)+ac[2*q_:3*q_]+tileM(1)+ac[3*q_:]+tileC(1,HD)
m_=int(len(f2)*FRONT)
spread(d,[ (lambda n=n: tdma(d,n)) for n in range(NB1,16)], f2[:m_], 1.0, True)
f2r=f2[m_:]
f3=f2r+tileR(2,PD)+tileW((0,1),HD,PD)+tileM(2)+tileC(2,HD)
spread(d,[(lambda n=n,t=t: wl(n,t)) for n in range(PRE) for t in range(2)], f3)
nl=PRE
tr(d,'S','f3')
emit(d, tileR(3,PD)); tr(d,'S','t3R')
emit(d, tileW((2,),HD,PD)+tileM(3)+tileC(3,HD)+tileW((3,),HD,PD))
d.wait_all_lgkm(); tr(d,'S','t3W')
d("s_barrier")
tr(d,'S','B3')
stamp(d,3); tr(d,'D','B3')
if PRIO_D!=PRIOD0: d(f"s_setprio {PRIO_D}")
QI = [int(x) for x in opt('--qi','0,2,4').split(',')]
AI = [int(x) for x in opt('--ai','8,10').split(',')]
BI = [int(x) for x in opt('--bi','15,16').split(',')]
vWC=5
d(f'v_mov_b32 v0, {SYNC}\nv_mov_b32 v10, 1\nv_mov_b32 v11, 0x70')
vZs=vZ; vZ=11; lazy=addr_calc(range(LZ,13)); vZ=vZs
S1=int(opt('--s1',9)); S2=int(opt('--s2',20))
d(f"v_lshlrev_b32 v{vWC}, 7, v1\ns_lshl_b32 {sT3}, {sECH}, 4")
def wcd(ldsbase, srcbase, i, npieces, nlines, tag):
    last=npieces-1; rem=nlines-64*last
    d(f"s_add_u32 {sT0}, {sWAVE}, {4*i}")
    if 4*i+3>=last:
        lo=min(rem,32); hi=max(rem-32,0)
        d(f"s_cmp_eq_u32 {sT0}, {last}\ns_cselect_b32 exec_lo, {hex((1<<lo)-1)}, -1\ns_cselect_b32 exec_hi, {hex((1<<hi)-1)}, -1\ns_cmp_gt_u32 {sT0}, {last}\ns_cselect_b32 exec_lo, 1, exec_lo\ns_cselect_b32 exec_hi, 0, exec_hi\ns_min_u32 {sT0}, {sT0}, {last}")
    d(f"s_lshl_b32 {sT1}, {sT0}, 10\ns_add_u32 m0, {sT1}, {ldsbase}\ns_lshl_b32 {sT0}, {sT0}, 13\ns_add_u32 {sT0}, {sT0}, {sT3}\ns_add_u32 {sT0}, {sT0}, {srcbase}")
    d(f"buffer_load_dwordx4 v{vWC}, {sWC}, {sT0} offen lds", tag=tag)
    if 4*i+3>=last: d("s_mov_b64 exec, -1")
sig={'w1':False,'w2':False}
def eread(n, mt):
    k=n>>1; cc=n&1; r=EF+8*(n%3)
    return f"ds_read_b128 v[{r+4*mt}:{r+4*mt+3}], v{adr(k,mt,cc)}"
for n in range(2):
    for mt in range(2): d(eread(n,mt))
for n in range(PRE,PRE+POST):
    for t in range(2): wl(n,t)
nl=PRE+POST
if NOD:
    d("v_mov_b32 v10, 0"); d("s_branch L_dpre")
LA = 1 if MODE=='v' else int(opt('--la',2))
def fbuf(n): return FF+8*(n&1) if MODE=='v' else 92+8*(n%3)
def transp(n):
    r=RING+8*(n%NR); f=fbuf(n)
    if MODE=='v':
        dpp=[f"v_mov_b32_dpp v{TT+i}, v{r+i} row_ror:8 row_mask:0xf bank_mask:0xf bound_ctrl:0" for i in range(8)]
        def P(i0,rr): return f"v_perm_b32 v{f+4*(rr&1)+2*(rr>>1)+i0}, v{TT+4*i0+rr}, v{r+4*i0+rr}, v{vSel}"
        def S(r0,i0): return f"v_permlane16_swap_b32 v{f+4*r0+i0}, v{f+4*r0+2+i0}"
        return [[dpp[0],dpp[2],dpp[1],dpp[3],P(0,0),P(0,2)],[dpp[4],dpp[6],P(0,1),P(0,3),S(0,0)],[dpp[5],dpp[7],P(1,0),P(1,2),P(1,1)],[P(1,3),S(1,0),S(0,1),S(1,1)]]
    W=lambda i0: f"ds_write_b128 v4, v[{r+4*i0}:{r+4*i0+3}]"
    R=lambda i0,nt: f"ds_read_b64_tr_b16 v[{f+4*nt+2*i0}:{f+4*nt+2*i0+1}], v{11 if nt else 0}"
    return [[W(0),R(0,0),R(0,1)],[W(1),R(1,0),R(1,1)],[],[]]
for n in range(LA):
    d.wait_tag(f'w{n}')
    for g in transp(n): emit(d,g)
W2=RING
EP=int(opt('--ep',20)); RA=140
def relg(): pass
for n in range(26):
    G = transp(n+LA) if n+LA<26 else [[],[],[],[]]
    f=fbuf(n); e=EF+8*(n%3)
    mf=[]
    for nt in range(2):
        for mt in range(2):
            acc=ACC+16*(2*nt+mt)
            cs = "0" if n==0 else f"v[{acc}:{acc+15}]"
            mf.append(f"v_mfma_f32_32x32x16_bf16 v[{acc}:{acc+15}], v[{f+4*nt}:{f+4*nt+3}], v[{e+4*mt}:{e+4*mt+3}], {cs}")
    if n in (0,3,6,9,12,15,18,21,24): tr(d,'D',f'n{n}')
    vm=None
    idx=[i for i,(t,_) in enumerate(d.vmq) if t==f'w{n+LA}']
    if idx: vm=len(d.vmq)-1-max(idx)
    need=set(('v',r) for r in list(range(e,e+8))+list(range(f,f+8)))
    li=[i for i,(t,dr) in enumerate(d.lgq) if need & set(dr)]
    d.wait(vm=vm, lg=(len(d.lgq)-1-max(li)) if li else None)
    todo=[]
    cnt=2 if (RAMP and n>=RAMP-1) else 1
    while cnt>0 and nl<26 and nl-NR<=n+LA-1-(0 if MODE=='v' else 1):
        todo+=[(nl,t) for t in range(2)]; nl+=1; cnt-=1
    for i in range(4):
        d(mf[i])
        if i<len(todo): wl(*todo[i])
        if MODE=='v':
            if i==2 and n+2<26: d(eread(n+2,0))
            if i==3 and n+2<26: d(eread(n+2,1))
            emit(d,G[i])
            emit(d,lazy[8*n+2*i:8*n+2*i+2])
        else:
            emit(d,G[i])
            if i==2 and n+2<26: d(eread(n+2,0))
            if i==3 and n+2<26: d(eread(n+2,1))
        if i==3:
            if n in QI: wcd(WCB,86528,QI.index(n),11,676,'c1')
            if n in AI: wcd(WCA,0,AI.index(n),NQA,64*NQA,'c2')
            if n==BI[0]: swait(d,C_RP,4,6,7); relg()
            if n in BI: wcd(WCB,13*HR*128,BI.index(n),NQB,676-13*HR,'c2')
            if n==S1: d.wait_tag('c1'); arrive(d,C_W1,6,7); sig['w1']=True
            if n==S2: d.wait_tag('c2'); arrive(d,C_W2,6,7); sig['w2']=True
    if n==EP:
        d(f"v_lshrrev_b32 v6, 3, v1\nv_bfe_u32 v7, v1, 1, 2\nv_lshlrev_b32 v6, 11, v6\nv_lshl_or_b32 v6, v7, 9, v6\nv_lshl_or_b32 v6, v7, 5, v6\nv_and_b32 v7, 1, v1\nv_lshl_or_b32 v6, v7, 4, v6")
        d(f"v_xor_b32 v{RA}, {sT2}, v6\nv_xor_b32 v{RA+1}, 16, v{RA}")
        for k in range(3):
            d(f"s_lshr_b32 {sT1}, {sROT}, {2 if XL else 0}\ns_xor_b32 {sT0}, {sWAVE}, {k+1}\ns_add_u32 {sT0}, {sT0}, {sT1}\ns_and_b32 {sT0}, {sT0}, 3\ns_lshl_b32 {sT0}, {sT0}, 5\nv_xor_b32 v{RA+2+2*k}, {sT0}, v6\nv_xor_b32 v{RA+3+2*k}, 16, v{RA+2+2*k}")
    if n==EP+1:
        d(f"v_mov_b32 v9, {f2u(C1):#x}")
        d(f"s_and_b32 s60, {sMB}, 1\ns_lshl_b32 s60, s60, 1\ns_lshr_b32 {sT1}, {sWAVE}, 1\ns_add_u32 s60, s60, {sT1}\ns_lshl_b32 s60, s60, 11")
        d(f"s_lshl_b32 {sT1}, {sP}, 13\ns_add_u32 s60, s60, {sT1}\ns_lshl_b32 {sT1}, {sNB}, 7\ns_add_u32 s60, s60, {sT1}\ns_and_b32 {sT1}, {sWAVE}, 1\ns_lshl_b32 {sT1}, {sT1}, 6\ns_add_u32 s60, s60, {sT1}\ns_add_u32 s60, s60, 512")
        swait(d,C_TAB,4,6,7)
    if n==24:
        send_addr(d); swait(d,C_RDY,1,6,7,sleep=2); d('s_mov_b32 s61, s100')
    if n==22:
        W2=RING+8*(20%NR)
        assert (21%NR)==(20%NR)+1
        if MODE=='v':
            d(f"v_lshrrev_b32 v8, 5, v1\nv_lshlrev_b32 v8, 6, v8\ns_lshl_b32 {sT0}, {sNB}, 7\ns_and_b32 {sT1}, {sWAVE}, 1\ns_lshl_b32 {sT1}, {sT1}, 2\ns_add_u32 {sT0}, {sT0}, {sT1}")
            for r in range(4): d(f"buffer_load_dwordx3 v[{W2+4*r}:{W2+4*r+2}], v8, {sWD2}, {sT0} offen offset:{16*r}")
        else:
            d(f"v_lshrrev_b32 v8, 5, v1\nv_lshlrev_b32 v8, 3, v8\ns_lshl_b32 {sT0}, {sNB}, 7\ns_and_b32 {sT1}, {sWAVE}, 1\ns_lshl_b32 {sT1}, {sT1}, 6\ns_add_u32 {sT0}, {sT0}, {sT1}")
            for g in range(4): d(f"buffer_load_dwordx2 v[{W2+2*g}:{W2+2*g+1}], v8, {sWD2}, {sT0} offen offset:{16*g}")
assert nl==26, nl
assert sig['w1']
if not sig['w2']:
    d.wait_tag('c2'); arrive(d,C_W2,6,7)
stamp(d,4); tr(d,'D','loop')
d(f"s_bitcmp1_b32 {sWAVE}, 0\ns_cbranch_scc1 L_dep1")
WV=148
def redaddr(j): return (j>>1)&1, (j&3)*128 + (j>>2)*16384
def depi(d,P):
    order=[(nt,mt) for nt in range(2) for mt in range(2) if (P^nt)+2*mt]
    for (nt,mt) in order:
        cx=(P^nt)+2*mt; acc=ACC+16*(2*nt+mt)
        for q in range(4):
            v,off=redaddr(4*(cx-1)+q)
            d(f"ds_write_b128 v{RA+v}, v[{acc+4*q}:{acc+4*q+3}] offset:{off}")
    arrive(d,C_RED,6,7)
    for gp in range(4):
        for r in range(4):
            src=W2+4*r+2*(gp>>1); hi=gp&1
            d(f"v_and_b32 v{WV+4*gp+r}, 0xffff0000, v{src}" if hi else f"v_lshlrev_b32 v{WV+4*gp+r}, 16, v{src}")
    swait(d,C_RED,4,6,7)
    own=ACC+16*(2*P); RB=92
    for q in range(4):
        for k in range(3):
            v,off=redaddr(4*k+q)
            d(f"ds_read_b128 v[{RB+16*k+4*q}:{RB+16*k+4*q+3}], v{RA+2+2*k+v} offset:{off}")
    for j in range(4):
        for i in range(4): d(f"v_add_f32 v{RB+4*j+i}, v{RB+4*j+i}, v{RB+16+4*j+i}")
        for i in range(4): d(f"v_add_f32 v{own+4*j+i}, v{own+4*j+i}, v{RB+32+4*j+i}")
        for i in range(4): d(f"v_add_f32 v{own+4*j+i}, v{own+4*j+i}, v{RB+4*j+i}")
    for o in gelu_ops([own+i for i in range(16)], [164+i for i in range(16)], 9): d(o)
    d(f"v_mul_f32 v10, v{own}, v{WV}\nv_mul_f32 v11, v{own+1}, v{WV+1}")
    for i in range(2,16): d(f"v_fmac_f32 v{10+(i&1)}, v{own+i}, v{WV+i}")
    d("v_add_f32 v10, v10, v11")
d0=d.fork(); d1=d.fork(); d0.sy=d1.sy=d.sy
depi(d0,0); d0("s_branch L_dpre")
depi(d1,1)
d.lines += d0.lines; d.label("L_dep1"); d.lines += d1.lines
d.pos=d1.pos; d.w=d1.w; d.lgq=[]; d.vmq=[]
d.label("L_dpre")
stamp(d,6); tr(d,'D','epi')
tr(d,'H','presend')
send(d,'s60','s61')
tr(d,'H','sent')
d(f"s_cmp_eq_u32 {sWAVE}, 0\ns_cbranch_scc0 L_fin")
d(f"v_lshlrev_b32 v3, 4, v1\ns_lshl_b32 {sT0}, s2, 10")
d._emit(f"buffer_load_dwordx4 v[16:19], v3, {sWS}, {sT0} offen sc1")
d._emit("s_sleep 4")
d.label("L_poll")
d._emit(f"buffer_load_dwordx4 v[20:23], v3, {sWS}, {sT0} offen sc1")
d._emit("s_waitcnt vmcnt(1)")
d._emit("v_max_u32 v4, v16, v17"); d._emit("v_max3_u32 v4, v4, v18, v19"); d._emit("v_cmp_eq_u32 vcc, -1, v4"); d._emit(f"s_add_u32 {sSPIN}, {sSPIN}, 64"); d._emit("s_nop 3"); d._emit("s_cbranch_vccz L_gotA")
d._emit(f"buffer_load_dwordx4 v[16:19], v3, {sWS}, {sT0} offen sc1")
d._emit("s_waitcnt vmcnt(1)")
d._emit("v_max_u32 v4, v20, v21"); d._emit("v_max3_u32 v4, v4, v22, v23"); d._emit("v_cmp_eq_u32 vcc, -1, v4"); d._emit(f"s_cmp_ge_u32 {sSPIN}, {SPINMAX}"); d._emit("s_cbranch_scc1 L_gotB"); d._emit("s_nop 2"); d._emit("s_cbranch_vccnz L_poll")
d.label("L_gotB")
for r in range(4): d._emit(f"v_mov_b32 v{12+r}, v{20+r}")
d._emit("s_branch L_pollx")
d.label("L_gotA")
for r in range(4): d._emit(f"v_mov_b32 v{12+r}, v{16+r}")
d.label("L_pollx")
tr(d,'H','polled')
d._emit("s_nop 1")
d.vmq=[]
for sh in (4,8):
    for r in range(4): d(f"v_add_f32_dpp v{12+r}, v{12+r}, v{12+r} row_ror:{sh} row_mask:0xf bank_mask:0xf bound_ctrl:0")
for sw in (16,32):
    for r in range(4): d(f"v_mov_b32 v{24+r}, v{12+r}")
    for r in range(4): d(f"v_permlane{sw}_swap_b32 v{12+r}, v{24+r}")
    for r in range(4): d(f"v_add_f32 v{12+r}, v{12+r}, v{24+r}")
d(f"v_cvt_pk_bf16_f32 v12, v12, v13\nv_cvt_pk_bf16_f32 v13, v14, v15\nv_lshlrev_b32 v3, 3, v1\ns_lshl_b32 {sT0}, s2, 5\ns_mov_b64 exec, 0xf")
d(f"buffer_store_dwordx2 v[12:13], v3, {sOUT}, {sT0} offen")
tr(d,'D','fin'); tr(d,'H','fin')
if TRACE=='H': d._emit('s_waitcnt lgkmcnt(0)'); d._emit(f's_add_u32 s12, {sSPIN}, s86')
d("s_mov_b64 exec, -1\ns_branch L_fin")

c.label("L_cross"); c.sy=(251,252,6)
if PRIO0: c(f"s_setprio {PRIO0}")
RE=12; RW=64; X=116; AA=180; FA=194; FB=180; T0=202; T1=218; DA=234
RT=X; A1=160; A2=186; HC=140
IA=RW; aE=168; aM=T1; aT=DA
vQ=4
g1=L(f"s_sub_u32 {sT2}, {sWAVE}, 4")
g1+=L(f"s_mul_i32 {sT0}, {sT2}, 3328\ns_add_u32 {sT0}, {sT0}, {IDXS}\nv_add_u32 v7, {sT0}, v7")
g1+=L("v_lshrrev_b32 v8, 3, v5\nv_bfe_u32 v9, v5, 2, 1\nv_and_b32 v10, 3, v5")
g1+=L("v_lshl_add_u32 v11, v8, 2, v10\nv_lshl_add_u32 v3, v9, 3, v11")
g1+=L(f"v_mul_u32_u24 v250, 169, v6\nv_add_u32 v250, v250, v3\nv_lshlrev_b32 v250, 1, v250\nv_add_u32 v250, {SE1S}, v250")
g1+=L(f"v_cmp_gt_u32 vcc, 13, v3\nv_cmp_gt_u32 {sMK}, 16, v5\ns_and_b64 vcc, vcc, {sMK}\nv_mov_b32 v3, {SE1S+680}\nv_cndmask_b32 v250, v3, v250, vcc")
g1+=L(f"v_mul_u32_u24 v3, 13, v9\nv_add_u32 v3, v3, v11\nv_mul_u32_u24 v8, 208, v6\nv_add_u32 v9, v8, v3\nv_lshlrev_b32 v9, 1, v9\nv_add_u32 v9, {SE2S}, v9")
g1+=L(f"v_min_u32 v3, 25, v3\nv_mul_u32_u24 v3, 416, v3\nv_add_u32 v3, v3, v8")
g1+=L(f"v_cmp_gt_u32 vcc, {HR*208}, v3\nv_mov_b32 v10, {WCB-HR*208}\nv_mov_b32 v11, {WCA}\nv_cndmask_b32 v10, v10, v11, vcc\nv_add_u32 v{vQ}, v10, v3\nv_add_u32 v3, {WCB}, v3")
g1+=L(f"v_mov_b32 v251, {SYNC}\nv_mov_b32 v252, 1")
g1+=L("s_getreg_b32 s82, hwreg(HW_REG_XCC_ID, 0, 4)\ns_mul_i32 s83, s82, s82\ns_lshl_b32 s83, s83, 16\ns_lshl_b32 s82, s82, 8\ns_add_u32 s82, s82, s83\ns_add_u32 s82, s82, 1\ns_lshl_b32 s83, s82, 3")
g1+=L(f"v_mov_b32 v{A1+7}, 0\ns_lshl_b32 {sT3}, {sECH}, 4\ns_lshl_b32 {sT0}, {sP}, 3\nv_mov_b32 v254, {sT0}")
emit(c,g1)
PC=32; PB[id(c)]=PC
c(f"s_mov_b32 {sSEL[0]}, 0x05040100\ns_mov_b32 {sSEL[1]}, 0x07060302\ns_mov_b32 {sSELZ[0]}, 0x0c0c0100\ns_mov_b32 {sSELZ[1]}, 0x0c0c0302\ns_mov_b32 {sTWc}, {TW}\ns_mov_b32 {sTMc}, {TM}")
def caddr(js):
    o=[]
    for j in js:
        r=IA+j
        o+=swz(aE+j, r, 0, sT3)+L(f"v_lshl_add_u32 v{aT+j}, v{r}, 4, {sTWc}\nv_lshl_add_u32 v{aM+j}, v{r}, 1, {sTMc}")
    return o
def w4(c, fn, name, cond="scc0"):
    c(f"s_cmp_eq_u32 {sWAVE}, 4\ns_cbranch_{cond} L_{name}")
    lg=list(c.lgq)
    fn()
    c.lgq=lg
    c.label(f"L_{name}")
def clr():
    for r in range(4): c._emit(f"v_mov_b32 v{vF+r}, -1")
    c._emit(f"s_lshl_b32 {sT0}, s2, 10"); c._emit(f"v_lshlrev_b32 v5, 4, v1")
    c._emit(f"buffer_store_dwordx4 v[{vF}:{vF+3}], v5, {sWS}, {sT0} offen sc1")
    c._emit(f"s_lshl_b32 {sT0}, s2, 5"); c._emit(f"v_mov_b32 v6, 0")
    c._emit(f"buffer_load_dword v255, v6, {sOUT}, {sT0} offen"); c._emit("s_nop 1")
def wc_dma(ldsbase, srcbase, i, npieces, tag):
    if 3*i+2 <= npieces-1:
        c(f"s_add_u32 {sT1}, s78, {ldsbase+3072*i}\ns_mov_b32 m0, {sT1}\ns_add_u32 {sT0}, s77, {srcbase+24576*i}")
    else:
        c(f"s_add_u32 {sT0}, s80, {3*i}\ns_min_u32 {sT0}, {sT0}, {npieces-1}\ns_lshl_b32 {sT1}, {sT0}, 10\ns_add_u32 {sT1}, {sT1}, {ldsbase}\ns_mov_b32 m0, {sT1}")
        c(f"s_lshl_b32 {sT0}, {sT0}, 13\ns_add_u32 {sT0}, {sT0}, {sT3}\ns_add_u32 {sT0}, {sT0}, {srcbase}")
    c(f"buffer_load_dwordx4 v2, {sWC}, {sT0} offen lds", tag=tag)
rd=wb_read()+idx_read(IA,7)
rd+=[f"ds_read_u16 v{(RE+t) if t<12 else (A1+6)}, v250 offset:{26*t}" for t in range(13)]
rd+=[f"ds_read_u16 v{RE+12+t}, v9 offset:{52*t}" for t in range(8)]
pk_=[f"v_lshl_or_b32 v{A1+t}, v{RE+2*t+1}, 16, v{RE+2*t}" for t in range(6)]+[f"v_lshl_or_b32 v{A2+t}, v{RE+12+2*t+1}, 16, v{RE+12+2*t}" for t in range(4)]
h=c.fork(); h.sy=c.sy
h.label("L_w4")
def pf(t): h._emit(t); h.vmq.append(('pf',[]))
PFS=opt('--pfs','c0,w1,w2,w3')
slots=opt('--pfslots','c,1,2,3').split(',')
h(f"v_bfe_u32 v255, v1, 3, 1\nv_mul_u32_u24 v255, 13, v255\nv_lshrrev_b32 v247, 4, v1\nv_add_u32 v255, v255, v247\nv_and_b32 v247, 7, v1\nv_lshl_add_u32 v255, v255, 6, v247\nv_lshlrev_b32 v255, 9, v255")
h(f"s_lshr_b32 s84, {sROT}, 2\ns_lshl_b32 s84, s84, 12\ns_lshl_b32 s101, {sNB}, 7\ns_add_u32 s84, s84, s101")
def do_pf(tok):
    if not PF: return
    for t in tok:
        if t=='c':
            h(f"s_mul_i32 s100, {sROT}, {43*128}\ns_mov_b32 exec_hi, 0x7ff"); pf(f"buffer_load_dword v249, v{vW7}, {sWC}, s100 offen")
            h("s_mov_b64 exec, 0xf"); pf(f"buffer_load_dword v249, v{vW7}, {sWD2}, 0 offen"); h("s_mov_b64 exec, -1")
        elif t in '0123':
            i=int(t)
            h(f"s_add_u32 s100, s84, {4*i*32768}")
            if i==3: h("s_mov_b64 exec, 0xffff")
            pf(f"buffer_load_dword v249, v255, {sWD1}, s100 offen")
            if i==3: h("s_mov_b64 exec, -1")
do_pf(slots[0])
for r in range(4): h(f"v_mov_b32 v{T0+r}, -1")
h(f"s_lshl_b32 {sT0}, s2, 10\nbuffer_store_dwordx4 v[{T0}:{T0+3}], v{vL16}, {sWS}, {sT0} offen sc1")
h(f"s_lshl_b32 {sT0}, s2, 5\ns_mov_b64 exec, 1\nbuffer_load_dword v248, v{vL16}, {sOUT}, {sT0} offen\ns_mov_b64 exec, -1")
emit(h, static_tiles(PC,5,[0]))
h.wait_tag('stg')
h("s_barrier")
do_pf(slots[1])
emit(h, rd+wb_fix()+tileR(0,PC)+caddr(range(0,6))+tileM(0)+caddr(range(6,13))+[('FN',lambda: do_pf(slots[2]))]+tileC(0,HC)+pk_+tileW((0,),HC,PC))
if opt('--pfsleep'): h(f"s_sleep {opt('--pfsleep')}")
do_pf(slots[3])
h.wait_all_lgkm()
h("s_branch L_cB3")
c(f"s_cmp_eq_u32 {sWAVE}, 4\ns_cbranch_scc1 L_w4")
tr(c,'T','karg')
emit(c, static_tiles(PC,5))
for n in range(4,NB1): tdma(c,n)
tr(c,'T','preB1')
c.wait_tag('stg')
c("s_barrier")
tr(c,'T','B1')
g2=rd+wb_fix()+tileR(0,PC)+caddr(range(0,3))+tileM(0)+caddr(range(3,6))+tileC(0,HC)+pk_+tileR(1,PC)+caddr(range(6,9))+tileM(1)+caddr(range(9,13))+tileC(1,HC)+tileR(2,PC)+tileW((0,1),HC,PC)+tileM(2)+tileC(2,HC)
cut=len(g2)-len(tileR(2,PC)+tileW((0,1),HC,PC)+tileM(2)+tileC(2,HC))
spread(c,[ (lambda n=n: tdma(c,n)) for n in range(NB1,20)], g2, float(opt('--frontc',0.85)), True)
emit(c, tileR(3,PC)+tileW((2,),HC,PC)+tileM(3)+tileC(3,HC))
tr(c,'T','g3')
emit(c, tileR(4,PC)); tr(c,'T','t3R')
emit(c, tileW((3,),HC,PC)+tileM(4)+tileC(4,HC)+tileW((4,),HC,PC))
c.wait_all_lgkm(); tr(c,'T','t3W')
c.label("L_cB3")
c("s_barrier")
tr(c,'T','B3')
stamp(c,3); tr(c,'C','B3')
if PRIO_C!=PRIO0: c(f"s_setprio {PRIO_C}")
def rdy():
    c._emit("s_waitcnt vmcnt(0)")
    c._emit("v_mov_b32 v5, s82"); c._emit("s_mov_b64 exec, 1")
    c._emit(f"buffer_atomic_add v5, v254, {sDBG}, 0 offen"); c._emit("s_mov_b64 exec, -1")
def rdyissue():
    c._emit(f"buffer_load_dword v253, v254, {sDBG}, 0 offen sc1")
def rdycheck(sfx=""):
    c._emit("s_branch L_chkr"+sfx)
    c.label("L_chk"+sfx)
    c._emit(f"buffer_load_dword v253, v254, {sDBG}, 0 offen sc1")
    c.label("L_chkr"+sfx)
    c._emit("s_waitcnt vmcnt(0)")
    c._emit(f"v_readfirstlane_b32 s100, v253"); c._emit(f"s_add_u32 {sSPIN}, {sSPIN}, 64"); c._emit(f"s_cmp_ge_u32 {sSPIN}, {SPINMAX}"); c._emit("s_cbranch_scc1 L_chkx"+sfx)
    c._emit("s_and_b32 s101, s100, 0xff"); c._emit(f"s_cmp_ge_u32 s101, 8"); c._emit("s_cbranch_scc1 L_chkx"+sfx); c._emit("s_sleep 16"); c._emit("s_branch L_chk"+sfx)
    c.label("L_chkx"+sfx)
    c._emit("s_cmp_eq_u32 s100, s83"); c._emit(f"s_cselect_b32 s100, {2 if XL else 1}, 1"); c._emit("v_mov_b32 v5, s100")
    c._emit(f"ds_write_b32 v251, v5 offset:{4*C_RDY}"); c._emit("s_waitcnt lgkmcnt(0)")
def cslot():
    c(f"s_lshl_b32 s79, {sT2}, 11\ns_lshl_b32 {sT1}, {sP}, 13\ns_add_u32 s79, s79, {sT1}\ns_lshl_b32 {sT1}, {sG8}, 6\ns_add_u32 s79, s79, {sT1}")
if NOC:
    arrive(c,C_TAB); arrive(c,C_RP); w4(c,rdy,"rdyn"); c("s_sleep 64"); w4(c,lambda: (rdyissue(), rdycheck("n")),"nchk"); cslot(); send_addr(c); swait(c,C_RDY,1,sleep=32); c("v_mov_b32 v10, 0"); c("s_branch L_csend")
Z=FA; G=FB
ZR=[RW+j for j in range(12)]+[Z+6]
for j in range(13): c(f"ds_read_u16 v{ZR[j]}, v{aM+j}", tag='z')
c(f"v_mov_b32 v{Z+7}, 0\nv_mov_b32 v9, {f2u(C1):#x}")
EG=[f"ds_read_b128 v[{RE+4*j}:{RE+4*j+3}], v{aE+j}" for j in range(13)]
emit(c, EG[:2])
tr(c,'C','zg')
cslot(); send_addr(c)
for t in range(6): c(f"v_lshl_or_b32 v{Z+t}, v{RW+2*t+1}, 16, v{RW+2*t}")
c(f"v_mfma_f32_32x32x16_bf16 v[{T0}:{T0+15}], v[{A1}:{A1+3}], v[{Z}:{Z+3}], 0")
c(f"v_mfma_f32_32x32x16_bf16 v[{T0}:{T0+15}], v[{A1+4}:{A1+7}], v[{Z+4}:{Z+7}], v[{T0}:{T0+15}]")
emit(c, EG[2:8])
c(f's_mov_b32 s81, {f2u(-0.6931471806):#x}')
go=gelu_ops([T0+i for i in range(8)],[RW+i for i in range(8)],9,'s81')
for i,o in enumerate(go):
    c(o)
    if i in (8,16,24,32,40): c(EG[8+i//8-1])
arrive(c,C_TAB)
for i in range(4): c(f"v_cvt_pk_bf16_f32 v{G+i}, v{T0+2*i}, v{T0+2*i+1}")
c(f"v_mfma_f32_32x32x16_bf16 v[{T1}:{T1+15}], v[{A2}:{A2+3}], v[{G}:{G+3}], 0")
w4(c, rdy, "rdy")
for e_ in range(8): c(f"v_mov_b32 v{X+8*e_+7}, 0")
for j in range(13): c(f"v_exp_f32 v{AA+j}, v{T1+j}")
for j in range(13): c(f"v_add_f32 v{AA+j}, 1.0, v{AA+j}")
for j in range(13): c(f"v_rcp_f32 v{AA+j}, v{AA+j}")
stamp(c,2); tr(c,'C','senet')
if opt('--cp','vf8')=='senet': c('s_setprio 1')
def read_rw(vb, j): return f"ds_read_b128 v[{RW+4*j}:{RW+4*j+3}], v{vb} offset:{16*j}"
def perm_frag(F, R, e):
    wi=e>>1; hs=e&1
    o=[f"v_perm_b32 v{F+pp}, v{R+4*(2*pp+1)+wi}, v{R+4*(2*pp)+wi}, {sSEL[hs]}" for pp in range(6)]
    return o+[f"v_perm_b32 v{F+6}, v{R+48+wi}, v{R+48+wi}, {sSELZ[hs]}"]
def v_frag(e):
    wi=e>>1; o=[]; F=X+8*e
    for j in range(13):
        t=T0+j
        o.append(f"v_and_b32 v{t}, 0xffff0000, v{RE+4*j+wi}" if e&1 else f"v_lshlrev_b32 v{t}, 16, v{RE+4*j+wi}")
    for j in range(13): o.append(f"v_mul_f32 v{T0+j}, v{T0+j}, v{AA+j}")
    for j in range(0,12,2): o.append(f"v_cvt_pk_bf16_f32 v{F+(j>>1)}, v{T0+j}, v{T0+j+1}")
    o.append(f"v_cvt_pk_bf16_f32 v{F+6}, v{T0+12}, 0")
    return o
VW=int(opt('--vw',6))
for e_ in range(VW): emit(c, v_frag(e_))
tr(c,'C','vf4')
w4(c, rdyissue, "rdi")
swait(c,C_W1,4)
stamp(c,4); tr(c,'C','w1all')
if opt('--cp','vf8')=='w1': c('s_setprio 1')
for j in range(13): c(read_rw(3,j))
arrive(c,C_RP)
for e_ in range(VW,8): emit(c, v_frag(e_))
w4(c, rdycheck, "nochk")
tr(c,'C','vf8')
if opt('--cp','vf8')=='vf8': c('s_setprio 1')
def mm(T, B):
    return [f"v_mfma_f32_32x32x16_bf16 v[{T}:{T+15}], v[{FA}:{FA+3}], v[{B}:{B+3}], 0",
            f"v_mfma_f32_32x32x16_bf16 v[{T}:{T+15}], v[{FA+4}:{FA+7}], v[{B+4}:{B+7}], v[{T}:{T+15}]"]
def pack1(wi, q, ii):
    o=[f"v_mul_f32 v{T0+ii}, v{T0+ii}, v{AA+ii}", f"v_mul_f32 v{T1+ii}, v{T1+ii}, v{AA+ii}"] if q else []
    return o+[f"v_cvt_pk_bf16_f32 v{RW+4*ii+wi}, v{T0+ii}, v{T1+ii}"]
def diag1(ii, first): return f"v_mfma_f32_32x32x16_bf16 v[{DA}:{DA+15}], v[{RT+4*ii}:{RT+4*ii+3}], v[{RW+4*ii}:{RW+4*ii+3}], {'0' if (first and ii==0) else f'v[{DA}:{DA+15}]'}"
def rtg(j): return f"ds_read_b128 v[{RT+4*j}:{RT+4*j+3}], v{aT+j}"
c(f"v_mov_b32 v{FA+7}, 0")
emit(c, perm_frag(FA,RW,0))
for wi in range(4):
    e0,e1=2*wi,2*wi+1
    emit(c, mm(T0,X+8*e0)); emit(c, perm_frag(FA,RW,e1))
    for j in (2*e0,2*e0+1):
        if j<13: c(rtg(j))
    emit(c, mm(T1,X+8*e1))
    for j in (2*e1,2*e1+1):
        if j<13: c(rtg(j))
    if wi<3:
        emit(c, perm_frag(FA,RW,e0+2))
        for ii in range(13): c(pack1(wi,True,ii)[0])
        for ii in range(13): emit(c, pack1(wi,True,ii)[1:])
    else:
        tr(c,'C','qmm')
        if opt('--cd','p')=='qmm': c('s_setprio 0')
        for ii in range(13): c(pack1(wi,True,ii)[0])
        swait(c,C_W2,4); tr(c,'C','w2all')
        pk=[pack1(wi,True,ii)[1:] for ii in range(13)]
        emit(c, pk[0]);
        for ii in range(13):
            if ii+1<13: emit(c, pk[ii+1])
            else: c(f"v_mov_b32 v{FB+7}, 0\ns_nop 0")
            c(diag1(ii,True))
            if ii>0: c(read_rw(vQ,ii-1))
        c(read_rw(vQ,12))
stamp(c,5); tr(c,'C','diagq')
if opt('--cd','p')=='p': c('s_setprio 0')
emit(c, perm_frag(FB,RE,0)); emit(c, perm_frag(FA,RW,0))
for wi in range(4):
    e0,e1=2*wi,2*wi+1
    emit(c, mm(T0,FB)); emit(c, perm_frag(FA,RW,e1)+perm_frag(FB,RE,e1)); emit(c, mm(T1,FB))
    if wi<3:
        emit(c, perm_frag(FA,RW,e0+2)+perm_frag(FB,RE,e0+2))
        for ii in range(13): emit(c, pack1(wi,False,ii))
    else:
        swait(c,C_RDY,1); c('s_mov_b32 s81, s100')
        c("s_mov_b32 s82, 0xaaaaaaaa\ns_mov_b32 s83, 0xaaaaaaaa\ns_mov_b32 s84, 0xcccccccc\ns_mov_b32 s85, 0xcccccccc\ns_mov_b32 s72, 0xff00ff00\ns_mov_b32 s73, 0xff00ff00\ns_mov_b32 s74, 0xffff0000\ns_mov_b32 s75, 0xffff0000\ns_mov_b32 s76, 0x0f0f0f0f\ns_mov_b32 s77, 0xf0f0f0f0")
        emit(c, pack1(wi,False,0)+pack1(wi,False,1)+pack1(wi,False,2))
        for ii in range(13):
            if ii+3<13: emit(c, pack1(wi,False,ii+3))
            c(diag1(ii,False))
for i in range(8): c(f"v_cndmask_b32 v{DA+2*i}, v{DA+2*i}, v{DA+2*i+1}, s[82:83]")
for i in range(4): c(f"v_cndmask_b32 v{DA+4*i}, v{DA+4*i}, v{DA+4*i+2}, s[84:85]")
for i in range(2): c(f"v_cndmask_b32 v{DA+8*i}, v{DA+8*i}, v{DA+8*i+4}, s[72:73]")
c(f"v_cndmask_b32 v{DA}, v{DA}, v{DA+8}, s[74:75]")
c(f"v_cndmask_b32 v10, 0, v{DA}, s[76:77]")
c.label("L_csend")
tr(c,'C','end')
stamp(c,6)
send(c,"s79","s81")
e=c
e.label("L_fin")
if PAD:
    e.label("L_pad")
    e._emit("s_memrealtime s[100:101]"); e._emit("s_waitcnt lgkmcnt(0)"); e._emit("s_sub_u32 s100, s100, s92"); e._emit(f"s_cmp_lt_u32 s100, {PAD}"); e._emit("s_cbranch_scc1 L_pad")
if TRACE:
    e._emit("s_memrealtime s[100:101]"); e._emit("s_waitcnt vmcnt(0) lgkmcnt(0)")
    e._emit(f"s_cmp_eq_u32 {sWAVE}, {0 if TRACE in ('D','S','H') else SW}"); e._emit("s_cbranch_scc0 L_end")
    e._emit("v_mov_b32 v16, s92"); e._emit("v_mov_b32 v17, s100")
    for i in range(14): e._emit(f"s_sub_u32 s{TRREG[i]}, s{TRREG[i]}, s86"); e._emit(f"v_mov_b32 v{18+i}, s{TRREG[i]}")
    e._emit(f"s_lshl_b32 {sT0}, s2, 6"); e._emit(f"s_add_u32 {sT0}, {sT0}, 0x8000000"); e._emit("v_mov_b32 v3, 0"); e._emit("s_mov_b64 exec, 1")
    for i in range(4): e._emit(f"buffer_store_dwordx4 v[{16+4*i}:{19+4*i}], v3, {sWS}, {sT0} offen offset:{16*i}")
    sys.stderr.write(" ".join(f"{i+2}:{n}" for i,n in enumerate(trn[TRACE]))+"\n")
elif STAMP:
    e._emit(f"s_memtime s[70:71]"); e._emit("s_memrealtime s[100:101]"); e._emit("s_waitcnt lgkmcnt(0)")
    e._emit(f"s_cmp_eq_u32 {sWAVE}, 0"); e._emit(f"s_cselect_b32 {sT0}, 1, 0"); e._emit(f"s_cmp_eq_u32 {sWAVE}, {SW}"); e._emit(f"s_cselect_b32 {sT1}, 1, 0"); e._emit(f"s_or_b32 {sT0}, {sT0}, {sT1}"); e._emit("s_cbranch_scc0 L_end")
    for i in range(1,8): e._emit(f"s_sub_u32 s{STR[i]}, s{STR[i]}, s86")
    e._emit("v_mov_b32 v16, s92"); e._emit("v_mov_b32 v17, s100")
    for i in range(1,8): e._emit(f"v_mov_b32 v{17+i}, s{STR[i]}")
    e._emit(f"s_lshl_b32 {sT0}, s2, 6"); e._emit(f"s_add_u32 {sT0}, {sT0}, 0x8000000")
    e._emit("v_mov_b32 v3, 0"); e._emit("s_mov_b64 exec, 1")
    e._emit(f"s_cmp_eq_u32 {sWAVE}, 0"); e._emit("s_cbranch_scc0 L_st4b")
    e._emit(f"buffer_store_dwordx4 v[16:19], v3, {sWS}, {sT0} offen"); e._emit(f"buffer_store_dwordx4 v[20:23], v3, {sWS}, {sT0} offen offset:16"); e._emit(f"buffer_store_dword v24, v3, {sWS}, {sT0} offen offset:32")
    e._emit("s_branch L_end")
    e.label("L_st4b")
    e._emit(f"buffer_store_dwordx4 v[18:21], v3, {sWS}, {sT0} offen offset:36"); e._emit(f"buffer_store_dwordx3 v[22:24], v3, {sWS}, {sT0} offen offset:52")
e.label("L_end")
e._emit("s_endpgm")
e.label("CODE_END")
out = d.text() + "\n" + h.text() + "\n" + c.text() + f"""
.section .rodata,"a"
.p2align 6
.amdhsa_kernel {NAME}
  .amdhsa_next_free_vgpr 256
  .amdhsa_next_free_sgpr 102
  .amdhsa_accum_offset 256
  .amdhsa_group_segment_fixed_size 0
  .amdhsa_kernarg_size 88
  .amdhsa_user_sgpr_count 2
  .amdhsa_user_sgpr_kernarg_segment_ptr 1
  .amdhsa_system_sgpr_workgroup_id_x 1
.end_amdhsa_kernel
"""
print(out)
sys.stderr.write(f"nops D {d.nops} C {c.nops}\n")
```

```python
import sys, struct
from asmlib import Asm
def opt(name, default=None):
    if name in sys.argv:
        return sys.argv[sys.argv.index(name)+1]
    return default
STAMP = '--stamp' in sys.argv
SW = int(opt('--sw', 5))
PRIO_D = int(opt('--prioD', 0)); PRIO_C = int(opt('--prioC', 0))
PRE = int(opt('--pre', 6))
NB1 = int(opt('--nb1', 8))
RAMP = int(opt('--ramp', 1))
FRONT = float(opt('--front', 1.0))
MODE = opt('--mode','v')
NR = int(opt('--nr', 10))
PRIO0 = int(opt('--prio0', 1))
NOROT = '--norot' in sys.argv
NOC = '--noC' in sys.argv; NOD = '--noD' in sys.argv
NAME = "standalone__deep_cross_fibinet__recsys_kernel"
def f2u(x): return struct.unpack('<I', struct.pack('<f', x))[0]

TW=128000; TM=144000; XR=146000
IDXS=XR; WBIS=XR+13312; SE1S=WBIS+1024; SE2S=SE1S+1024
WCB=XR; WCA=XR+11264; SYNC=163776
NQA = 6 if MODE=='v' else 2
HR = (NQA*64)//13
NQB = (676-13*HR+63)//64
SCR = WCA+NQA*1024
assert WCA+NQA*1024+(0 if MODE=='v' else 4096)<=SYNC and SE2S+1024<=SYNC
LDS_BYTES=163840
sIDX,sTABL,sSE1,sSE2,sWBI,sWC,sWD1,sWD2,sOUT,sDBG,sWS = [f"s[{4+4*i}:{7+4*i}]" for i in range(11)]
SRD_SIZES=[425984,128000,676,676,8192,173056,851968,512,8192,256,0x10000000]
sWAVE,sNB,sMB,sROT,sECH,sP,sG8,sT0,sT1,sT2,sT3,sSPIN = [f"s{i}" for i in range(48,60)]
sMK="s[98:99]"; sFL="s3"
sW0=73
sSEL=["s60","s61"]; sSELZ=["s73","s74"]; sTWc="s75"; sTMc="s76"
STR=[86,88,90,62,64,66,68,70]
sTL=["s94","s95","s96","s97","s85"]
SPINMAX="0x1000000"
C_W1,C_RP,C_W2,C_TAB,C_RED,C_RDY,C_TW,C_STG = range(8)
PF = int(opt('--pf',0))
KROT=int(opt('--krot',0)); WROT=int(opt('--wrot',0))
EARLY = int(opt('--early',2))
PRIOD0 = int(opt('--priod0',0))
POST = int(opt('--post',2))
TRACE = opt('--trace','')
TRREG = [4,6,8,10,12,14,16,18,20,22,88,90,66,64]
trn = {'D':[], 'C':[], 'S':[], 'T':[], 'H':[], 'E':[]}
if TRACE=='S': TRREG=[88,90,62,64,66,68,70,60,62,62,62,62,62,62]
if TRACE=='T': TRREG=[88,90,62,64,66,68,70,82,62,62,62,62,62,62]
def tr(a, role, name):
    if TRACE==role and len(trn[role])<14:
        r=TRREG[len(trn[role])]; trn[role].append(name); a._emit(f"s_memtime s[{r}:{r+1}]")
DBG0 = '--dbg0' in sys.argv
def stamp0(a, i):
    if DBG0: a._emit(f"s_memtime s[{STR[i]}:{STR[i]+1}]")
def stamp(a, i):
    if STAMP and not TRACE and not (DBG0 and i in (1,2,4,5,6)): a._emit(f"s_memtime s[{STR[i]}:{STR[i]+1}]")
def L(text): return [x.strip() for x in text.split('\n') if x.strip()]

a = Asm()
a.raw(f"; @launch grid=(256,1,1) block=(512,1,1) lds={LDS_BYTES}")
a.raw('.amdgcn_target "amdgcn-amd-amdhsa--gfx950"')
a.raw(f".text\n.globl {NAME}\n.p2align 8\n.type {NAME},@function\n{NAME}:")
if STAMP:
    a._emit("s_memrealtime s[92:93]"); a._emit(f"s_memtime s[86:87]")
PAD=int(opt('--pad',0))
if PAD: a._emit("s_memrealtime s[92:93]")
a("s_cmp_ge_u32 s2, 256\ns_cbranch_scc1 L_end")
a._emit("s_load_dwordx16 s[60:75], s[0:1], 0"); a._emit("s_load_dwordx4 s[76:79], s[0:1], 64"); a._emit("s_load_dwordx2 s[44:45], s[0:1], 80")
a("v_lshrrev_b32 v2, 6, v0\nv_and_b32 v1, 63, v0")
CPF=int(opt('--cpf',6))
if CPF:
    a._emit("s_getpc_b64 s[82:83]")
    a._emit("s_lshr_b32 s84, s2, 3"); a._emit(f"s_mul_i32 s84, s84, {CPF*128}"); a._emit("v_lshlrev_b32 v3, 7, v0"); a._emit("v_add_u32 v3, s84, v3")
    a._emit(f"v_min_u32 v3, CODE_END-{NAME}-64, v3")
    a._emit(f"v_cmp_gt_u32 vcc, {CPF}, v0"); a._emit("s_and_saveexec_b64 s[84:85], vcc"); a._emit("s_cbranch_execz L_nocpf")
    a._emit("global_load_dword v253, v3, s[82:83]")
    a.label("L_nocpf")
    a._emit("s_mov_b64 exec, -1")
a(f"v_readfirstlane_b32 {sWAVE}, v2")
vL16=92; vT0=93; vTa=94; vTb=95; vB0=96; vTWa=97; vTMa=98; vX=99; vY=100; vC=101; vM=102; vZ=103
WB=104; BF=112; DD=128; vF=136; vW7=137
a(f"v_mov_b32 v{vX}, {SYNC}\nv_mov_b32 v{vC}, 0\nv_lshl_add_u32 v{vX}, v1, 2, v{vX}\ns_mov_b64 exec, 0xff\nds_write_b32 v{vX}, v{vC}\ns_mov_b64 exec, -1")
for i in range(11):
    a(f"s_mov_b32 s{6+4*i}, {SRD_SIZES[i]}\ns_mov_b32 s{7+4*i}, 0x20000")
XL = int(opt('--xl',1))
a(f"s_lshr_b32 {sROT}, s2, 3")
if XL:
    a(f"s_and_b32 {sT0}, s2, 7\ns_lshl_b32 s2, {sT0}, 5\ns_add_u32 s2, s2, {sROT}")
a(f"s_and_b32 {sNB}, s2, 3\ns_lshr_b32 {sMB}, s2, 2\ns_lshr_b32 {sP}, s2, 3\ns_and_b32 {sG8}, s2, 7")
a(f"s_and_b32 {sT0}, {sMB}, 1\ns_lshl_b32 {sECH}, {sNB}, 1\ns_add_u32 {sECH}, {sECH}, {sT0}\ns_mov_b32 {sSPIN}, 0")
a(f"v_lshlrev_b32 v{vL16}, 4, v1")
a(f"v_and_b32 v{vX}, 7, v1\nv_lshrrev_b32 v{vY}, 4, v1\nv_xor_b32 v{vX}, v{vX}, v{vY}\nv_lshlrev_b32 v{vX}, 4, v{vX}")
a(f"v_lshrrev_b32 v{vC}, 3, v1\nv_lshl_or_b32 v{vT0}, v{vC}, 7, v{vX}")
a(f"v_lshlrev_b32 v{vW7}, 7, v1")
a(f"s_add_u32 {sT0}, {sWAVE}, 11\ns_cmp_eq_u32 {sWAVE}, 4\ns_cselect_b32 {sT0}, 31, {sT0}\ns_cmp_lt_u32 {sWAVE}, 4\ns_cselect_b32 {sT0}, {sWAVE}, {sT0}\ns_cselect_b32 {sT1}, 4, 3\ns_add_u32 {sT0}, {sT0}, {sROT}")
def tl_calc(a,k): a(f"s_and_b32 {sTL[k]}, {sT0}, 31\ns_lshl_b32 {sTL[k]}, {sTL[k]}, 12\ns_min_u32 {sTL[k]}, {sTL[k]}, {121*1024}\ns_add_u32 {sT0}, {sT0}, {sT1}")
for k in range(5): tl_calc(a,k)
def tile_pre(k):
    return L(f"s_lshr_b32 {sFL}, {sTL[k]}, 4\ns_and_b32 {sFL}, {sFL}, 64\nv_xor_b32 v{vTa}, {sFL}, v{vT0}\nv_xor_b32 v{vTb}, 64, v{vTa}")
for o in tile_pre(0): a(o)
a(f"v_and_b32 v{vM}, 15, v1\nv_lshrrev_b32 v{vC}, 1, v{vM}\nv_xor_b32 v{vC}, v{vC}, v{vY}\nv_lshlrev_b32 v{vC}, 4, v{vC}")
a(f"v_lshl_or_b32 v{vB0}, v{vM}, 7, v{vC}")
a(f"v_lshrrev_b32 v6, 5, v1\nv_lshl_add_u32 v{vX}, v6, 4, v{vM}\nv_lshlrev_b32 v{vX}, 1, v{vX}\nv_add_u32 v{vTMa}, {TM}, v{vX}")
a(f"v_bfe_u32 v{vTWa}, v1, 4, 1\nv_add_lshl_u32 v{vTWa}, v{vX}, v{vTWa}, 3\nv_add_u32 v{vTWa}, {TW}, v{vTWa}")
a(f"v_lshrrev_b32 v{vC}, 2, v{vM}\nv_lshl_add_u32 v{vC}, v{vY}, 3, v{vC}\nv_and_b32 v{vX}, 1, v1\nv_lshl_add_u32 v{vC}, v{vC}, 1, v{vX}\nv_lshlrev_b32 v{vC}, 3, v{vC}\nv_add_u32 v{vC}, {WBIS}, v{vC}")
a(f"v_and_b32 v5, 31, v1\nv_lshl_add_u32 v7, v5, 1, v6\nv_mul_u32_u24 v7, 52, v7\nv_mov_b32 v{vZ}, 0x70")
a(f"s_mul_i32 s80, {sP}, 13312\ns_lshl_b32 {sT0}, {sWAVE}, 11\ns_add_u32 s81, {sT0}, {IDXS}\ns_add_u32 s80, s80, {sT0}\ns_mov_b32 m0, s81\ns_lshl_b32 s81, {sECH}, 4")
DREF=[None]; PB={}
def tdma(a, n):
    k=n>>2; q=n&3
    if q==0: a(f"s_mov_b32 m0, {sTL[k]}")
    va,vb=(vTa,vTb) if k==0 else (PB[id(a)]+4*NTS[PB[id(a)]]+2*k, PB[id(a)]+4*NTS[PB[id(a)]]+1+2*k)
    a(f"buffer_load_dwordx4 v{vb if q&1 else va}, {sTABL}, {sTL[k]} offen offset:{1024*q} lds", tag=f'tile{k}')
def prefetch(a):
    a(f"s_cmp_eq_u32 {sWAVE}, 2\ns_cbranch_scc0 L_pf0")
    a._emit("s_mov_b64 exec, 0xf"); a._emit(f"buffer_load_dword v254, v{vW7}, {sWD2}, 0 offen"); a._emit("s_mov_b64 exec, -1")
    a.label("L_pf0")
    a(f"s_cmp_lt_u32 {sWAVE}, 2\ns_cbranch_scc0 L_nopf")
    a._emit(f"s_cmp_eq_u32 {sWAVE}, 0"); a._emit("s_cbranch_scc0 L_pf1")
    if XL:
        a._emit(f"s_lshr_b32 s100, {sROT}, 2"); a._emit(f"s_mul_i32 s100, s100, {208*512}")
    else: a._emit(f"s_mul_i32 s100, {sROT}, {52*512}")
    a._emit(f"s_lshl_b32 s101, {sNB}, 7"); a._emit(f"s_add_u32 s100, s100, s101")
    a._emit(f"v_lshlrev_b32 v255, 9, v1"); a._emit("s_mov_b32 exec_hi, 0xfffff")
    for i in range(4 if XL else 1):
        a._emit(f"buffer_load_dword v254, v255, {sWD1}, s100 offen"); a._emit(f"s_add_u32 s100, s100, {52*512}")
    a._emit("s_mov_b64 exec, -1"); a._emit("s_branch L_pfd")
    a.label("L_pf1")
    a._emit(f"s_mul_i32 s100, {sROT}, {43*128}"); a._emit("s_mov_b32 exec_hi, 0x7ff")
    a._emit(f"buffer_load_dword v254, v{vW7}, {sWC}, s100 offen"); a._emit("s_mov_b64 exec, -1"); a._emit("s_branch L_pfd")
    a.label("L_nopf")
    a.label("L_pfd")
PFPOS=int(opt('--pfpos',7))
def srd(a, ids):
    for i in ids:
        src = 60+2*i if i<8 else 76+2*(i-8)
        a(f"s_mov_b64 s[{4+4*i}:{5+4*i}], s[{src}:{src+1}]")
def kwait(a):
    a._emit("s_waitcnt lgkmcnt(0)"); a.lgq=[]
a(f"s_cmp_ge_u32 {sWAVE}, 6")
kwait(a)
srd(a,[0,1])
a("s_cbranch_scc1 L_stg67")
a(f"buffer_load_dwordx4 v{vL16}, {sIDX}, s80 offen lds", tag='stg')
a(f"buffer_load_dwordx4 v{vL16}, {sIDX}, s80 offen offset:1024 lds", tag='stg')
a("s_branch L_stgdone")
a.label("L_stg67")
srd(a,[2,3,4])
a(f"s_cmp_eq_u32 {sWAVE}, 7\ns_cbranch_scc1 L_stg7")
a._emit(f"buffer_load_dwordx4 v{vL16}, {sIDX}, s80 offen lds")
a._emit(f"s_mov_b32 m0, {WBIS}"); a._emit("s_nop 0")
a._emit(f"buffer_load_dwordx4 v{vW7}, {sWBI}, s81 offen lds")
a._emit("s_branch L_stgdone")
a.label("L_stg7")
a._emit(f"s_mov_b32 m0, {SE1S}"); a._emit("s_nop 0")
a._emit(f"buffer_load_dwordx4 v{vL16}, {sSE1}, 0 offen lds")
a._emit(f"s_mov_b32 m0, {SE2S}"); a._emit("s_nop 0")
a._emit(f"buffer_load_dwordx4 v{vL16}, {sSE2}, 0 offen lds")
a.label("L_stgdone")
for n in range(4): tdma(a,n)
srd(a,[5,6,7,8,9])
a(f"s_cmp_ge_u32 {sWAVE}, 4\ns_cbranch_scc1 L_cross")

def wb_read():
    return [f"ds_read_b64_tr_b16 v[{WB+4*s+2*hf}:{WB+4*s+2*hf+1}], v{vC} offset:{s*512+hf*64}" for s in range(2) for hf in range(2)]
NTS={}
def static_tiles(P, NT, ks=None):
    NTS[P]=NT; o=[]
    for k in (range(NT) if ks is None else ks):
        o+=L(f"s_lshr_b32 {sFL}, {sTL[k]}, 4\ns_and_b32 {sFL}, {sFL}, 64\nv_xor_b32 v{P+k}, {sFL}, v{vB0}\nv_add_u32 v{P+k}, {sTL[k]}, v{P+k}\nv_xor_b32 v{P+NT+k}, 64, v{P+k}")
        if k>0: o+=L(f"v_xor_b32 v{P+4*NT+2*k}, {sFL}, v{vT0}\nv_xor_b32 v{P+4*NT+1+2*k}, 64, v{P+4*NT+2*k}")
        o+=L(f"s_lshr_b32 {sFL}, {sTL[k]}, 3\nv_add_u32 v{P+2*NT+k}, {sFL}, v{vTWa}\ns_lshr_b32 {sFL}, {sTL[k]}, 6\nv_add_u32 v{P+3*NT+k}, {sFL}, v{vTMa}")
    o+=L(f"v_cmp_gt_u32 {sMK}, 8, v{vM}\nv_cmp_eq_u32 vcc, 8, v{vM}\nv_mov_b32 v{vY}, 0x3c803c80\nv_cndmask_b32 v{vY}, 0, v{vY}, vcc")
    return o
def wb_fix():
    return [f"v_cndmask_b32 v{WB+r}, v{vY}, v{WB+r}, {sMK}" for r in range(8)]
def idx_read(dst, vb):
    o=[f"ds_read2_b32 v[{dst+2*i}:{dst+2*i+1}], v{vb} offset0:{2*i} offset1:{2*i+1}" for i in range(6)]
    return o+[f"ds_read_b32 v{dst+12}, v{vb} offset:48"]
XP = opt('--xp','')
def tileR(k,P):
    o=[('WT',f'tile{k}')]
    for sub in range(2):
        o.append(f"ds_read_b128 v[{BF+8*sub}:{BF+8*sub+3}], v{P+k} offset:{sub*2048}")
        o.append(f"ds_read_b128 v[{BF+8*sub+4}:{BF+8*sub+7}], v{P+NTS[P]+k} offset:{sub*2048}")
    return o
def tileM(k):
    o=[f"v_mfma_f32_16x16x32_bf16 v[{DD+4*sub}:{DD+4*sub+3}], v[{WB}:{WB+3}], v[{BF+8*sub}:{BF+8*sub+3}], 0" for sub in range(2)]
    o+=[f"v_mfma_f32_16x16x32_bf16 v[{DD+4*sub}:{DD+4*sub+3}], v[{WB+4}:{WB+7}], v[{BF+8*sub+4}:{BF+8*sub+7}], v[{DD+4*sub}:{DD+4*sub+3}]" for sub in range(2)]
    return o
def tileC(k, H):
    h=H+4*k
    o=L(f"v_cvt_pk_bf16_f32 v{h}, v{DD}, v{DD+1}\nv_cvt_pk_bf16_f32 v{h+2}, v{DD+4}, v{DD+5}\nv_cvt_pk_bf16_f32 v{h+1}, v{DD+2}, v{DD+3}\nv_cvt_pk_bf16_f32 v{h+3}, v{DD+6}, v{DD+7}")
    return o+L(f"v_permlane32_swap_b32 v{h}, v{h+2}\nv_permlane32_swap_b32 v{h+1}, v{h+3}")
def tileW(ks, H, P):
    o=["s_mov_b32 exec_lo, 0xffff","s_mov_b32 exec_hi, 0xffff"]+[f"ds_write_b16 v{P+3*NTS[P]+k}, v{H+4*k+2}" for k in ks]+["s_mov_b64 exec, -1"]
    return [('GRP',o)]+[f"ds_write_b64 v{P+2*NTS[P]+k}, v[{H+4*k}:{H+4*k+1}]" for k in ks]
def emit(a, ops):
    for o in ops:
        if isinstance(o,tuple):
            if o[0]=='WT': a.wait_tag(o[1])
            elif o[0]=='GRP': emit(a,o[1])
            elif o[0]=='FN': o[1]()
        else: a(o)
def spread(a, dmas, fill, frac=1.0, mark=False):
    n=len(dmas); m=int(len(fill)*frac); per=m/max(n,1); pos=0
    for i,dm in enumerate(dmas):
        dm()
        if mark and i==n-1: tr(a,'S' if a is d else 'T','T15')
        end=int(round(per*(i+1))); emit(a, fill[pos:end]); pos=end
    emit(a, fill[pos:])
SY={}
def arrive(a, cnt, vA=5, vO=6):
    vS,v1_,_=SYX(a)
    a(f"s_mov_b64 exec, 1\nds_add_u32 v{vS}, v{v1_} offset:{4*cnt}\ns_mov_b64 exec, -1")
def SYX(a): return a.sy
lab=[0]
def swait(a, cnt, n, vA=5, vO=6, sleep=0):
    lab[0]+=1; Lb=f"L_sw{lab[0]}"
    vA,_,vO=SYX(a)
    a._emit(f"ds_read_b32 v{vO}, v{vA} offset:{4*cnt}"); a._emit("s_waitcnt lgkmcnt(0)"); a.lgq=[]
    a._emit(f"v_readfirstlane_b32 s100, v{vO}"); a._emit("s_nop 0"); a._emit(f"s_cmp_ge_u32 s100, {n}"); a._emit(f"s_cbranch_scc1 {Lb}x")
    a.label(Lb)
    a._emit(f"s_sleep {max(sleep,1)}")
    a._emit(f"ds_read_b32 v{vO}, v{vA} offset:{4*cnt}"); a._emit("s_waitcnt lgkmcnt(0)")
    a._emit(f"v_readfirstlane_b32 s100, v{vO}"); a._emit(f"s_add_u32 {sSPIN}, {sSPIN}, 1"); a._emit(f"s_cmp_ge_u32 {sSPIN}, {SPINMAX}"); a._emit(f"s_cbranch_scc1 {Lb}x")
    a._emit(f"s_cmp_ge_u32 s100, {n}"); a._emit(f"s_cbranch_scc0 {Lb}")
    a.label(Lb+"x")
C0=-2.302208198; C1=C0*0.044715
def gelu_ops(xs, ts, vC1, k=None):
    o=[]
    for x,t in zip(xs,ts): o.append(f"v_mul_f32 v{t}, v{x}, v{x}")
    for x,t in zip(xs,ts): o.append(f"v_fmaak_f32 v{t}, v{vC1}, v{t}, {f2u(C0):#x}")
    for x,t in zip(xs,ts): o.append(f"v_mul_f32 v{t}, v{t}, v{x}")
    for x,t in zip(xs,ts): o.append(f"v_exp_f32 v{t}, v{t}")
    for x,t in zip(xs,ts): o.append(f"v_add_f32 v{t}, 1.0, v{t}" if k is None else f"v_fma_f32 v{t}, v{t}, {k}, {k}")
    for x,t in zip(xs,ts): o.append(f"v_rcp_f32 v{t}, v{t}")
    for x,t in zip(xs,ts): o.append(f"v_mul_f32 v{x}, v{x}, v{t}")
    return o
def send_addr(a):
    a("v_bfe_u32 v7, v1, 4, 1\nv_and_b32 v8, 15, v1\nv_lshlrev_b32 v8, 2, v8\nv_lshl_add_u32 v8, v7, 10, v8")
def send(a, sreg, sflag, q=12):
    a("v_mov_b32 v11, v10")
    a("v_permlane32_swap_b32 v10, v11")
    a(f"v_add_f32 v10, v10, v11\nv_min_u32 v{q}, -2, v10")
    for i in (1,2,3): a(f"v_mov_b32_dpp v{q+i}, v{q} quad_perm:[{i},{i},{i},{i}] row_mask:0xf bank_mask:0xf bound_ctrl:0")
    a("s_mov_b32 exec_lo, 0x11111111\ns_mov_b32 exec_hi, 0")
    lab[0]+=1; Lb=f"L_sn{lab[0]}"
    a(f"s_cmp_eq_u32 {sflag}, 2\ns_cbranch_scc1 {Lb}f")
    a(f"buffer_store_dwordx4 v[{q}:{q+3}], v8, {sWS}, {sreg} offen sc1")
    a(f"s_branch {Lb}d")
    a.label(Lb+"f")
    a._emit(f"buffer_store_dwordx4 v[{q}:{q+3}], v8, {sWS}, {sreg} offen")
    a.label(Lb+"d")
    a("s_mov_b64 exec, -1")
def swz(dst, src, tmp, sc):
    if 'A' in XP: return [f"v_lshlrev_b32 v{dst}, 7, v{src}"]
    return L(f"v_lshlrev_b32 v{tmp}, 3, v{src}\nv_bitop3_b32 v{tmp}, v{tmp}, {sc}, v{vZ} bitop3:0x28\nv_lshl_or_b32 v{dst}, v{src}, 7, v{tmp}")

c = a.fork()
d = a; DREF[0]=d; d.sy=(0,10,7)
if PRIOD0: d(f"s_setprio {PRIOD0}")
ACC=192; AD=140; EF=116; FF=100; RING=12; IR=192
assert RING+8*NR<=92
vWo=[2,3]
vSel=4; TT=92; WOFF=1024
d(f"s_and_b32 {sT0}, {sMB}, 1\ns_lshl_b32 {sT0}, {sT0}, 1\ns_lshr_b32 {sT1}, {sWAVE}, 1\ns_add_u32 {sT3}, {sT0}, {sT1}\ns_xor_b32 {sT1}, {sT1}, 1\ns_add_u32 {sT0}, {sT0}, {sT1}")
d(f"s_mul_i32 {sT3}, {sT3}, 3328\ns_mul_i32 {sT0}, {sT0}, 3328\ns_add_u32 {sT3}, {sT3}, {IDXS}\ns_add_u32 {sT0}, {sT0}, {IDXS}")
d(f"v_add_u32 v10, {sT0}, v7\nv_add_u32 v9, {sT3}, v7")
d(f"v_mul_u32_u24 v7, {13*64}, v6\nv_bfe_u32 v8, v1, 4, 1\nv_lshl_add_u32 v7, v8, 2, v7\nv_bfe_u32 v8, v1, 3, 1\nv_add_u32 v7, v7, v8\nv_and_b32 v11, 7, v1\nv_lshlrev_b32 v11, 4, v11\nv_lshl_or_b32 v{vWo[0]}, v7, 9, v11\nv_add_u32 v{vWo[1]}, 4096, v{vWo[0]}")
d(f"v_cmp_eq_u32 vcc, 0, v8\nv_mov_b32 v11, 0x03020706\nv_mov_b32 v{vSel}, 0x05040100\nv_cndmask_b32 v{vSel}, v11, v{vSel}, vcc")
d(f"s_lshr_b32 s101, {sROT}, {2 if XL else 0}")
d(f"s_add_u32 {sT2}, {sWAVE}, s101\ns_and_b32 {sT2}, {sT2}, 3\ns_lshl_b32 {sT3}, {sT2}, 13\ns_lshl_b32 {sT0}, {sNB}, 7\ns_add_u32 {sT3}, {sT3}, {sT0}\ns_lshl_b32 {sT2}, {sT2}, 5")
PD=224; PB[id(d)]=PD
tr(d,'S','karg')
if not KROT:
    for k in range(13): d(f"s_add_u32 s{sW0+k}, {sT3}, {32768*k}")
else:
    d(f"s_mul_i32 {sT0}, s101, 13\ns_lshr_b32 {sT0}, {sT0}, 3")
    for k in range(13):
        d(f"s_lshl_b32 s{sW0+k}, {sT0}, 15\ns_add_u32 s{sW0+k}, s{sW0+k}, {sT3}\ns_lshl_b32 {sT1}, {sT0}, 2\nv_add_u32 v{AD+27+k}, {sT1}, v9\nv_add_u32 v{AD+40+k if k<12 else AD+13}, {sT1}, v10")
        if k<12: d(f"s_add_u32 {sT0}, {sT0}, 1\ns_cmp_eq_u32 {sT0}, 13\ns_cselect_b32 {sT0}, 0, {sT0}")
emit(d, static_tiles(PD,4))
for n in range(4,NB1): tdma(d,n)
tr(d,'S','preB1')
d.wait_tag('stg')
d("s_barrier")
tr(d,'S','B1')
def adr(k,mt,cc):
    if cc==1: return AD+14*mt+k
    if mt==0: return AD+27+k
    return AD+40+k if k<12 else AD+13
LZ=int(opt('--lazy',4))
def addr_calc(ks):
    o=[]
    for k in ks:
        for mt in range(2):
            r0=adr(k,mt,0); r1=adr(k,mt,1)
            o+=swz(r0, r1, r0, sT2)+[f"v_xor_b32 v{r1}, 16, v{r0}"]
    return o
def wl(n,t):
    k=n>>1; cc=n&1; r=RING+8*(n%NR)
    d(f"buffer_load_dwordx4 v[{r+4*t}:{r+4*t+3}], v{vWo[cc]}, {sWD1}, s{sW0+k} offen offset:{WOFF*t}", tag=f'w{n}')
nl=0
f2=wb_read()+(idx_read(AD,9)+idx_read(AD+14,10) if not KROT else [f"ds_read_b32 v{adr(k,mt,1)}, v{adr(k,mt,0)}" for k in range(13) for mt in range(2)])
HD=76
ac=addr_calc(range(LZ)); q_=len(ac)//4
f2+=wb_fix()+tileR(0,PD)+ac[:q_]+tileM(0)+ac[q_:2*q_]+tileC(0,HD)+tileR(1,PD)+ac[2*q_:3*q_]+tileM(1)+ac[3*q_:]+tileC(1,HD)
m_=int(len(f2)*FRONT)
spread(d,[ (lambda n=n: tdma(d,n)) for n in range(NB1,16)], f2[:m_], 1.0, True)
f2r=f2[m_:]
f3=f2r+tileR(2,PD)+tileW((0,1),HD,PD)+tileM(2)+tileC(2,HD)
spread(d,[(lambda n=n,t=t: wl(n,t)) for n in range(PRE) for t in range(2)], f3)
nl=PRE
tr(d,'S','f3')
emit(d, tileR(3,PD)); tr(d,'S','t3R')
emit(d, tileW((2,),HD,PD)+tileM(3)+tileC(3,HD)+tileW((3,),HD,PD))
d.wait_all_lgkm(); tr(d,'S','t3W')
d("s_barrier")
tr(d,'S','B3')
stamp(d,3); tr(d,'D','B3')
if PRIO_D!=PRIOD0: d(f"s_setprio {PRIO_D}")
QI = [int(x) for x in opt('--qi','0,2,4').split(',')]
AI = [int(x) for x in opt('--ai','8,10').split(',')]
BI = [int(x) for x in opt('--bi','15,16').split(',')]
vWC=5
d(f'v_mov_b32 v0, {SYNC}\nv_mov_b32 v10, 1\nv_mov_b32 v11, 0x70')
vZs=vZ; vZ=11; lazy=addr_calc(range(LZ,13)); vZ=vZs
S1=int(opt('--s1',9)); S2=int(opt('--s2',20))
d(f"v_lshlrev_b32 v{vWC}, 7, v1\ns_lshl_b32 {sT3}, {sECH}, 4")
def wcd(ldsbase, srcbase, i, npieces, nlines, tag, nslots):
    last=npieces-1; rem=nlines-64*last
    d(f"s_add_u32 {sT0}, {sWAVE}, {4*i}")
    gen = 4*i+3>=last
    if WROT:
        gen=True
        if nslots==8: d(f"s_add_u32 {sT0}, {sT0}, {sROT}\ns_and_b32 {sT0}, {sT0}, 7")
        else: d(f"s_add_u32 {sT0}, {sT0}, s62\ns_cmp_ge_u32 {sT0}, 12\ns_cselect_b32 {sT1}, 12, 0\ns_sub_u32 {sT0}, {sT0}, {sT1}")
    if gen:
        lo=min(rem,32); hi=max(rem-32,0)
        d(f"s_cmp_eq_u32 {sT0}, {last}\ns_cselect_b32 exec_lo, {hex((1<<lo)-1)}, -1\ns_cselect_b32 exec_hi, {hex((1<<hi)-1)}, -1\ns_cmp_gt_u32 {sT0}, {last}\ns_cselect_b32 exec_lo, 1, exec_lo\ns_cselect_b32 exec_hi, 0, exec_hi\ns_min_u32 {sT0}, {sT0}, {last}")
    d(f"s_lshl_b32 {sT1}, {sT0}, 10\ns_add_u32 m0, {sT1}, {ldsbase}\ns_lshl_b32 {sT0}, {sT0}, 13\ns_add_u32 {sT0}, {sT0}, {sT3}\ns_add_u32 {sT0}, {sT0}, {srcbase}")
    d(f"buffer_load_dwordx4 v{vWC}, {sWC}, {sT0} offen lds", tag=tag)
    if gen: d("s_mov_b64 exec, -1")
if WROT: d(f"s_mul_i32 s62, {sROT}, 3\ns_lshr_b32 s62, s62, 3")
sig={'w1':False,'w2':False}
def eread(n, mt):
    k=n>>1; cc=n&1; r=EF+8*(n%3)
    return f"ds_read_b128 v[{r+4*mt}:{r+4*mt+3}], v{adr(k,mt,cc)}"
for n in range(2):
    for mt in range(2): d(eread(n,mt))
for n in range(PRE,PRE+POST):
    for t in range(2): wl(n,t)
nl=PRE+POST
if NOD:
    d("v_mov_b32 v10, 0"); d("s_branch L_dpre")
LA = 1 if MODE=='v' else int(opt('--la',2))
def fbuf(n): return FF+8*(n&1) if MODE=='v' else 92+8*(n%3)
def transp(n):
    r=RING+8*(n%NR); f=fbuf(n)
    if MODE=='v':
        dpp=[f"v_mov_b32_dpp v{TT+i}, v{r+i} row_ror:8 row_mask:0xf bank_mask:0xf bound_ctrl:0" for i in range(8)]
        def P(i0,rr): return f"v_perm_b32 v{f+4*(rr&1)+2*(rr>>1)+i0}, v{TT+4*i0+rr}, v{r+4*i0+rr}, v{vSel}"
        def S(r0,i0): return f"v_permlane16_swap_b32 v{f+4*r0+i0}, v{f+4*r0+2+i0}"
        return [[dpp[0],dpp[2],dpp[1],dpp[3],P(0,0),P(0,2)],[dpp[4],dpp[6],P(0,1),P(0,3),S(0,0)],[dpp[5],dpp[7],P(1,0),P(1,2),P(1,1)],[P(1,3),S(1,0),S(0,1),S(1,1)]]
    W=lambda i0: f"ds_write_b128 v4, v[{r+4*i0}:{r+4*i0+3}]"
    R=lambda i0,nt: f"ds_read_b64_tr_b16 v[{f+4*nt+2*i0}:{f+4*nt+2*i0+1}], v{11 if nt else 0}"
    return [[W(0),R(0,0),R(0,1)],[W(1),R(1,0),R(1,1)],[],[]]
for n in range(LA):
    d.wait_tag(f'w{n}')
    for g in transp(n): emit(d,g)
W2=RING
EP=int(opt('--ep',20)); RA=140
def relg(): pass
for n in range(26):
    G = transp(n+LA) if n+LA<26 else [[],[],[],[]]
    f=fbuf(n); e=EF+8*(n%3)
    mf=[]
    for nt in range(2):
        for mt in range(2):
            acc=ACC+16*(2*nt+mt)
            cs = "0" if n==0 else f"v[{acc}:{acc+15}]"
            mf.append(f"v_mfma_f32_32x32x16_bf16 v[{acc}:{acc+15}], v[{f+4*nt}:{f+4*nt+3}], v[{e+4*mt}:{e+4*mt+3}], {cs}")
    if n in (0,3,6,9,12,15,18,21,24): tr(d,'D',f'n{n}')
    vm=None
    idx=[i for i,(t,_) in enumerate(d.vmq) if t==f'w{n+LA}']
    if idx: vm=len(d.vmq)-1-max(idx)
    need=set(('v',r) for r in list(range(e,e+8))+list(range(f,f+8)))
    li=[i for i,(t,dr) in enumerate(d.lgq) if need & set(dr)]
    d.wait(vm=vm, lg=(len(d.lgq)-1-max(li)) if li else None)
    todo=[]
    cnt=2 if (RAMP and n>=RAMP-1) else 1
    while cnt>0 and nl<26 and nl-NR<=n+LA-1-(0 if MODE=='v' else 1):
        todo+=[(nl,t) for t in range(2)]; nl+=1; cnt-=1
    for i in range(4):
        d(mf[i])
        if i<len(todo): wl(*todo[i])
        if MODE=='v':
            if i==2 and n+2<26: d(eread(n+2,0))
            if i==3 and n+2<26: d(eread(n+2,1))
            emit(d,G[i])
            emit(d,lazy[8*n+2*i:8*n+2*i+2])
        else:
            emit(d,G[i])
            if i==2 and n+2<26: d(eread(n+2,0))
            if i==3 and n+2<26: d(eread(n+2,1))
        if i==3:
            if n in QI: wcd(WCB,86528,QI.index(n),11,676,'c1',12)
            if n in AI: wcd(WCA,0,AI.index(n),NQA,64*NQA,'c2',8)
            if n==BI[0]: swait(d,C_RP,4,6,7); relg()
            if n in BI: wcd(WCB,13*HR*128,BI.index(n),NQB,676-13*HR,'c2',8)
            if n==S1: d.wait_tag('c1'); arrive(d,C_W1,6,7); sig['w1']=True
            if n==S2: d.wait_tag('c2'); arrive(d,C_W2,6,7); sig['w2']=True
    if n==EP:
        d(f"v_lshrrev_b32 v6, 3, v1\nv_bfe_u32 v7, v1, 1, 2\nv_lshlrev_b32 v6, 11, v6\nv_lshl_or_b32 v6, v7, 9, v6\nv_lshl_or_b32 v6, v7, 5, v6\nv_and_b32 v7, 1, v1\nv_lshl_or_b32 v6, v7, 4, v6")
        d(f"v_xor_b32 v{RA}, {sT2}, v6\nv_xor_b32 v{RA+1}, 16, v{RA}")
        for k in range(3):
            d(f"s_lshr_b32 {sT1}, {sROT}, {2 if XL else 0}\ns_xor_b32 {sT0}, {sWAVE}, {k+1}\ns_add_u32 {sT0}, {sT0}, {sT1}\ns_and_b32 {sT0}, {sT0}, 3\ns_lshl_b32 {sT0}, {sT0}, 5\nv_xor_b32 v{RA+2+2*k}, {sT0}, v6\nv_xor_b32 v{RA+3+2*k}, 16, v{RA+2+2*k}")
    if n==EP+1:
        d(f"v_mov_b32 v9, {f2u(C1):#x}")
        d(f"s_and_b32 s60, {sMB}, 1\ns_lshl_b32 s60, s60, 1\ns_lshr_b32 {sT1}, {sWAVE}, 1\ns_add_u32 s60, s60, {sT1}\ns_lshl_b32 s60, s60, 11")
        d(f"s_lshl_b32 {sT1}, {sP}, 13\ns_add_u32 s60, s60, {sT1}\ns_lshl_b32 {sT1}, {sNB}, 7\ns_add_u32 s60, s60, {sT1}\ns_and_b32 {sT1}, {sWAVE}, 1\ns_lshl_b32 {sT1}, {sT1}, 6\ns_add_u32 s60, s60, {sT1}\ns_add_u32 s60, s60, 512")
        swait(d,C_TAB,4,6,7)
    if n==24:
        send_addr(d); swait(d,C_RDY,1,6,7,sleep=2); d('s_mov_b32 s61, s100')
    if n==22:
        W2=RING+8*(20%NR)
        assert (21%NR)==(20%NR)+1
        if MODE=='v':
            d(f"v_lshrrev_b32 v8, 5, v1\nv_lshlrev_b32 v8, 6, v8\ns_lshl_b32 {sT0}, {sNB}, 7\ns_and_b32 {sT1}, {sWAVE}, 1\ns_lshl_b32 {sT1}, {sT1}, 2\ns_add_u32 {sT0}, {sT0}, {sT1}")
            for r in range(4): d(f"buffer_load_dwordx3 v[{W2+4*r}:{W2+4*r+2}], v8, {sWD2}, {sT0} offen offset:{16*r}")
        else:
            d(f"v_lshrrev_b32 v8, 5, v1\nv_lshlrev_b32 v8, 3, v8\ns_lshl_b32 {sT0}, {sNB}, 7\ns_and_b32 {sT1}, {sWAVE}, 1\ns_lshl_b32 {sT1}, {sT1}, 6\ns_add_u32 {sT0}, {sT0}, {sT1}")
            for g in range(4): d(f"buffer_load_dwordx2 v[{W2+2*g}:{W2+2*g+1}], v8, {sWD2}, {sT0} offen offset:{16*g}")
assert nl==26, nl
assert sig['w1']
if not sig['w2']:
    d.wait_tag('c2'); arrive(d,C_W2,6,7)
stamp(d,4); tr(d,'D','loop')
d(f"s_bitcmp1_b32 {sWAVE}, 0\ns_cbranch_scc1 L_dep1")
WV=148
def redaddr(j): return (j>>1)&1, (j&3)*128 + (j>>2)*16384
def depi(d,P):
    def te(n):
        if P==0: tr(d,'E',n)
    te('start')
    order=[(nt,mt) for nt in range(2) for mt in range(2) if (P^nt)+2*mt]
    for (nt,mt) in order:
        cx=(P^nt)+2*mt; acc=ACC+16*(2*nt+mt)
        for q in range(4):
            v,off=redaddr(4*(cx-1)+q)
            d(f"ds_write_b128 v{RA+v}, v[{acc+4*q}:{acc+4*q+3}] offset:{off}")
    arrive(d,C_RED,6,7); te('wr')
    for gp in range(4):
        for r in range(4):
            src=W2+4*r+2*(gp>>1); hi=gp&1
            d(f"v_and_b32 v{WV+4*gp+r}, 0xffff0000, v{src}" if hi else f"v_lshlrev_b32 v{WV+4*gp+r}, 16, v{src}")
    te('unp')
    swait(d,C_RED,4,6,7); te('sync')
    own=ACC+16*(2*P); RB=92
    for q in range(4):
        for k in range(3):
            v,off=redaddr(4*k+q)
            d(f"ds_read_b128 v[{RB+16*k+4*q}:{RB+16*k+4*q+3}], v{RA+2+2*k+v} offset:{off}")
    for j in range(4):
        for i in range(4): d(f"v_add_f32 v{RB+4*j+i}, v{RB+4*j+i}, v{RB+16+4*j+i}")
        for i in range(4): d(f"v_add_f32 v{own+4*j+i}, v{own+4*j+i}, v{RB+32+4*j+i}")
        for i in range(4): d(f"v_add_f32 v{own+4*j+i}, v{own+4*j+i}, v{RB+4*j+i}")
    te('add')
    for o in gelu_ops([own+i for i in range(16)], [164+i for i in range(16)], 9): d(o)
    te('gelu')
    d(f"v_mul_f32 v10, v{own}, v{WV}\nv_mul_f32 v11, v{own+1}, v{WV+1}")
    for i in range(2,16): d(f"v_fmac_f32 v{10+(i&1)}, v{own+i}, v{WV+i}")
    d("v_add_f32 v10, v10, v11")
d0=d.fork(); d1=d.fork(); d0.sy=d1.sy=d.sy
depi(d0,0); d0("s_branch L_dpre")
depi(d1,1)
d.lines += d0.lines; d.label("L_dep1"); d.lines += d1.lines
d.pos=d1.pos; d.w=d1.w; d.lgq=[]; d.vmq=[]
d.label("L_dpre")
stamp(d,6); tr(d,'D','epi')
tr(d,'H','presend'); tr(d,'E','pre')
send(d,'s60','s61')
tr(d,'H','sent'); tr(d,'E','sent')
d(f"s_cmp_eq_u32 {sWAVE}, 0\ns_cbranch_scc0 L_fin")
d(f"v_lshlrev_b32 v3, 4, v1\ns_lshl_b32 {sT0}, s2, 10")
d._emit(f"buffer_load_dwordx4 v[16:19], v3, {sWS}, {sT0} offen sc1")
d._emit("s_sleep 4")
d.label("L_poll")
d._emit(f"buffer_load_dwordx4 v[20:23], v3, {sWS}, {sT0} offen sc1")
d._emit("s_waitcnt vmcnt(1)")
d._emit("v_max_u32 v4, v16, v17"); d._emit("v_max3_u32 v4, v4, v18, v19"); d._emit("v_cmp_eq_u32 vcc, -1, v4"); d._emit(f"s_add_u32 {sSPIN}, {sSPIN}, 64"); d._emit("s_nop 3"); d._emit("s_cbranch_vccz L_gotA")
d._emit(f"buffer_load_dwordx4 v[16:19], v3, {sWS}, {sT0} offen sc1")
d._emit("s_waitcnt vmcnt(1)")
d._emit("v_max_u32 v4, v20, v21"); d._emit("v_max3_u32 v4, v4, v22, v23"); d._emit("v_cmp_eq_u32 vcc, -1, v4"); d._emit(f"s_cmp_ge_u32 {sSPIN}, {SPINMAX}"); d._emit("s_cbranch_scc1 L_gotB"); d._emit("s_nop 2"); d._emit("s_cbranch_vccnz L_poll")
d.label("L_gotB")
for r in range(4): d._emit(f"v_mov_b32 v{12+r}, v{20+r}")
d._emit("s_branch L_pollx")
d.label("L_gotA")
for r in range(4): d._emit(f"v_mov_b32 v{12+r}, v{16+r}")
d.label("L_pollx")
tr(d,'H','polled'); tr(d,'E','polled')
d._emit("s_nop 1")
d.vmq=[]
for sh in (4,8):
    for r in range(4): d(f"v_add_f32_dpp v{12+r}, v{12+r}, v{12+r} row_ror:{sh} row_mask:0xf bank_mask:0xf bound_ctrl:0")
for sw in (16,32):
    for r in range(4): d(f"v_mov_b32 v{24+r}, v{12+r}")
    for r in range(4): d(f"v_permlane{sw}_swap_b32 v{12+r}, v{24+r}")
    for r in range(4): d(f"v_add_f32 v{12+r}, v{12+r}, v{24+r}")
d(f"v_cvt_pk_bf16_f32 v12, v12, v13\nv_cvt_pk_bf16_f32 v13, v14, v15\nv_lshlrev_b32 v3, 3, v1\ns_lshl_b32 {sT0}, s2, 5\ns_mov_b64 exec, 0xf")
d(f"buffer_store_dwordx2 v[12:13], v3, {sOUT}, {sT0} offen")
tr(d,'D','fin'); tr(d,'H','fin'); tr(d,'E','fin')
if TRACE=='H': d._emit('s_waitcnt lgkmcnt(0)'); d._emit(f's_add_u32 s12, {sSPIN}, s86')
d("s_mov_b64 exec, -1\ns_branch L_fin")

c.label("L_cross"); c.sy=(251,252,6)
if PRIO0: c(f"s_setprio {PRIO0}")
RE=12; RW=64; X=116; AA=180; FA=194; FB=180; T0=202; T1=218; DA=234
RT=X; A1=160; A2=186; HC=140
IA=RW; aE=168; aM=T1; aT=DA
vQ=4
g1=L(f"s_sub_u32 {sT2}, {sWAVE}, 4")
g1+=L(f"s_mul_i32 {sT0}, {sT2}, 3328\ns_add_u32 {sT0}, {sT0}, {IDXS}\nv_add_u32 v7, {sT0}, v7")
g1+=L("v_lshrrev_b32 v8, 3, v5\nv_bfe_u32 v9, v5, 2, 1\nv_and_b32 v10, 3, v5")
g1+=L("v_lshl_add_u32 v11, v8, 2, v10\nv_lshl_add_u32 v3, v9, 3, v11")
g1+=L(f"v_mul_u32_u24 v250, 169, v6\nv_add_u32 v250, v250, v3\nv_lshlrev_b32 v250, 1, v250\nv_add_u32 v250, {SE1S}, v250")
g1+=L(f"v_cmp_gt_u32 vcc, 13, v3\nv_cmp_gt_u32 {sMK}, 16, v5\ns_and_b64 vcc, vcc, {sMK}\nv_mov_b32 v3, {SE1S+680}\nv_cndmask_b32 v250, v3, v250, vcc")
g1+=L(f"v_mul_u32_u24 v3, 13, v9\nv_add_u32 v3, v3, v11\nv_mul_u32_u24 v8, 208, v6\nv_add_u32 v9, v8, v3\nv_lshlrev_b32 v9, 1, v9\nv_add_u32 v9, {SE2S}, v9")
g1+=L(f"v_min_u32 v3, 25, v3\nv_mul_u32_u24 v3, 416, v3\nv_add_u32 v3, v3, v8")
g1+=L(f"v_cmp_gt_u32 vcc, {HR*208}, v3\nv_mov_b32 v10, {WCB-HR*208}\nv_mov_b32 v11, {WCA}\nv_cndmask_b32 v10, v10, v11, vcc\nv_add_u32 v{vQ}, v10, v3\nv_add_u32 v3, {WCB}, v3")
g1+=L(f"v_mov_b32 v251, {SYNC}\nv_mov_b32 v252, 1")
g1+=L("s_getreg_b32 s82, hwreg(HW_REG_XCC_ID, 0, 4)\ns_mul_i32 s83, s82, s82\ns_lshl_b32 s83, s83, 16\ns_lshl_b32 s82, s82, 8\ns_add_u32 s82, s82, s83\ns_add_u32 s82, s82, 1\ns_lshl_b32 s83, s82, 3")
g1+=L(f"v_mov_b32 v{A1+7}, 0\ns_lshl_b32 {sT3}, {sECH}, 4\ns_lshl_b32 {sT0}, {sP}, 3\nv_mov_b32 v254, {sT0}")
emit(c,g1)
PC=32; PB[id(c)]=PC
c(f"s_mov_b32 {sSEL[0]}, 0x05040100\ns_mov_b32 {sSEL[1]}, 0x07060302\ns_mov_b32 {sSELZ[0]}, 0x0c0c0100\ns_mov_b32 {sSELZ[1]}, 0x0c0c0302\ns_mov_b32 {sTWc}, {TW}\ns_mov_b32 {sTMc}, {TM}")
def caddr(js):
    o=[]
    for j in js:
        r=IA+j
        o+=swz(aE+j, r, 0, sT3)+L(f"v_lshl_add_u32 v{aT+j}, v{r}, 4, {sTWc}\nv_lshl_add_u32 v{aM+j}, v{r}, 1, {sTMc}")
    return o
def w4(c, fn, name, cond="scc0"):
    c(f"s_cmp_eq_u32 {sWAVE}, 4\ns_cbranch_{cond} L_{name}")
    lg=list(c.lgq)
    fn()
    c.lgq=lg
    c.label(f"L_{name}")
def clr():
    for r in range(4): c._emit(f"v_mov_b32 v{vF+r}, -1")
    c._emit(f"s_lshl_b32 {sT0}, s2, 10"); c._emit(f"v_lshlrev_b32 v5, 4, v1")
    c._emit(f"buffer_store_dwordx4 v[{vF}:{vF+3}], v5, {sWS}, {sT0} offen sc1")
    c._emit(f"s_lshl_b32 {sT0}, s2, 5"); c._emit(f"v_mov_b32 v6, 0")
    c._emit(f"buffer_load_dword v255, v6, {sOUT}, {sT0} offen"); c._emit("s_nop 1")
def wc_dma(ldsbase, srcbase, i, npieces, tag):
    if 3*i+2 <= npieces-1:
        c(f"s_add_u32 {sT1}, s78, {ldsbase+3072*i}\ns_mov_b32 m0, {sT1}\ns_add_u32 {sT0}, s77, {srcbase+24576*i}")
    else:
        c(f"s_add_u32 {sT0}, s80, {3*i}\ns_min_u32 {sT0}, {sT0}, {npieces-1}\ns_lshl_b32 {sT1}, {sT0}, 10\ns_add_u32 {sT1}, {sT1}, {ldsbase}\ns_mov_b32 m0, {sT1}")
        c(f"s_lshl_b32 {sT0}, {sT0}, 13\ns_add_u32 {sT0}, {sT0}, {sT3}\ns_add_u32 {sT0}, {sT0}, {srcbase}")
    c(f"buffer_load_dwordx4 v2, {sWC}, {sT0} offen lds", tag=tag)
rd=wb_read()+idx_read(IA,7)
rd+=[f"ds_read_u16 v{(RE+t) if t<12 else (A1+6)}, v250 offset:{26*t}" for t in range(13)]
rd+=[f"ds_read_u16 v{RE+12+t}, v9 offset:{52*t}" for t in range(8)]
pk_=[f"v_lshl_or_b32 v{A1+t}, v{RE+2*t+1}, 16, v{RE+2*t}" for t in range(6)]+[f"v_lshl_or_b32 v{A2+t}, v{RE+12+2*t+1}, 16, v{RE+12+2*t}" for t in range(4)]
h=c.fork(); h.sy=c.sy
h.label("L_w4")
def pf(t): h._emit(t); h.vmq.append(('pf',[]))
PFS=opt('--pfs','c0,w1,w2,w3')
slots=opt('--pfslots','c,1,2,3').split(',')
h(f"v_bfe_u32 v255, v1, 3, 1\nv_mul_u32_u24 v255, 13, v255\nv_lshrrev_b32 v247, 4, v1\nv_add_u32 v255, v255, v247\nv_and_b32 v247, 7, v1\nv_lshl_add_u32 v255, v255, 6, v247\nv_lshlrev_b32 v255, 9, v255")
h(f"s_lshr_b32 s84, {sROT}, 2\ns_lshl_b32 s84, s84, 12\ns_lshl_b32 s101, {sNB}, 7\ns_add_u32 s84, s84, s101")
def do_pf(tok):
    if not PF: return
    for t in tok:
        if t=='c':
            h(f"s_mul_i32 s100, {sROT}, {43*128}\ns_mov_b32 exec_hi, 0x7ff"); pf(f"buffer_load_dword v249, v{vW7}, {sWC}, s100 offen")
            h("s_mov_b64 exec, 0xf"); pf(f"buffer_load_dword v249, v{vW7}, {sWD2}, 0 offen"); h("s_mov_b64 exec, -1")
        elif t in '0123':
            i=int(t)
            h(f"s_add_u32 s100, s84, {4*i*32768}")
            if i==3: h("s_mov_b64 exec, 0xffff")
            pf(f"buffer_load_dword v249, v255, {sWD1}, s100 offen")
            if i==3: h("s_mov_b64 exec, -1")
do_pf(slots[0])
for r in range(4): h(f"v_mov_b32 v{T0+r}, -1")
h(f"s_lshl_b32 {sT0}, s2, 10\nbuffer_store_dwordx4 v[{T0}:{T0+3}], v{vL16}, {sWS}, {sT0} offen sc1")
h(f"s_lshl_b32 {sT0}, s2, 5\ns_mov_b64 exec, 1\nbuffer_load_dword v248, v{vL16}, {sOUT}, {sT0} offen\ns_mov_b64 exec, -1")
emit(h, static_tiles(PC,5,[0]))
h.wait_tag('stg')
h("s_barrier")
do_pf(slots[1])
emit(h, rd+wb_fix()+tileR(0,PC)+caddr(range(0,6))+tileM(0)+caddr(range(6,13))+[('FN',lambda: do_pf(slots[2]))]+tileC(0,HC)+pk_+tileW((0,),HC,PC))
if opt('--pfsleep'): h(f"s_sleep {opt('--pfsleep')}")
do_pf(slots[3])
h.wait_all_lgkm()
h("s_branch L_cB3")
c(f"s_cmp_eq_u32 {sWAVE}, 4\ns_cbranch_scc1 L_w4")
tr(c,'T','karg')
emit(c, static_tiles(PC,5))
for n in range(4,NB1): tdma(c,n)
tr(c,'T','preB1')
c.wait_tag('stg')
c("s_barrier")
tr(c,'T','B1')
g2=rd+wb_fix()+tileR(0,PC)+caddr(range(0,3))+tileM(0)+caddr(range(3,6))+tileC(0,HC)+pk_+tileR(1,PC)+caddr(range(6,9))+tileM(1)+caddr(range(9,13))+tileC(1,HC)+tileR(2,PC)+tileW((0,1),HC,PC)+tileM(2)+tileC(2,HC)
cut=len(g2)-len(tileR(2,PC)+tileW((0,1),HC,PC)+tileM(2)+tileC(2,HC))
spread(c,[ (lambda n=n: tdma(c,n)) for n in range(NB1,20)], g2, float(opt('--frontc',0.85)), True)
emit(c, tileR(3,PC)+tileW((2,),HC,PC)+tileM(3)+tileC(3,HC))
tr(c,'T','g3')
emit(c, tileR(4,PC)); tr(c,'T','t3R')
emit(c, tileW((3,),HC,PC)+tileM(4)+tileC(4,HC)+tileW((4,),HC,PC))
c.wait_all_lgkm(); tr(c,'T','t3W')
c.label("L_cB3")
c("s_barrier")
tr(c,'T','B3')
stamp(c,3); tr(c,'C','B3')
if PRIO_C!=PRIO0: c(f"s_setprio {PRIO_C}")
def rdy():
    c._emit("s_waitcnt vmcnt(0)")
    c._emit("v_mov_b32 v5, s82"); c._emit("s_mov_b64 exec, 1")
    c._emit(f"buffer_atomic_add v5, v254, {sDBG}, 0 offen"); c._emit("s_mov_b64 exec, -1")
def rdyissue():
    c._emit(f"buffer_load_dword v253, v254, {sDBG}, 0 offen sc1")
def rdycheck(sfx=""):
    c._emit("s_branch L_chkr"+sfx)
    c.label("L_chk"+sfx)
    c._emit(f"buffer_load_dword v253, v254, {sDBG}, 0 offen sc1")
    c.label("L_chkr"+sfx)
    c._emit("s_waitcnt vmcnt(0)")
    c._emit(f"v_readfirstlane_b32 s100, v253"); c._emit(f"s_add_u32 {sSPIN}, {sSPIN}, 64"); c._emit(f"s_cmp_ge_u32 {sSPIN}, {SPINMAX}"); c._emit("s_cbranch_scc1 L_chkx"+sfx)
    c._emit("s_and_b32 s101, s100, 0xff"); c._emit(f"s_cmp_ge_u32 s101, 8"); c._emit("s_cbranch_scc1 L_chkx"+sfx); c._emit("s_sleep 16"); c._emit("s_branch L_chk"+sfx)
    c.label("L_chkx"+sfx)
    c._emit("s_cmp_eq_u32 s100, s83"); c._emit(f"s_cselect_b32 s100, {2 if XL else 1}, 1"); c._emit("v_mov_b32 v5, s100")
    c._emit(f"ds_write_b32 v251, v5 offset:{4*C_RDY}"); c._emit("s_waitcnt lgkmcnt(0)")
def cslot():
    c(f"s_lshl_b32 s79, {sT2}, 11\ns_lshl_b32 {sT1}, {sP}, 13\ns_add_u32 s79, s79, {sT1}\ns_lshl_b32 {sT1}, {sG8}, 6\ns_add_u32 s79, s79, {sT1}")
if NOC:
    arrive(c,C_TAB); arrive(c,C_RP); w4(c,rdy,"rdyn"); c("s_sleep 64"); w4(c,lambda: (rdyissue(), rdycheck("n")),"nchk"); cslot(); send_addr(c); swait(c,C_RDY,1,sleep=32); c("v_mov_b32 v10, 0"); c("s_branch L_csend")
Z=FA; G=FB
ZR=[RW+j for j in range(12)]+[Z+6]
for j in range(13): c(f"ds_read_u16 v{ZR[j]}, v{aM+j}", tag='z')
c(f"v_mov_b32 v{Z+7}, 0\nv_mov_b32 v9, {f2u(C1):#x}")
EG=[f"ds_read_b128 v[{RE+4*j}:{RE+4*j+3}], v{aE+j}" for j in range(13)]
emit(c, EG[:2])
tr(c,'C','zg')
cslot(); send_addr(c)
for t in range(6): c(f"v_lshl_or_b32 v{Z+t}, v{RW+2*t+1}, 16, v{RW+2*t}")
c(f"v_mfma_f32_32x32x16_bf16 v[{T0}:{T0+15}], v[{A1}:{A1+3}], v[{Z}:{Z+3}], 0")
c(f"v_mfma_f32_32x32x16_bf16 v[{T0}:{T0+15}], v[{A1+4}:{A1+7}], v[{Z+4}:{Z+7}], v[{T0}:{T0+15}]")
emit(c, EG[2:8])
c(f's_mov_b32 s81, {f2u(-0.6931471806):#x}')
go=gelu_ops([T0+i for i in range(8)],[RW+i for i in range(8)],9,'s81')
for i,o in enumerate(go):
    c(o)
    if i in (8,16,24,32,40): c(EG[8+i//8-1])
arrive(c,C_TAB)
for i in range(4): c(f"v_cvt_pk_bf16_f32 v{G+i}, v{T0+2*i}, v{T0+2*i+1}")
c(f"v_mfma_f32_32x32x16_bf16 v[{T1}:{T1+15}], v[{A2}:{A2+3}], v[{G}:{G+3}], 0")
w4(c, rdy, "rdy")
for e_ in range(8): c(f"v_mov_b32 v{X+8*e_+7}, 0")
for j in range(13): c(f"v_exp_f32 v{AA+j}, v{T1+j}")
for j in range(13): c(f"v_add_f32 v{AA+j}, 1.0, v{AA+j}")
for j in range(13): c(f"v_rcp_f32 v{AA+j}, v{AA+j}")
stamp(c,2); tr(c,'C','senet')
if opt('--cp','vf8')=='senet': c('s_setprio 1')
def read_rw(vb, j): return f"ds_read_b128 v[{RW+4*j}:{RW+4*j+3}], v{vb} offset:{16*j}"
def perm_frag(F, R, e):
    wi=e>>1; hs=e&1
    o=[f"v_perm_b32 v{F+pp}, v{R+4*(2*pp+1)+wi}, v{R+4*(2*pp)+wi}, {sSEL[hs]}" for pp in range(6)]
    return o+[f"v_perm_b32 v{F+6}, v{R+48+wi}, v{R+48+wi}, {sSELZ[hs]}"]
DOT=int(opt('--dot',0))
def v_frag(e):
    wi=e>>1; o=[]; F=X+8*e
    if DOT:
        for j in range(13): o.append(f"v_dot2_f32_bf16 v{T0+j}, v{RE+4*j+wi}, v{AA+j}, 0")
        for j in range(0,12,2): o.append(f"v_cvt_pk_bf16_f32 v{F+(j>>1)}, v{T0+j}, v{T0+j+1}")
        o.append(f"v_cvt_pk_bf16_f32 v{F+6}, v{T0+12}, 0")
        return o
    for j in range(13):
        t=T0+j
        o.append(f"v_and_b32 v{t}, 0xffff0000, v{RE+4*j+wi}" if e&1 else f"v_lshlrev_b32 v{t}, 16, v{RE+4*j+wi}")
    for j in range(13): o.append(f"v_mul_f32 v{T0+j}, v{T0+j}, v{AA+j}")
    for j in range(0,12,2): o.append(f"v_cvt_pk_bf16_f32 v{F+(j>>1)}, v{T0+j}, v{T0+j+1}")
    o.append(f"v_cvt_pk_bf16_f32 v{F+6}, v{T0+12}, 0")
    return o
VW=int(opt('--vw',6))
EO=[0,2,4,6,1,3,5,7] if DOT else list(range(8))
def vf(i):
    if DOT and i==4:
        for j in range(13): c(f"v_lshlrev_b32 v{AA+j}, 16, v{AA+j}")
    emit(c, v_frag(EO[i]))
if DOT:
    for j in range(13): c(f"v_cvt_pk_bf16_f32 v{AA+j}, v{AA+j}, 0")
for e_ in range(VW): vf(e_)
tr(c,'C','vf4')
w4(c, rdyissue, "rdi")
swait(c,C_W1,4)
stamp(c,4); tr(c,'C','w1all')
if opt('--cp','vf8')=='w1': c('s_setprio 1')
for j in range(13): c(read_rw(3,j))
arrive(c,C_RP)
for e_ in range(VW,8): vf(e_)
w4(c, rdycheck, "nochk")
tr(c,'C','vf8')
if opt('--cp','vf8')=='vf8': c('s_setprio 1')
def mm(T, B):
    return [f"v_mfma_f32_32x32x16_bf16 v[{T}:{T+15}], v[{FA}:{FA+3}], v[{B}:{B+3}], 0",
            f"v_mfma_f32_32x32x16_bf16 v[{T}:{T+15}], v[{FA+4}:{FA+7}], v[{B+4}:{B+7}], v[{T}:{T+15}]"]
def pack1(wi, q, ii):
    o=[f"v_mul_f32 v{T0+ii}, v{T0+ii}, v{AA+ii}", f"v_mul_f32 v{T1+ii}, v{T1+ii}, v{AA+ii}"] if q else []
    return o+[f"v_cvt_pk_bf16_f32 v{RW+4*ii+wi}, v{T0+ii}, v{T1+ii}"]
def diag1(ii, first): return f"v_mfma_f32_32x32x16_bf16 v[{DA}:{DA+15}], v[{RT+4*ii}:{RT+4*ii+3}], v[{RW+4*ii}:{RW+4*ii+3}], {'0' if (first and ii==0) else f'v[{DA}:{DA+15}]'}"
def rtg(j): return f"ds_read_b128 v[{RT+4*j}:{RT+4*j+3}], v{aT+j}"
c(f"v_mov_b32 v{FA+7}, 0")
emit(c, perm_frag(FA,RW,0))
for wi in range(4):
    e0,e1=2*wi,2*wi+1
    emit(c, mm(T0,X+8*e0)); emit(c, perm_frag(FA,RW,e1))
    for j in (2*e0,2*e0+1):
        if j<13: c(rtg(j))
    emit(c, mm(T1,X+8*e1))
    for j in (2*e1,2*e1+1):
        if j<13: c(rtg(j))
    if wi<3:
        emit(c, perm_frag(FA,RW,e0+2))
        for ii in range(13): c(pack1(wi,True,ii)[0])
        for ii in range(13): emit(c, pack1(wi,True,ii)[1:])
    else:
        tr(c,'C','qmm')
        if opt('--cd','p')=='qmm': c('s_setprio 0')
        for ii in range(13): c(pack1(wi,True,ii)[0])
        swait(c,C_W2,4); tr(c,'C','w2all')
        pk=[pack1(wi,True,ii)[1:] for ii in range(13)]
        emit(c, pk[0]);
        for ii in range(13):
            if ii+1<13: emit(c, pk[ii+1])
            else: c(f"v_mov_b32 v{FB+7}, 0\ns_nop 0")
            c(diag1(ii,True))
            if ii>0: c(read_rw(vQ,ii-1))
        c(read_rw(vQ,12))
stamp(c,5); tr(c,'C','diagq')
if opt('--cd','p')=='p': c('s_setprio 0')
emit(c, perm_frag(FB,RE,0)); emit(c, perm_frag(FA,RW,0))
for wi in range(4):
    e0,e1=2*wi,2*wi+1
    emit(c, mm(T0,FB)); emit(c, perm_frag(FA,RW,e1)+perm_frag(FB,RE,e1)); emit(c, mm(T1,FB))
    if wi<3:
        emit(c, perm_frag(FA,RW,e0+2)+perm_frag(FB,RE,e0+2))
        for ii in range(13): emit(c, pack1(wi,False,ii))
    else:
        swait(c,C_RDY,1); c('s_mov_b32 s81, s100')
        c("s_mov_b32 s82, 0xaaaaaaaa\ns_mov_b32 s83, 0xaaaaaaaa\ns_mov_b32 s84, 0xcccccccc\ns_mov_b32 s85, 0xcccccccc\ns_mov_b32 s72, 0xff00ff00\ns_mov_b32 s73, 0xff00ff00\ns_mov_b32 s74, 0xffff0000\ns_mov_b32 s75, 0xffff0000\ns_mov_b32 s76, 0x0f0f0f0f\ns_mov_b32 s77, 0xf0f0f0f0")
        emit(c, pack1(wi,False,0)+pack1(wi,False,1)+pack1(wi,False,2))
        for ii in range(13):
            if ii+3<13: emit(c, pack1(wi,False,ii+3))
            c(diag1(ii,False))
for i in range(8): c(f"v_cndmask_b32 v{DA+2*i}, v{DA+2*i}, v{DA+2*i+1}, s[82:83]")
for i in range(4): c(f"v_cndmask_b32 v{DA+4*i}, v{DA+4*i}, v{DA+4*i+2}, s[84:85]")
for i in range(2): c(f"v_cndmask_b32 v{DA+8*i}, v{DA+8*i}, v{DA+8*i+4}, s[72:73]")
c(f"v_cndmask_b32 v{DA}, v{DA}, v{DA+8}, s[74:75]")
c(f"v_cndmask_b32 v10, 0, v{DA}, s[76:77]")
c.label("L_csend")
tr(c,'C','end')
stamp(c,6)
send(c,"s79","s81")
e=c
e.label("L_fin")
if PAD:
    e.label("L_pad")
    e._emit("s_memrealtime s[100:101]"); e._emit("s_waitcnt lgkmcnt(0)"); e._emit("s_sub_u32 s100, s100, s92"); e._emit(f"s_cmp_lt_u32 s100, {PAD}"); e._emit("s_cbranch_scc1 L_pad")
if TRACE:
    e._emit("s_memrealtime s[100:101]"); e._emit("s_waitcnt vmcnt(0) lgkmcnt(0)")
    e._emit(f"s_cmp_eq_u32 {sWAVE}, {0 if TRACE in ('D','S','H','E') else SW}"); e._emit("s_cbranch_scc0 L_end")
    e._emit("v_mov_b32 v16, s92"); e._emit("v_mov_b32 v17, s100")
    for i in range(14): e._emit(f"s_sub_u32 s{TRREG[i]}, s{TRREG[i]}, s86"); e._emit(f"v_mov_b32 v{18+i}, s{TRREG[i]}")
    e._emit(f"s_lshl_b32 {sT0}, s2, 6"); e._emit(f"s_add_u32 {sT0}, {sT0}, 0x8000000"); e._emit("v_mov_b32 v3, 0"); e._emit("s_mov_b64 exec, 1")
    for i in range(4): e._emit(f"buffer_store_dwordx4 v[{16+4*i}:{19+4*i}], v3, {sWS}, {sT0} offen offset:{16*i}")
    sys.stderr.write(" ".join(f"{i+2}:{n}" for i,n in enumerate(trn[TRACE]))+"\n")
elif STAMP:
    e._emit(f"s_memtime s[70:71]"); e._emit("s_memrealtime s[100:101]"); e._emit("s_waitcnt lgkmcnt(0)")
    e._emit(f"s_cmp_eq_u32 {sWAVE}, 0"); e._emit(f"s_cselect_b32 {sT0}, 1, 0"); e._emit(f"s_cmp_eq_u32 {sWAVE}, {SW}"); e._emit(f"s_cselect_b32 {sT1}, 1, 0"); e._emit(f"s_or_b32 {sT0}, {sT0}, {sT1}"); e._emit("s_cbranch_scc0 L_end")
    for i in range(1,8): e._emit(f"s_sub_u32 s{STR[i]}, s{STR[i]}, s86")
    e._emit("v_mov_b32 v16, s92"); e._emit("v_mov_b32 v17, s100")
    for i in range(1,8): e._emit(f"v_mov_b32 v{17+i}, s{STR[i]}")
    e._emit(f"s_lshl_b32 {sT0}, s2, 6"); e._emit(f"s_add_u32 {sT0}, {sT0}, 0x8000000")
    e._emit("v_mov_b32 v3, 0"); e._emit("s_mov_b64 exec, 1")
    e._emit(f"s_cmp_eq_u32 {sWAVE}, 0"); e._emit("s_cbranch_scc0 L_st4b")
    e._emit(f"buffer_store_dwordx4 v[16:19], v3, {sWS}, {sT0} offen"); e._emit(f"buffer_store_dwordx4 v[20:23], v3, {sWS}, {sT0} offen offset:16"); e._emit(f"buffer_store_dword v24, v3, {sWS}, {sT0} offen offset:32")
    e._emit("s_branch L_end")
    e.label("L_st4b")
    e._emit(f"buffer_store_dwordx4 v[18:21], v3, {sWS}, {sT0} offen offset:36"); e._emit(f"buffer_store_dwordx3 v[22:24], v3, {sWS}, {sT0} offen offset:52")
e.label("L_end")
e._emit("s_endpgm")
e.label("CODE_END")
out = d.text() + "\n" + h.text() + "\n" + c.text() + f"""
.section .rodata,"a"
.p2align 6
.amdhsa_kernel {NAME}
  .amdhsa_next_free_vgpr 256
  .amdhsa_next_free_sgpr 102
  .amdhsa_accum_offset 256
  .amdhsa_group_segment_fixed_size 0
  .amdhsa_kernarg_size 88
  .amdhsa_user_sgpr_count 2
  .amdhsa_user_sgpr_kernarg_segment_ptr 1
  .amdhsa_system_sgpr_workgroup_id_x 1
.end_amdhsa_kernel
"""
print(out)
sys.stderr.write(f"nops D {d.nops} C {c.nops}\n")
```

```python
import sys, struct
from asmlib import Asm
def opt(name, default=None):
    if name in sys.argv:
        return sys.argv[sys.argv.index(name)+1]
    return default
STAMP = '--stamp' in sys.argv
SW = int(opt('--sw', 5))
PRIO_D = int(opt('--prioD', 0)); PRIO_C = int(opt('--prioC', 0))
PRE = int(opt('--pre', 6))
NB1 = int(opt('--nb1', 8))
RAMP = int(opt('--ramp', 1))
FRONT = float(opt('--front', 1.0))
MODE = opt('--mode','v')
NR = int(opt('--nr', 10))
PRIO0 = int(opt('--prio0', 1))
NOROT = '--norot' in sys.argv
NOC = '--noC' in sys.argv; NOD = '--noD' in sys.argv
NAME = "standalone__deep_cross_fibinet__recsys_kernel"
def f2u(x): return struct.unpack('<I', struct.pack('<f', x))[0]

TW=128000; TM=144000; XR=146000
IDXS=XR; WBIS=XR+13312; SE1S=WBIS+1024; SE2S=SE1S+1024
WCB=XR; WCA=XR+11264; SYNC=163776
NQA = 6 if MODE=='v' else 2
HR = (NQA*64)//13
NQB = (676-13*HR+63)//64
SCR = WCA+NQA*1024
assert WCA+NQA*1024+(0 if MODE=='v' else 4096)<=SYNC and SE2S+1024<=SYNC
LDS_BYTES=163840
sIDX,sTABL,sSE1,sSE2,sWBI,sWC,sWD1,sWD2,sOUT,sDBG,sWS = [f"s[{4+4*i}:{7+4*i}]" for i in range(11)]
SRD_SIZES=[425984,128000,676,676,8192,173056,851968,512,8192,256,0x10000000]
sWAVE,sNB,sMB,sROT,sECH,sP,sG8,sT0,sT1,sT2,sT3,sSPIN = [f"s{i}" for i in range(48,60)]
sMK="s[98:99]"; sFL="s3"
sW0=73
sSEL=["s60","s61"]; sSELZ=["s73","s74"]; sTWc="s75"; sTMc="s76"
STR=[86,88,90,62,64,66,68,70]
sTL=["s94","s95","s96","s97","s85"]
SPINMAX="0x1000000"
C_W1,C_RP,C_W2,C_TAB,C_RED,C_RDY,C_TW,C_STG = range(8)
PF = int(opt('--pf',0))
KROT=int(opt('--krot',0)); WROT=int(opt('--wrot',0))
EARLY = int(opt('--early',2))
PRIOD0 = int(opt('--priod0',0))
POST = int(opt('--post',2))
TRACE = opt('--trace','')
TRREG = [4,6,8,10,12,14,16,18,20,22,88,90,66,64]
trn = {'D':[], 'C':[], 'S':[], 'T':[], 'H':[], 'E':[]}
if TRACE=='S': TRREG=[88,90,62,64,66,68,70,60,62,62,62,62,62,62]
if TRACE=='T': TRREG=[88,90,62,64,66,68,70,82,62,62,62,62,62,62]
def tr(a, role, name):
    if TRACE==role and len(trn[role])<14:
        r=TRREG[len(trn[role])]; trn[role].append(name); a._emit(f"s_memtime s[{r}:{r+1}]")
DBG0 = '--dbg0' in sys.argv
def stamp0(a, i):
    if DBG0: a._emit(f"s_memtime s[{STR[i]}:{STR[i]+1}]")
def stamp(a, i):
    if STAMP and not TRACE and not (DBG0 and i in (1,2,4,5,6)): a._emit(f"s_memtime s[{STR[i]}:{STR[i]+1}]")
def L(text): return [x.strip() for x in text.split('\n') if x.strip()]

a = Asm()
a.raw(f"; @launch grid=(256,1,1) block=(512,1,1) lds={LDS_BYTES}")
a.raw('.amdgcn_target "amdgcn-amd-amdhsa--gfx950"')
a.raw(f".text\n.globl {NAME}\n.p2align 8\n.type {NAME},@function\n{NAME}:")
if STAMP:
    a._emit("s_memrealtime s[92:93]"); a._emit(f"s_memtime s[86:87]")
PAD=int(opt('--pad',0))
if PAD: a._emit("s_memrealtime s[92:93]")
a("s_cmp_ge_u32 s2, 256\ns_cbranch_scc1 L_end")
a._emit("s_load_dwordx16 s[60:75], s[0:1], 0"); a._emit("s_load_dwordx4 s[76:79], s[0:1], 64"); a._emit("s_load_dwordx2 s[44:45], s[0:1], 80")
a("v_lshrrev_b32 v2, 6, v0\nv_and_b32 v1, 63, v0")
CPF=int(opt('--cpf',6))
if CPF:
    a._emit("s_getpc_b64 s[82:83]")
    a._emit("s_lshr_b32 s84, s2, 3"); a._emit(f"s_mul_i32 s84, s84, {CPF*128}"); a._emit("v_lshlrev_b32 v3, 7, v0"); a._emit("v_add_u32 v3, s84, v3")
    a._emit(f"v_min_u32 v3, CODE_END-{NAME}-64, v3")
    a._emit(f"v_cmp_gt_u32 vcc, {CPF}, v0"); a._emit("s_and_saveexec_b64 s[84:85], vcc"); a._emit("s_cbranch_execz L_nocpf")
    a._emit("global_load_dword v253, v3, s[82:83]")
    a.label("L_nocpf")
    a._emit("s_mov_b64 exec, -1")
a(f"v_readfirstlane_b32 {sWAVE}, v2")
vL16=92; vT0=93; vTa=94; vTb=95; vB0=96; vTWa=97; vTMa=98; vX=99; vY=100; vC=101; vM=102; vZ=103
WB=104; BF=112; DD=128; vF=136; vW7=137
a(f"v_mov_b32 v{vX}, {SYNC}\nv_mov_b32 v{vC}, 0\nv_lshl_add_u32 v{vX}, v1, 2, v{vX}\ns_mov_b64 exec, 0xff\nds_write_b32 v{vX}, v{vC}\ns_mov_b64 exec, -1")
for i in range(11):
    a(f"s_mov_b32 s{6+4*i}, {SRD_SIZES[i]}\ns_mov_b32 s{7+4*i}, 0x20000")
XL = int(opt('--xl',1))
a(f"s_lshr_b32 {sROT}, s2, 3")
if XL:
    a(f"s_and_b32 {sT0}, s2, 7\ns_lshl_b32 s2, {sT0}, 5\ns_add_u32 s2, s2, {sROT}")
a(f"s_and_b32 {sNB}, s2, 3\ns_lshr_b32 {sMB}, s2, 2\ns_lshr_b32 {sP}, s2, 3\ns_and_b32 {sG8}, s2, 7")
a(f"s_and_b32 {sT0}, {sMB}, 1\ns_lshl_b32 {sECH}, {sNB}, 1\ns_add_u32 {sECH}, {sECH}, {sT0}\ns_mov_b32 {sSPIN}, 0")
a(f"v_lshlrev_b32 v{vL16}, 4, v1")
a(f"v_and_b32 v{vX}, 7, v1\nv_lshrrev_b32 v{vY}, 4, v1\nv_xor_b32 v{vX}, v{vX}, v{vY}\nv_lshlrev_b32 v{vX}, 4, v{vX}")
a(f"v_lshrrev_b32 v{vC}, 3, v1\nv_lshl_or_b32 v{vT0}, v{vC}, 7, v{vX}")
a(f"v_lshlrev_b32 v{vW7}, 7, v1")
a(f"s_add_u32 {sT0}, {sWAVE}, 11\ns_cmp_eq_u32 {sWAVE}, 4\ns_cselect_b32 {sT0}, 31, {sT0}\ns_cmp_lt_u32 {sWAVE}, 4\ns_cselect_b32 {sT0}, {sWAVE}, {sT0}\ns_cselect_b32 {sT1}, 4, 3\ns_add_u32 {sT0}, {sT0}, {sROT}")
def tl_calc(a,k): a(f"s_and_b32 {sTL[k]}, {sT0}, 31\ns_lshl_b32 {sTL[k]}, {sTL[k]}, 12\ns_min_u32 {sTL[k]}, {sTL[k]}, {121*1024}\ns_add_u32 {sT0}, {sT0}, {sT1}")
for k in range(5): tl_calc(a,k)
def tile_pre(k):
    return L(f"s_lshr_b32 {sFL}, {sTL[k]}, 4\ns_and_b32 {sFL}, {sFL}, 64\nv_xor_b32 v{vTa}, {sFL}, v{vT0}\nv_xor_b32 v{vTb}, 64, v{vTa}")
for o in tile_pre(0): a(o)
a(f"v_and_b32 v{vM}, 15, v1\nv_lshrrev_b32 v{vC}, 1, v{vM}\nv_xor_b32 v{vC}, v{vC}, v{vY}\nv_lshlrev_b32 v{vC}, 4, v{vC}")
a(f"v_lshl_or_b32 v{vB0}, v{vM}, 7, v{vC}")
a(f"v_lshrrev_b32 v6, 5, v1\nv_lshl_add_u32 v{vX}, v6, 4, v{vM}\nv_lshlrev_b32 v{vX}, 1, v{vX}\nv_add_u32 v{vTMa}, {TM}, v{vX}")
a(f"v_bfe_u32 v{vTWa}, v1, 4, 1\nv_add_lshl_u32 v{vTWa}, v{vX}, v{vTWa}, 3\nv_add_u32 v{vTWa}, {TW}, v{vTWa}")
a(f"v_lshrrev_b32 v{vC}, 2, v{vM}\nv_lshl_add_u32 v{vC}, v{vY}, 3, v{vC}\nv_and_b32 v{vX}, 1, v1\nv_lshl_add_u32 v{vC}, v{vC}, 1, v{vX}\nv_lshlrev_b32 v{vC}, 3, v{vC}\nv_add_u32 v{vC}, {WBIS}, v{vC}")
a(f"v_and_b32 v5, 31, v1\nv_lshl_add_u32 v7, v5, 1, v6\nv_mul_u32_u24 v7, 52, v7\nv_mov_b32 v{vZ}, 0x70")
a(f"s_mul_i32 s80, {sP}, 13312\ns_lshl_b32 {sT0}, {sWAVE}, 11\ns_add_u32 s81, {sT0}, {IDXS}\ns_add_u32 s80, s80, {sT0}\ns_mov_b32 m0, s81\ns_lshl_b32 s81, {sECH}, 4")
DREF=[None]; PB={}
def tdma(a, n):
    k=n>>2; q=n&3
    if q==0: a(f"s_mov_b32 m0, {sTL[k]}")
    va,vb=(vTa,vTb) if k==0 else (PB[id(a)]+4*NTS[PB[id(a)]]+2*k, PB[id(a)]+4*NTS[PB[id(a)]]+1+2*k)
    a(f"buffer_load_dwordx4 v{vb if q&1 else va}, {sTABL}, {sTL[k]} offen offset:{1024*q} lds", tag=f'tile{k}')
def prefetch(a):
    a(f"s_cmp_eq_u32 {sWAVE}, 2\ns_cbranch_scc0 L_pf0")
    a._emit("s_mov_b64 exec, 0xf"); a._emit(f"buffer_load_dword v254, v{vW7}, {sWD2}, 0 offen"); a._emit("s_mov_b64 exec, -1")
    a.label("L_pf0")
    a(f"s_cmp_lt_u32 {sWAVE}, 2\ns_cbranch_scc0 L_nopf")
    a._emit(f"s_cmp_eq_u32 {sWAVE}, 0"); a._emit("s_cbranch_scc0 L_pf1")
    if XL:
        a._emit(f"s_lshr_b32 s100, {sROT}, 2"); a._emit(f"s_mul_i32 s100, s100, {208*512}")
    else: a._emit(f"s_mul_i32 s100, {sROT}, {52*512}")
    a._emit(f"s_lshl_b32 s101, {sNB}, 7"); a._emit(f"s_add_u32 s100, s100, s101")
    a._emit(f"v_lshlrev_b32 v255, 9, v1"); a._emit("s_mov_b32 exec_hi, 0xfffff")
    for i in range(4 if XL else 1):
        a._emit(f"buffer_load_dword v254, v255, {sWD1}, s100 offen"); a._emit(f"s_add_u32 s100, s100, {52*512}")
    a._emit("s_mov_b64 exec, -1"); a._emit("s_branch L_pfd")
    a.label("L_pf1")
    a._emit(f"s_mul_i32 s100, {sROT}, {43*128}"); a._emit("s_mov_b32 exec_hi, 0x7ff")
    a._emit(f"buffer_load_dword v254, v{vW7}, {sWC}, s100 offen"); a._emit("s_mov_b64 exec, -1"); a._emit("s_branch L_pfd")
    a.label("L_nopf")
    a.label("L_pfd")
PFPOS=int(opt('--pfpos',7))
def srd(a, ids):
    for i in ids:
        src = 60+2*i if i<8 else 76+2*(i-8)
        a(f"s_mov_b64 s[{4+4*i}:{5+4*i}], s[{src}:{src+1}]")
def kwait(a):
    a._emit("s_waitcnt lgkmcnt(0)"); a.lgq=[]
a(f"s_cmp_ge_u32 {sWAVE}, 6")
kwait(a)
srd(a,[0,1])
a("s_cbranch_scc1 L_stg67")
a(f"buffer_load_dwordx4 v{vL16}, {sIDX}, s80 offen lds", tag='stg')
a(f"buffer_load_dwordx4 v{vL16}, {sIDX}, s80 offen offset:1024 lds", tag='stg')
a("s_branch L_stgdone")
a.label("L_stg67")
srd(a,[2,3,4])
a(f"s_cmp_eq_u32 {sWAVE}, 7\ns_cbranch_scc1 L_stg7")
a._emit(f"buffer_load_dwordx4 v{vL16}, {sIDX}, s80 offen lds")
a._emit(f"s_mov_b32 m0, {WBIS}"); a._emit("s_nop 0")
a._emit(f"buffer_load_dwordx4 v{vW7}, {sWBI}, s81 offen lds")
a._emit("s_branch L_stgdone")
a.label("L_stg7")
a._emit(f"s_mov_b32 m0, {SE1S}"); a._emit("s_nop 0")
a._emit(f"buffer_load_dwordx4 v{vL16}, {sSE1}, 0 offen lds")
a._emit(f"s_mov_b32 m0, {SE2S}"); a._emit("s_nop 0")
a._emit(f"buffer_load_dwordx4 v{vL16}, {sSE2}, 0 offen lds")
a.label("L_stgdone")
for n in range(4): tdma(a,n)
srd(a,[5,6,7,8,9])
a(f"s_cmp_ge_u32 {sWAVE}, 4\ns_cbranch_scc1 L_cross")

def wb_read():
    return [f"ds_read_b64_tr_b16 v[{WB+4*s+2*hf}:{WB+4*s+2*hf+1}], v{vC} offset:{s*512+hf*64}" for s in range(2) for hf in range(2)]
NTS={}
def static_tiles(P, NT, ks=None):
    NTS[P]=NT; o=[]
    for k in (range(NT) if ks is None else ks):
        o+=L(f"s_lshr_b32 {sFL}, {sTL[k]}, 4\ns_and_b32 {sFL}, {sFL}, 64\nv_xor_b32 v{P+k}, {sFL}, v{vB0}\nv_add_u32 v{P+k}, {sTL[k]}, v{P+k}\nv_xor_b32 v{P+NT+k}, 64, v{P+k}")
        if k>0: o+=L(f"v_xor_b32 v{P+4*NT+2*k}, {sFL}, v{vT0}\nv_xor_b32 v{P+4*NT+1+2*k}, 64, v{P+4*NT+2*k}")
        o+=L(f"s_lshr_b32 {sFL}, {sTL[k]}, 3\nv_add_u32 v{P+2*NT+k}, {sFL}, v{vTWa}\ns_lshr_b32 {sFL}, {sTL[k]}, 6\nv_add_u32 v{P+3*NT+k}, {sFL}, v{vTMa}")
    o+=L(f"v_cmp_gt_u32 {sMK}, 8, v{vM}\nv_cmp_eq_u32 vcc, 8, v{vM}\nv_mov_b32 v{vY}, 0x3c803c80\nv_cndmask_b32 v{vY}, 0, v{vY}, vcc")
    return o
def wb_fix():
    return [f"v_cndmask_b32 v{WB+r}, v{vY}, v{WB+r}, {sMK}" for r in range(8)]
def idx_read(dst, vb):
    o=[f"ds_read2_b32 v[{dst+2*i}:{dst+2*i+1}], v{vb} offset0:{2*i} offset1:{2*i+1}" for i in range(6)]
    return o+[f"ds_read_b32 v{dst+12}, v{vb} offset:48"]
XP = opt('--xp','')
def tileR(k,P):
    o=[('WT',f'tile{k}')]
    for sub in range(2):
        o.append(f"ds_read_b128 v[{BF+8*sub}:{BF+8*sub+3}], v{P+k} offset:{sub*2048}")
        o.append(f"ds_read_b128 v[{BF+8*sub+4}:{BF+8*sub+7}], v{P+NTS[P]+k} offset:{sub*2048}")
    return o
def tileM(k):
    o=[f"v_mfma_f32_16x16x32_bf16 v[{DD+4*sub}:{DD+4*sub+3}], v[{WB}:{WB+3}], v[{BF+8*sub}:{BF+8*sub+3}], 0" for sub in range(2)]
    o+=[f"v_mfma_f32_16x16x32_bf16 v[{DD+4*sub}:{DD+4*sub+3}], v[{WB+4}:{WB+7}], v[{BF+8*sub+4}:{BF+8*sub+7}], v[{DD+4*sub}:{DD+4*sub+3}]" for sub in range(2)]
    return o
def tileC(k, H):
    h=H+4*k
    o=L(f"v_cvt_pk_bf16_f32 v{h}, v{DD}, v{DD+1}\nv_cvt_pk_bf16_f32 v{h+2}, v{DD+4}, v{DD+5}\nv_cvt_pk_bf16_f32 v{h+1}, v{DD+2}, v{DD+3}\nv_cvt_pk_bf16_f32 v{h+3}, v{DD+6}, v{DD+7}")
    return o+L(f"v_permlane32_swap_b32 v{h}, v{h+2}\nv_permlane32_swap_b32 v{h+1}, v{h+3}")
def tileW(ks, H, P):
    o=["s_mov_b32 exec_lo, 0xffff","s_mov_b32 exec_hi, 0xffff"]+[f"ds_write_b16 v{P+3*NTS[P]+k}, v{H+4*k+2}" for k in ks]+["s_mov_b64 exec, -1"]
    return [('GRP',o)]+[f"ds_write_b64 v{P+2*NTS[P]+k}, v[{H+4*k}:{H+4*k+1}]" for k in ks]
def emit(a, ops):
    for o in ops:
        if isinstance(o,tuple):
            if o[0]=='WT': a.wait_tag(o[1])
            elif o[0]=='GRP': emit(a,o[1])
            elif o[0]=='FN': o[1]()
        else: a(o)
def spread(a, dmas, fill, frac=1.0, mark=False):
    n=len(dmas); m=int(len(fill)*frac); per=m/max(n,1); pos=0
    for i,dm in enumerate(dmas):
        dm()
        if mark and i==n-1: tr(a,'S' if a is d else 'T','T15')
        end=int(round(per*(i+1))); emit(a, fill[pos:end]); pos=end
    emit(a, fill[pos:])
SY={}
def arrive(a, cnt, vA=5, vO=6):
    vS,v1_,_=SYX(a)
    a(f"s_mov_b64 exec, 1\nds_add_u32 v{vS}, v{v1_} offset:{4*cnt}\ns_mov_b64 exec, -1")
def SYX(a): return a.sy
lab=[0]
def swait(a, cnt, n, vA=5, vO=6, sleep=0):
    lab[0]+=1; Lb=f"L_sw{lab[0]}"
    vA,_,vO=SYX(a)
    a._emit(f"ds_read_b32 v{vO}, v{vA} offset:{4*cnt}"); a._emit("s_waitcnt lgkmcnt(0)"); a.lgq=[]
    a._emit(f"v_readfirstlane_b32 s100, v{vO}"); a._emit("s_nop 0"); a._emit(f"s_cmp_ge_u32 s100, {n}"); a._emit(f"s_cbranch_scc1 {Lb}x")
    a.label(Lb)
    a._emit(f"s_sleep {max(sleep,1)}")
    a._emit(f"ds_read_b32 v{vO}, v{vA} offset:{4*cnt}"); a._emit("s_waitcnt lgkmcnt(0)")
    a._emit(f"v_readfirstlane_b32 s100, v{vO}"); a._emit(f"s_add_u32 {sSPIN}, {sSPIN}, 1"); a._emit(f"s_cmp_ge_u32 {sSPIN}, {SPINMAX}"); a._emit(f"s_cbranch_scc1 {Lb}x")
    a._emit(f"s_cmp_ge_u32 s100, {n}"); a._emit(f"s_cbranch_scc0 {Lb}")
    a.label(Lb+"x")
C0=-2.302208198; C1=C0*0.044715
def gelu_ops(xs, ts, vC1, k=None):
    o=[]
    for x,t in zip(xs,ts): o.append(f"v_mul_f32 v{t}, v{x}, v{x}")
    for x,t in zip(xs,ts): o.append(f"v_fmaak_f32 v{t}, v{vC1}, v{t}, {f2u(C0):#x}")
    for x,t in zip(xs,ts): o.append(f"v_mul_f32 v{t}, v{t}, v{x}")
    for x,t in zip(xs,ts): o.append(f"v_exp_f32 v{t}, v{t}")
    for x,t in zip(xs,ts): o.append(f"v_add_f32 v{t}, 1.0, v{t}" if k is None else f"v_fma_f32 v{t}, v{t}, {k}, {k}")
    for x,t in zip(xs,ts): o.append(f"v_rcp_f32 v{t}, v{t}")
    for x,t in zip(xs,ts): o.append(f"v_mul_f32 v{x}, v{x}, v{t}")
    return o
def send_addr(a):
    a("v_bfe_u32 v7, v1, 4, 1\nv_and_b32 v8, 15, v1\nv_lshlrev_b32 v8, 2, v8\nv_lshl_add_u32 v8, v7, 10, v8")
def send(a, sreg, sflag, q=12):
    a("v_mov_b32 v11, v10")
    a("v_permlane32_swap_b32 v10, v11")
    a(f"v_add_f32 v10, v10, v11\nv_min_u32 v{q}, -2, v10")
    for i in (1,2,3): a(f"v_mov_b32_dpp v{q+i}, v{q} quad_perm:[{i},{i},{i},{i}] row_mask:0xf bank_mask:0xf bound_ctrl:0")
    a("s_mov_b32 exec_lo, 0x11111111\ns_mov_b32 exec_hi, 0")
    lab[0]+=1; Lb=f"L_sn{lab[0]}"
    a(f"s_cmp_eq_u32 {sflag}, 2\ns_cbranch_scc1 {Lb}f")
    a(f"buffer_store_dwordx4 v[{q}:{q+3}], v8, {sWS}, {sreg} offen sc1")
    a(f"s_branch {Lb}d")
    a.label(Lb+"f")
    a._emit(f"buffer_store_dwordx4 v[{q}:{q+3}], v8, {sWS}, {sreg} offen")
    a.label(Lb+"d")
    a("s_mov_b64 exec, -1")
def swz(dst, src, tmp, sc):
    if 'A' in XP: return [f"v_lshlrev_b32 v{dst}, 7, v{src}"]
    return L(f"v_lshlrev_b32 v{tmp}, 3, v{src}\nv_bitop3_b32 v{tmp}, v{tmp}, {sc}, v{vZ} bitop3:0x28\nv_lshl_or_b32 v{dst}, v{src}, 7, v{tmp}")

c = a.fork()
d = a; DREF[0]=d; d.sy=(0,10,7)
if PRIOD0: d(f"s_setprio {PRIOD0}")
ACC=192; AD=140; EF=116; FF=100; RING=12; IR=192
assert RING+8*NR<=92
vWo=[2,3]
vSel=4; TT=92; WOFF=1024
d(f"s_and_b32 {sT0}, {sMB}, 1\ns_lshl_b32 {sT0}, {sT0}, 1\ns_lshr_b32 {sT1}, {sWAVE}, 1\ns_add_u32 {sT3}, {sT0}, {sT1}\ns_xor_b32 {sT1}, {sT1}, 1\ns_add_u32 {sT0}, {sT0}, {sT1}")
d(f"s_mul_i32 {sT3}, {sT3}, 3328\ns_mul_i32 {sT0}, {sT0}, 3328\ns_add_u32 {sT3}, {sT3}, {IDXS}\ns_add_u32 {sT0}, {sT0}, {IDXS}")
d(f"v_add_u32 v10, {sT0}, v7\nv_add_u32 v9, {sT3}, v7")
d(f"v_mul_u32_u24 v7, {13*64}, v6\nv_bfe_u32 v8, v1, 4, 1\nv_lshl_add_u32 v7, v8, 2, v7\nv_bfe_u32 v8, v1, 3, 1\nv_add_u32 v7, v7, v8\nv_and_b32 v11, 7, v1\nv_lshlrev_b32 v11, 4, v11\nv_lshl_or_b32 v{vWo[0]}, v7, 9, v11\nv_add_u32 v{vWo[1]}, 4096, v{vWo[0]}")
d(f"v_cmp_eq_u32 vcc, 0, v8\nv_mov_b32 v11, 0x03020706\nv_mov_b32 v{vSel}, 0x05040100\nv_cndmask_b32 v{vSel}, v11, v{vSel}, vcc")
d(f"s_lshr_b32 s101, {sROT}, {2 if XL else 0}")
d(f"s_add_u32 {sT2}, {sWAVE}, s101\ns_and_b32 {sT2}, {sT2}, 3\ns_lshl_b32 {sT3}, {sT2}, 13\ns_lshl_b32 {sT0}, {sNB}, 7\ns_add_u32 {sT3}, {sT3}, {sT0}\ns_lshl_b32 {sT2}, {sT2}, 5")
PD=224; PB[id(d)]=PD
tr(d,'S','karg')
if not KROT:
    for k in range(13): d(f"s_add_u32 s{sW0+k}, {sT3}, {32768*k}")
else:
    d(f"s_mul_i32 {sT0}, s101, 13\ns_lshr_b32 {sT0}, {sT0}, 3")
    for k in range(13):
        d(f"s_lshl_b32 s{sW0+k}, {sT0}, 15\ns_add_u32 s{sW0+k}, s{sW0+k}, {sT3}\ns_lshl_b32 {sT1}, {sT0}, 2\nv_add_u32 v{AD+27+k}, {sT1}, v9\nv_add_u32 v{AD+40+k if k<12 else AD+13}, {sT1}, v10")
        if k<12: d(f"s_add_u32 {sT0}, {sT0}, 1\ns_cmp_eq_u32 {sT0}, 13\ns_cselect_b32 {sT0}, 0, {sT0}")
emit(d, static_tiles(PD,4))
for n in range(4,NB1): tdma(d,n)
tr(d,'S','preB1')
d.wait_tag('stg')
d("s_barrier")
tr(d,'S','B1')
def adr(k,mt,cc):
    if cc==1: return AD+14*mt+k
    if mt==0: return AD+27+k
    return AD+40+k if k<12 else AD+13
LZ=int(opt('--lazy',4))
def addr_calc(ks):
    o=[]
    for k in ks:
        for mt in range(2):
            r0=adr(k,mt,0); r1=adr(k,mt,1)
            o+=swz(r0, r1, r0, sT2)+[f"v_xor_b32 v{r1}, 16, v{r0}"]
    return o
def wl(n,t):
    k=n>>1; cc=n&1; r=RING+8*(n%NR)
    d(f"buffer_load_dwordx4 v[{r+4*t}:{r+4*t+3}], v{vWo[cc]}, {sWD1}, s{sW0+k} offen offset:{WOFF*t}", tag=f'w{n}')
nl=0
f2=wb_read()+(idx_read(AD,9)+idx_read(AD+14,10) if not KROT else [f"ds_read_b32 v{adr(k,mt,1)}, v{adr(k,mt,0)}" for k in range(13) for mt in range(2)])
HD=76
ac=addr_calc(range(LZ)); q_=len(ac)//4
f2+=wb_fix()+tileR(0,PD)+ac[:q_]+tileM(0)+ac[q_:2*q_]+tileC(0,HD)+tileR(1,PD)+ac[2*q_:3*q_]+tileM(1)+ac[3*q_:]+tileC(1,HD)
m_=int(len(f2)*FRONT)
spread(d,[ (lambda n=n: tdma(d,n)) for n in range(NB1,16)], f2[:m_], 1.0, True)
f2r=f2[m_:]
f3=f2r+tileR(2,PD)+tileW((0,1),HD,PD)+tileM(2)+tileC(2,HD)
spread(d,[(lambda n=n,t=t: wl(n,t)) for n in range(PRE) for t in range(2)], f3)
nl=PRE
tr(d,'S','f3')
emit(d, tileR(3,PD)); tr(d,'S','t3R')
emit(d, tileW((2,),HD,PD)+tileM(3)+tileC(3,HD)+tileW((3,),HD,PD))
d.wait_all_lgkm(); tr(d,'S','t3W')
d("s_barrier")
tr(d,'S','B3')
stamp(d,3); tr(d,'D','B3')
if PRIO_D!=PRIOD0: d(f"s_setprio {PRIO_D}")
QI = [int(x) for x in opt('--qi','0,2,4').split(',')]
AI = [int(x) for x in opt('--ai','8,10').split(',')]
BI = [int(x) for x in opt('--bi','14,15').split(',')]
vWC=5
d(f'v_mov_b32 v0, {SYNC}\nv_mov_b32 v10, 1\nv_mov_b32 v11, 0x70')
vZs=vZ; vZ=11; lazy=addr_calc(range(LZ,13)); vZ=vZs
S1=int(opt('--s1',8)); S2=int(opt('--s2',19))
d(f"v_lshlrev_b32 v{vWC}, 7, v1\ns_lshl_b32 {sT3}, {sECH}, 4")
def wcd(ldsbase, srcbase, i, npieces, nlines, tag, nslots):
    last=npieces-1; rem=nlines-64*last
    d(f"s_add_u32 {sT0}, {sWAVE}, {4*i}")
    gen = 4*i+3>=last
    if WROT:
        gen=True
        if nslots==8: d(f"s_add_u32 {sT0}, {sT0}, {sROT}\ns_and_b32 {sT0}, {sT0}, 7")
        else: d(f"s_add_u32 {sT0}, {sT0}, s62\ns_cmp_ge_u32 {sT0}, 12\ns_cselect_b32 {sT1}, 12, 0\ns_sub_u32 {sT0}, {sT0}, {sT1}")
    if gen:
        lo=min(rem,32); hi=max(rem-32,0)
        d(f"s_cmp_eq_u32 {sT0}, {last}\ns_cselect_b32 exec_lo, {hex((1<<lo)-1)}, -1\ns_cselect_b32 exec_hi, {hex((1<<hi)-1)}, -1\ns_cmp_gt_u32 {sT0}, {last}\ns_cselect_b32 exec_lo, 1, exec_lo\ns_cselect_b32 exec_hi, 0, exec_hi\ns_min_u32 {sT0}, {sT0}, {last}")
    d(f"s_lshl_b32 {sT1}, {sT0}, 10\ns_add_u32 m0, {sT1}, {ldsbase}\ns_lshl_b32 {sT0}, {sT0}, 13\ns_add_u32 {sT0}, {sT0}, {sT3}\ns_add_u32 {sT0}, {sT0}, {srcbase}")
    d(f"buffer_load_dwordx4 v{vWC}, {sWC}, {sT0} offen lds", tag=tag)
    if gen: d("s_mov_b64 exec, -1")
if WROT: d(f"s_mul_i32 s62, {sROT}, 3\ns_lshr_b32 s62, s62, 3")
sig={'w1':False,'w2':False}
def eread(n, mt):
    k=n>>1; cc=n&1; r=EF+8*(n%3)
    return f"ds_read_b128 v[{r+4*mt}:{r+4*mt+3}], v{adr(k,mt,cc)}"
for n in range(2):
    for mt in range(2): d(eread(n,mt))
for n in range(PRE,PRE+POST):
    for t in range(2): wl(n,t)
nl=PRE+POST
if NOD:
    d("v_mov_b32 v10, 0"); d("s_branch L_dpre")
LA = 1 if MODE=='v' else int(opt('--la',2))
def fbuf(n): return FF+8*(n&1) if MODE=='v' else 92+8*(n%3)
def transp(n):
    r=RING+8*(n%NR); f=fbuf(n)
    if MODE=='v':
        dpp=[f"v_mov_b32_dpp v{TT+i}, v{r+i} row_ror:8 row_mask:0xf bank_mask:0xf bound_ctrl:0" for i in range(8)]
        def P(i0,rr): return f"v_perm_b32 v{f+4*(rr&1)+2*(rr>>1)+i0}, v{TT+4*i0+rr}, v{r+4*i0+rr}, v{vSel}"
        def S(r0,i0): return f"v_permlane16_swap_b32 v{f+4*r0+i0}, v{f+4*r0+2+i0}"
        return [[dpp[0],dpp[2],dpp[1],dpp[3],P(0,0),P(0,2)],[dpp[4],dpp[6],P(0,1),P(0,3),S(0,0)],[dpp[5],dpp[7],P(1,0),P(1,2),P(1,1)],[P(1,3),S(1,0),S(0,1),S(1,1)]]
    W=lambda i0: f"ds_write_b128 v4, v[{r+4*i0}:{r+4*i0+3}]"
    R=lambda i0,nt: f"ds_read_b64_tr_b16 v[{f+4*nt+2*i0}:{f+4*nt+2*i0+1}], v{11 if nt else 0}"
    return [[W(0),R(0,0),R(0,1)],[W(1),R(1,0),R(1,1)],[],[]]
for n in range(LA):
    d.wait_tag(f'w{n}')
    for g in transp(n): emit(d,g)
W2=RING
EP=int(opt('--ep',20)); RA=140
def relg(): pass
for n in range(26):
    G = transp(n+LA) if n+LA<26 else [[],[],[],[]]
    f=fbuf(n); e=EF+8*(n%3)
    mf=[]
    for nt in range(2):
        for mt in range(2):
            acc=ACC+16*(2*nt+mt)
            cs = "0" if n==0 else f"v[{acc}:{acc+15}]"
            mf.append(f"v_mfma_f32_32x32x16_bf16 v[{acc}:{acc+15}], v[{f+4*nt}:{f+4*nt+3}], v[{e+4*mt}:{e+4*mt+3}], {cs}")
    if n in (0,3,6,9,12,15,18,21,24): tr(d,'D',f'n{n}')
    vm=None
    idx=[i for i,(t,_) in enumerate(d.vmq) if t==f'w{n+LA}']
    if idx: vm=len(d.vmq)-1-max(idx)
    need=set(('v',r) for r in list(range(e,e+8))+list(range(f,f+8)))
    li=[i for i,(t,dr) in enumerate(d.lgq) if need & set(dr)]
    d.wait(vm=vm, lg=(len(d.lgq)-1-max(li)) if li else None)
    todo=[]
    cnt=2 if (RAMP and n>=RAMP-1) else 1
    while cnt>0 and nl<26 and nl-NR<=n+LA-1-(0 if MODE=='v' else 1):
        todo+=[(nl,t) for t in range(2)]; nl+=1; cnt-=1
    for i in range(4):
        d(mf[i])
        if i<len(todo): wl(*todo[i])
        if MODE=='v':
            if i==2 and n+2<26: d(eread(n+2,0))
            if i==3 and n+2<26: d(eread(n+2,1))
            emit(d,G[i])
            emit(d,lazy[8*n+2*i:8*n+2*i+2])
        else:
            emit(d,G[i])
            if i==2 and n+2<26: d(eread(n+2,0))
            if i==3 and n+2<26: d(eread(n+2,1))
        if i==3:
            if n in QI: wcd(WCB,86528,QI.index(n),11,676,'c1',12)
            if n in AI: wcd(WCA,0,AI.index(n),NQA,64*NQA,'c2',8)
            if n==BI[0]: swait(d,C_RP,4,6,7); relg()
            if n in BI: wcd(WCB,13*HR*128,BI.index(n),NQB,676-13*HR,'c2',8)
            if n==S1: d.wait_tag('c1'); arrive(d,C_W1,6,7); sig['w1']=True
            if n==S2: d.wait_tag('c2'); arrive(d,C_W2,6,7); sig['w2']=True
    if n==EP:
        d(f"v_lshrrev_b32 v6, 3, v1\nv_bfe_u32 v7, v1, 1, 2\nv_lshlrev_b32 v6, 11, v6\nv_lshl_or_b32 v6, v7, 9, v6\nv_lshl_or_b32 v6, v7, 5, v6\nv_and_b32 v7, 1, v1\nv_lshl_or_b32 v6, v7, 4, v6")
        d(f"v_xor_b32 v{RA}, {sT2}, v6\nv_xor_b32 v{RA+1}, 16, v{RA}")
        for k in range(3):
            d(f"s_lshr_b32 {sT1}, {sROT}, {2 if XL else 0}\ns_xor_b32 {sT0}, {sWAVE}, {k+1}\ns_add_u32 {sT0}, {sT0}, {sT1}\ns_and_b32 {sT0}, {sT0}, 3\ns_lshl_b32 {sT0}, {sT0}, 5\nv_xor_b32 v{RA+2+2*k}, {sT0}, v6\nv_xor_b32 v{RA+3+2*k}, 16, v{RA+2+2*k}")
    if n==EP+1:
        d(f"v_mov_b32 v9, {f2u(C1):#x}")
        d(f"s_and_b32 s60, {sMB}, 1\ns_lshl_b32 s60, s60, 1\ns_lshr_b32 {sT1}, {sWAVE}, 1\ns_add_u32 s60, s60, {sT1}\ns_lshl_b32 s60, s60, 11")
        d(f"s_lshl_b32 {sT1}, {sP}, 13\ns_add_u32 s60, s60, {sT1}\ns_lshl_b32 {sT1}, {sNB}, 7\ns_add_u32 s60, s60, {sT1}\ns_and_b32 {sT1}, {sWAVE}, 1\ns_lshl_b32 {sT1}, {sT1}, 6\ns_add_u32 s60, s60, {sT1}\ns_add_u32 s60, s60, 512")
        swait(d,C_TAB,4,6,7)
    if n==24:
        send_addr(d); swait(d,C_RDY,1,6,7,sleep=2); d('s_mov_b32 s61, s100')
    if n==22:
        W2=RING+8*(20%NR)
        assert (21%NR)==(20%NR)+1
        if MODE=='v':
            d(f"v_lshrrev_b32 v8, 5, v1\nv_lshlrev_b32 v8, 6, v8\ns_lshl_b32 {sT0}, {sNB}, 7\ns_and_b32 {sT1}, {sWAVE}, 1\ns_lshl_b32 {sT1}, {sT1}, 2\ns_add_u32 {sT0}, {sT0}, {sT1}")
            for r in range(4): d(f"buffer_load_dwordx3 v[{W2+4*r}:{W2+4*r+2}], v8, {sWD2}, {sT0} offen offset:{16*r}")
        else:
            d(f"v_lshrrev_b32 v8, 5, v1\nv_lshlrev_b32 v8, 3, v8\ns_lshl_b32 {sT0}, {sNB}, 7\ns_and_b32 {sT1}, {sWAVE}, 1\ns_lshl_b32 {sT1}, {sT1}, 6\ns_add_u32 {sT0}, {sT0}, {sT1}")
            for g in range(4): d(f"buffer_load_dwordx2 v[{W2+2*g}:{W2+2*g+1}], v8, {sWD2}, {sT0} offen offset:{16*g}")
assert nl==26, nl
assert sig['w1']
if not sig['w2']:
    d.wait_tag('c2'); arrive(d,C_W2,6,7)
stamp(d,4); tr(d,'D','loop')
d(f"s_bitcmp1_b32 {sWAVE}, 0\ns_cbranch_scc1 L_dep1")
WV=148
def redaddr(j): return (j>>1)&1, (j&3)*128 + (j>>2)*16384
def depi(d,P):
    def te(n):
        if P==0: tr(d,'E',n)
    te('start')
    order=[(nt,mt) for nt in range(2) for mt in range(2) if (P^nt)+2*mt]
    for (nt,mt) in order:
        cx=(P^nt)+2*mt; acc=ACC+16*(2*nt+mt)
        for q in range(4):
            v,off=redaddr(4*(cx-1)+q)
            d(f"ds_write_b128 v{RA+v}, v[{acc+4*q}:{acc+4*q+3}] offset:{off}")
    arrive(d,C_RED,6,7); te('wr')
    for gp in range(4):
        for r in range(4):
            src=W2+4*r+2*(gp>>1); hi=gp&1
            d(f"v_and_b32 v{WV+4*gp+r}, 0xffff0000, v{src}" if hi else f"v_lshlrev_b32 v{WV+4*gp+r}, 16, v{src}")
    te('unp')
    swait(d,C_RED,4,6,7); te('sync')
    own=ACC+16*(2*P); RB=92
    for q in range(4):
        for k in range(3):
            v,off=redaddr(4*k+q)
            d(f"ds_read_b128 v[{RB+16*k+4*q}:{RB+16*k+4*q+3}], v{RA+2+2*k+v} offset:{off}")
    for j in range(4):
        for i in range(4): d(f"v_add_f32 v{RB+4*j+i}, v{RB+4*j+i}, v{RB+16+4*j+i}")
        for i in range(4): d(f"v_add_f32 v{own+4*j+i}, v{own+4*j+i}, v{RB+32+4*j+i}")
        for i in range(4): d(f"v_add_f32 v{own+4*j+i}, v{own+4*j+i}, v{RB+4*j+i}")
    te('add')
    for o in gelu_ops([own+i for i in range(16)], [164+i for i in range(16)], 9): d(o)
    te('gelu')
    d(f"v_mul_f32 v10, v{own}, v{WV}\nv_mul_f32 v11, v{own+1}, v{WV+1}")
    for i in range(2,16): d(f"v_fmac_f32 v{10+(i&1)}, v{own+i}, v{WV+i}")
    d("v_add_f32 v10, v10, v11")
d0=d.fork(); d1=d.fork(); d0.sy=d1.sy=d.sy
depi(d0,0); d0("s_branch L_dpre")
depi(d1,1)
d.lines += d0.lines; d.label("L_dep1"); d.lines += d1.lines
d.pos=d1.pos; d.w=d1.w; d.lgq=[]; d.vmq=[]
d.label("L_dpre")
stamp(d,6); tr(d,'D','epi')
tr(d,'H','presend'); tr(d,'E','pre')
send(d,'s60','s61')
tr(d,'H','sent'); tr(d,'E','sent')
d(f"s_cmp_eq_u32 {sWAVE}, 0\ns_cbranch_scc0 L_fin")
d(f"v_lshlrev_b32 v3, 4, v1\ns_lshl_b32 {sT0}, s2, 10")
d._emit(f"buffer_load_dwordx4 v[16:19], v3, {sWS}, {sT0} offen sc1")
d._emit("s_sleep 4")
d.label("L_poll")
d._emit(f"buffer_load_dwordx4 v[20:23], v3, {sWS}, {sT0} offen sc1")
d._emit("s_waitcnt vmcnt(1)")
d._emit("v_max_u32 v4, v16, v17"); d._emit("v_max3_u32 v4, v4, v18, v19"); d._emit("v_cmp_eq_u32 vcc, -1, v4"); d._emit(f"s_add_u32 {sSPIN}, {sSPIN}, 64"); d._emit("s_nop 3"); d._emit("s_cbranch_vccz L_gotA")
d._emit(f"buffer_load_dwordx4 v[16:19], v3, {sWS}, {sT0} offen sc1")
d._emit("s_waitcnt vmcnt(1)")
d._emit("v_max_u32 v4, v20, v21"); d._emit("v_max3_u32 v4, v4, v22, v23"); d._emit("v_cmp_eq_u32 vcc, -1, v4"); d._emit(f"s_cmp_ge_u32 {sSPIN}, {SPINMAX}"); d._emit("s_cbranch_scc1 L_gotB"); d._emit("s_nop 2"); d._emit("s_cbranch_vccnz L_poll")
d.label("L_gotB")
for r in range(4): d._emit(f"v_mov_b32 v{12+r}, v{20+r}")
d._emit("s_branch L_pollx")
d.label("L_gotA")
for r in range(4): d._emit(f"v_mov_b32 v{12+r}, v{16+r}")
d.label("L_pollx")
tr(d,'H','polled'); tr(d,'E','polled')
d._emit("s_nop 1")
d.vmq=[]
for sh in (4,8):
    for r in range(4): d(f"v_add_f32_dpp v{12+r}, v{12+r}, v{12+r} row_ror:{sh} row_mask:0xf bank_mask:0xf bound_ctrl:0")
for sw in (16,32):
    for r in range(4): d(f"v_mov_b32 v{24+r}, v{12+r}")
    for r in range(4): d(f"v_permlane{sw}_swap_b32 v{12+r}, v{24+r}")
    for r in range(4): d(f"v_add_f32 v{12+r}, v{12+r}, v{24+r}")
d(f"v_cvt_pk_bf16_f32 v12, v12, v13\nv_cvt_pk_bf16_f32 v13, v14, v15\nv_lshlrev_b32 v3, 3, v1\ns_lshl_b32 {sT0}, s2, 5\ns_mov_b64 exec, 0xf")
d(f"buffer_store_dwordx2 v[12:13], v3, {sOUT}, {sT0} offen")
tr(d,'D','fin'); tr(d,'H','fin'); tr(d,'E','fin')
if TRACE=='H': d._emit('s_waitcnt lgkmcnt(0)'); d._emit(f's_add_u32 s12, {sSPIN}, s86')
d("s_mov_b64 exec, -1\ns_branch L_fin")

c.label("L_cross"); c.sy=(251,252,6)
if PRIO0: c(f"s_setprio {PRIO0}")
RE=12; RW=64; X=116; AA=180; FA=194; FB=180; T0=202; T1=218; DA=234
RT=X; A1=160; A2=186; HC=140
IA=RW; aE=168; aM=T1; aT=DA
vQ=4
g1=L(f"s_sub_u32 {sT2}, {sWAVE}, 4")
g1+=L(f"s_mul_i32 {sT0}, {sT2}, 3328\ns_add_u32 {sT0}, {sT0}, {IDXS}\nv_add_u32 v7, {sT0}, v7")
g1+=L("v_lshrrev_b32 v8, 3, v5\nv_bfe_u32 v9, v5, 2, 1\nv_and_b32 v10, 3, v5")
g1+=L("v_lshl_add_u32 v11, v8, 2, v10\nv_lshl_add_u32 v3, v9, 3, v11")
g1+=L(f"v_mul_u32_u24 v250, 169, v6\nv_add_u32 v250, v250, v3\nv_lshlrev_b32 v250, 1, v250\nv_add_u32 v250, {SE1S}, v250")
g1+=L(f"v_cmp_gt_u32 vcc, 13, v3\nv_cmp_gt_u32 {sMK}, 16, v5\ns_and_b64 vcc, vcc, {sMK}\nv_mov_b32 v3, {SE1S+680}\nv_cndmask_b32 v250, v3, v250, vcc")
g1+=L(f"v_mul_u32_u24 v3, 13, v9\nv_add_u32 v3, v3, v11\nv_mul_u32_u24 v8, 208, v6\nv_add_u32 v9, v8, v3\nv_lshlrev_b32 v9, 1, v9\nv_add_u32 v9, {SE2S}, v9")
g1+=L(f"v_min_u32 v3, 25, v3\nv_mul_u32_u24 v3, 416, v3\nv_add_u32 v3, v3, v8")
g1+=L(f"v_cmp_gt_u32 vcc, {HR*208}, v3\nv_mov_b32 v10, {WCB-HR*208}\nv_mov_b32 v11, {WCA}\nv_cndmask_b32 v10, v10, v11, vcc\nv_add_u32 v{vQ}, v10, v3\nv_add_u32 v3, {WCB}, v3")
g1+=L(f"v_mov_b32 v251, {SYNC}\nv_mov_b32 v252, 1")
g1+=L("s_getreg_b32 s82, hwreg(HW_REG_XCC_ID, 0, 4)\ns_mul_i32 s83, s82, s82\ns_lshl_b32 s83, s83, 16\ns_lshl_b32 s82, s82, 8\ns_add_u32 s82, s82, s83\ns_add_u32 s82, s82, 1\ns_lshl_b32 s83, s82, 3")
g1+=L(f"v_mov_b32 v{A1+7}, 0\ns_lshl_b32 {sT3}, {sECH}, 4\ns_lshl_b32 {sT0}, {sP}, 3\nv_mov_b32 v254, {sT0}")
emit(c,g1)
PC=32; PB[id(c)]=PC
c(f"s_mov_b32 {sSEL[0]}, 0x05040100\ns_mov_b32 {sSEL[1]}, 0x07060302\ns_mov_b32 {sSELZ[0]}, 0x0c0c0100\ns_mov_b32 {sSELZ[1]}, 0x0c0c0302\ns_mov_b32 {sTWc}, {TW}\ns_mov_b32 {sTMc}, {TM}")
def caddr(js):
    o=[]
    for j in js:
        r=IA+j
        o+=swz(aE+j, r, 0, sT3)+L(f"v_lshl_add_u32 v{aT+j}, v{r}, 4, {sTWc}\nv_lshl_add_u32 v{aM+j}, v{r}, 1, {sTMc}")
    return o
def w4(c, fn, name, cond="scc0"):
    c(f"s_cmp_eq_u32 {sWAVE}, 4\ns_cbranch_{cond} L_{name}")
    lg=list(c.lgq)
    fn()
    c.lgq=lg
    c.label(f"L_{name}")
def clr():
    for r in range(4): c._emit(f"v_mov_b32 v{vF+r}, -1")
    c._emit(f"s_lshl_b32 {sT0}, s2, 10"); c._emit(f"v_lshlrev_b32 v5, 4, v1")
    c._emit(f"buffer_store_dwordx4 v[{vF}:{vF+3}], v5, {sWS}, {sT0} offen sc1")
    c._emit(f"s_lshl_b32 {sT0}, s2, 5"); c._emit(f"v_mov_b32 v6, 0")
    c._emit(f"buffer_load_dword v255, v6, {sOUT}, {sT0} offen"); c._emit("s_nop 1")
def wc_dma(ldsbase, srcbase, i, npieces, tag):
    if 3*i+2 <= npieces-1:
        c(f"s_add_u32 {sT1}, s78, {ldsbase+3072*i}\ns_mov_b32 m0, {sT1}\ns_add_u32 {sT0}, s77, {srcbase+24576*i}")
    else:
        c(f"s_add_u32 {sT0}, s80, {3*i}\ns_min_u32 {sT0}, {sT0}, {npieces-1}\ns_lshl_b32 {sT1}, {sT0}, 10\ns_add_u32 {sT1}, {sT1}, {ldsbase}\ns_mov_b32 m0, {sT1}")
        c(f"s_lshl_b32 {sT0}, {sT0}, 13\ns_add_u32 {sT0}, {sT0}, {sT3}\ns_add_u32 {sT0}, {sT0}, {srcbase}")
    c(f"buffer_load_dwordx4 v2, {sWC}, {sT0} offen lds", tag=tag)
rd=wb_read()+idx_read(IA,7)
rd+=[f"ds_read_u16 v{(RE+t) if t<12 else (A1+6)}, v250 offset:{26*t}" for t in range(13)]
rd+=[f"ds_read_u16 v{RE+12+t}, v9 offset:{52*t}" for t in range(8)]
pk_=[f"v_lshl_or_b32 v{A1+t}, v{RE+2*t+1}, 16, v{RE+2*t}" for t in range(6)]+[f"v_lshl_or_b32 v{A2+t}, v{RE+12+2*t+1}, 16, v{RE+12+2*t}" for t in range(4)]
h=c.fork(); h.sy=c.sy
h.label("L_w4")
def pf(t): h._emit(t); h.vmq.append(('pf',[]))
PFS=opt('--pfs','c0,w1,w2,w3')
slots=opt('--pfslots','c,1,2,3').split(',')
h(f"v_bfe_u32 v255, v1, 3, 1\nv_mul_u32_u24 v255, 13, v255\nv_lshrrev_b32 v247, 4, v1\nv_add_u32 v255, v255, v247\nv_and_b32 v247, 7, v1\nv_lshl_add_u32 v255, v255, 6, v247\nv_lshlrev_b32 v255, 9, v255")
h(f"s_lshr_b32 s84, {sROT}, 2\ns_lshl_b32 s84, s84, 12\ns_lshl_b32 s101, {sNB}, 7\ns_add_u32 s84, s84, s101")
def do_pf(tok):
    if not PF: return
    for t in tok:
        if t=='c':
            h(f"s_mul_i32 s100, {sROT}, {43*128}\ns_mov_b32 exec_hi, 0x7ff"); pf(f"buffer_load_dword v249, v{vW7}, {sWC}, s100 offen")
            h("s_mov_b64 exec, 0xf"); pf(f"buffer_load_dword v249, v{vW7}, {sWD2}, 0 offen"); h("s_mov_b64 exec, -1")
        elif t in '0123':
            i=int(t)
            h(f"s_add_u32 s100, s84, {4*i*32768}")
            if i==3: h("s_mov_b64 exec, 0xffff")
            pf(f"buffer_load_dword v249, v255, {sWD1}, s100 offen")
            if i==3: h("s_mov_b64 exec, -1")
do_pf(slots[0])
for r in range(4): h(f"v_mov_b32 v{T0+r}, -1")
h(f"s_lshl_b32 {sT0}, s2, 10\nbuffer_store_dwordx4 v[{T0}:{T0+3}], v{vL16}, {sWS}, {sT0} offen sc1")
h(f"s_lshl_b32 {sT0}, s2, 5\ns_mov_b64 exec, 1\nbuffer_load_dword v248, v{vL16}, {sOUT}, {sT0} offen\ns_mov_b64 exec, -1")
emit(h, static_tiles(PC,5,[0]))
h.wait_tag('stg')
h("s_barrier")
do_pf(slots[1])
emit(h, rd+wb_fix()+tileR(0,PC)+caddr(range(0,6))+tileM(0)+caddr(range(6,13))+[('FN',lambda: do_pf(slots[2]))]+tileC(0,HC)+pk_+tileW((0,),HC,PC))
if opt('--pfsleep'): h(f"s_sleep {opt('--pfsleep')}")
do_pf(slots[3])
h.wait_all_lgkm()
RDYE=int(opt('--rdye',1))
if RDYE:
    h("s_waitcnt vmcnt(0)\nv_mov_b32 v5, s82\ns_mov_b64 exec, 1"); h._emit(f"buffer_atomic_add v5, v254, {sDBG}, 0 offen"); h("s_mov_b64 exec, -1\ns_mov_b32 s84, 0")
h("s_branch L_cB3")
c(f"s_cmp_eq_u32 {sWAVE}, 4\ns_cbranch_scc1 L_w4")
tr(c,'T','karg')
emit(c, static_tiles(PC,5))
for n in range(4,NB1): tdma(c,n)
tr(c,'T','preB1')
c.wait_tag('stg')
c("s_barrier")
tr(c,'T','B1')
g2=rd+wb_fix()+tileR(0,PC)+caddr(range(0,3))+tileM(0)+caddr(range(3,6))+tileC(0,HC)+pk_+tileR(1,PC)+caddr(range(6,9))+tileM(1)+caddr(range(9,13))+tileC(1,HC)+tileR(2,PC)+tileW((0,1),HC,PC)+tileM(2)+tileC(2,HC)
cut=len(g2)-len(tileR(2,PC)+tileW((0,1),HC,PC)+tileM(2)+tileC(2,HC))
spread(c,[ (lambda n=n: tdma(c,n)) for n in range(NB1,20)], g2, float(opt('--frontc',0.85)), True)
emit(c, tileR(3,PC)+tileW((2,),HC,PC)+tileM(3)+tileC(3,HC))
tr(c,'T','g3')
emit(c, tileR(4,PC)); tr(c,'T','t3R')
emit(c, tileW((3,),HC,PC)+tileM(4)+tileC(4,HC)+tileW((4,),HC,PC))
c.wait_all_lgkm(); tr(c,'T','t3W')
c.label("L_cB3")
c("s_barrier")
tr(c,'T','B3')
stamp(c,3); tr(c,'C','B3')
if PRIO_C!=PRIO0: c(f"s_setprio {PRIO_C}")
def rdy():
    c._emit("s_waitcnt vmcnt(0)")
    c._emit("v_mov_b32 v5, s82"); c._emit("s_mov_b64 exec, 1")
    c._emit(f"buffer_atomic_add v5, v254, {sDBG}, 0 offen"); c._emit("s_mov_b64 exec, -1")
def rdyissue():
    c._emit(f"buffer_load_dword v253, v254, {sDBG}, 0 offen sc1")
def rdycheck(sfx=""):
    c._emit("s_branch L_chkr"+sfx)
    c.label("L_chk"+sfx)
    c._emit(f"buffer_load_dword v253, v254, {sDBG}, 0 offen sc1")
    c.label("L_chkr"+sfx)
    c._emit("s_waitcnt vmcnt(0)")
    c._emit(f"v_readfirstlane_b32 s100, v253"); c._emit(f"s_add_u32 {sSPIN}, {sSPIN}, 64"); c._emit(f"s_cmp_ge_u32 {sSPIN}, {SPINMAX}"); c._emit("s_cbranch_scc1 L_chkx"+sfx)
    c._emit("s_and_b32 s101, s100, 0xff"); c._emit(f"s_cmp_ge_u32 s101, 8"); c._emit("s_cbranch_scc1 L_chkx"+sfx); c._emit("s_sleep 16"); c._emit("s_branch L_chk"+sfx)
    c.label("L_chkx"+sfx)
    c._emit("s_cmp_eq_u32 s100, s83"); c._emit(f"s_cselect_b32 s100, {2 if XL else 1}, 1"); c._emit("v_mov_b32 v5, s100")
    c._emit(f"ds_write_b32 v251, v5 offset:{4*C_RDY}"); c._emit("s_waitcnt lgkmcnt(0)")
def rdysoft(name):
    c._emit("s_cmp_lg_u32 s84, 0"); c._emit(f"s_cbranch_scc1 L_{name}e")
    c._emit("s_waitcnt vmcnt(0)"); c._emit("v_readfirstlane_b32 s100, v253"); c._emit("s_nop 0")
    c._emit("s_and_b32 s101, s100, 0xff"); c._emit("s_cmp_ge_u32 s101, 8"); c._emit(f"s_cbranch_scc1 L_{name}k")
    c._emit(f"buffer_load_dword v253, v254, {sDBG}, 0 offen sc1"); c._emit(f"s_branch L_{name}e")
    c.label(f"L_{name}k")
    c._emit("s_cmp_eq_u32 s100, s83"); c._emit("s_cselect_b32 s84, 2, 1"); c._emit("v_mov_b32 v5, s84"); c._emit(f"ds_write_b32 v251, v5 offset:{4*C_RDY}")
    c.label(f"L_{name}e")
def rdyhard():
    c._emit("s_cmp_lg_u32 s84, 0"); c._emit("s_cbranch_scc1 L_rhe")
    rdycheck()
    c.label("L_rhe")
def cslot():
    c(f"s_lshl_b32 s79, {sT2}, 11\ns_lshl_b32 {sT1}, {sP}, 13\ns_add_u32 s79, s79, {sT1}\ns_lshl_b32 {sT1}, {sG8}, 6\ns_add_u32 s79, s79, {sT1}")
if NOC:
    arrive(c,C_TAB); arrive(c,C_RP); w4(c,rdy,"rdyn"); c("s_sleep 64"); w4(c,lambda: (rdyissue(), rdycheck("n")),"nchk"); cslot(); send_addr(c); swait(c,C_RDY,1,sleep=32); c("v_mov_b32 v10, 0"); c("s_branch L_csend")
Z=FA; G=FB
ZR=[RW+j for j in range(12)]+[Z+6]
for j in range(13): c(f"ds_read_u16 v{ZR[j]}, v{aM+j}", tag='z')
c(f"v_mov_b32 v{Z+7}, 0\nv_mov_b32 v9, {f2u(C1):#x}")
EG=[f"ds_read_b128 v[{RE+4*j}:{RE+4*j+3}], v{aE+j}" for j in range(13)]
emit(c, EG[:2])
tr(c,'C','zg')
cslot(); send_addr(c)
for t in range(6): c(f"v_lshl_or_b32 v{Z+t}, v{RW+2*t+1}, 16, v{RW+2*t}")
c(f"v_mfma_f32_32x32x16_bf16 v[{T0}:{T0+15}], v[{A1}:{A1+3}], v[{Z}:{Z+3}], 0")
c(f"v_mfma_f32_32x32x16_bf16 v[{T0}:{T0+15}], v[{A1+4}:{A1+7}], v[{Z+4}:{Z+7}], v[{T0}:{T0+15}]")
emit(c, EG[2:8])
c(f's_mov_b32 s81, {f2u(-0.6931471806):#x}')
go=gelu_ops([T0+i for i in range(8)],[RW+i for i in range(8)],9,'s81')
for i,o in enumerate(go):
    c(o)
    if i in (8,16,24,32,40): c(EG[8+i//8-1])
arrive(c,C_TAB)
for i in range(4): c(f"v_cvt_pk_bf16_f32 v{G+i}, v{T0+2*i}, v{T0+2*i+1}")
c(f"v_mfma_f32_32x32x16_bf16 v[{T1}:{T1+15}], v[{A2}:{A2+3}], v[{G}:{G+3}], 0")
if not RDYE: w4(c, rdy, "rdy")
for e_ in range(8): c(f"v_mov_b32 v{X+8*e_+7}, 0")
for j in range(13): c(f"v_exp_f32 v{AA+j}, v{T1+j}")
for j in range(13): c(f"v_add_f32 v{AA+j}, 1.0, v{AA+j}")
for j in range(13): c(f"v_rcp_f32 v{AA+j}, v{AA+j}")
stamp(c,2); tr(c,'C','senet')
if RDYE: w4(c, rdyissue, 'rdi')
if opt('--cp','w1')=='senet': c('s_setprio 1')
def read_rw(vb, j): return f"ds_read_b128 v[{RW+4*j}:{RW+4*j+3}], v{vb} offset:{16*j}"
def perm_frag(F, R, e):
    wi=e>>1; hs=e&1
    o=[f"v_perm_b32 v{F+pp}, v{R+4*(2*pp+1)+wi}, v{R+4*(2*pp)+wi}, {sSEL[hs]}" for pp in range(6)]
    return o+[f"v_perm_b32 v{F+6}, v{R+48+wi}, v{R+48+wi}, {sSELZ[hs]}"]
DOT=int(opt('--dot',1))
def v_frag(e):
    wi=e>>1; o=[]; F=X+8*e
    if DOT:
        for j in range(13): o.append(f"v_dot2_f32_bf16 v{T0+j}, v{RE+4*j+wi}, v{AA+j}, 0")
        for j in range(0,12,2): o.append(f"v_cvt_pk_bf16_f32 v{F+(j>>1)}, v{T0+j}, v{T0+j+1}")
        o.append(f"v_cvt_pk_bf16_f32 v{F+6}, v{T0+12}, 0")
        return o
    for j in range(13):
        t=T0+j
        o.append(f"v_and_b32 v{t}, 0xffff0000, v{RE+4*j+wi}" if e&1 else f"v_lshlrev_b32 v{t}, 16, v{RE+4*j+wi}")
    for j in range(13): o.append(f"v_mul_f32 v{T0+j}, v{T0+j}, v{AA+j}")
    for j in range(0,12,2): o.append(f"v_cvt_pk_bf16_f32 v{F+(j>>1)}, v{T0+j}, v{T0+j+1}")
    o.append(f"v_cvt_pk_bf16_f32 v{F+6}, v{T0+12}, 0")
    return o
VW=int(opt('--vw',6))
EO=[0,2,4,6,1,3,5,7] if DOT else list(range(8))
def vf(i):
    if DOT and i==4:
        for j in range(13): c(f"v_lshlrev_b32 v{AA+j}, 16, v{AA+j}")
    emit(c, v_frag(EO[i]))
if DOT:
    for j in range(13): c(f"v_cvt_pk_bf16_f32 v{AA+j}, v{AA+j}, 0")
for e_ in range(VW): vf(e_)
tr(c,'C','vf4')
if not RDYE: w4(c, rdyissue, "rdi")
else: w4(c, lambda: rdysoft("rs1"), "rs1w")
swait(c,C_W1,4)
stamp(c,4); tr(c,'C','w1all')
if opt('--cp','w1')=='w1': c('s_setprio 1')
for j in range(13): c(read_rw(3,j))
arrive(c,C_RP)
for e_ in range(VW,8): vf(e_)
if not RDYE: w4(c, rdycheck, "nochk")
else: w4(c, lambda: rdysoft("rs2"), "rs2w")
tr(c,'C','vf8')
if opt('--cp','w1')=='vf8': c('s_setprio 1')
def mm(T, B):
    return [f"v_mfma_f32_32x32x16_bf16 v[{T}:{T+15}], v[{FA}:{FA+3}], v[{B}:{B+3}], 0",
            f"v_mfma_f32_32x32x16_bf16 v[{T}:{T+15}], v[{FA+4}:{FA+7}], v[{B+4}:{B+7}], v[{T}:{T+15}]"]
def pack1(wi, q, ii):
    o=[f"v_mul_f32 v{T0+ii}, v{T0+ii}, v{AA+ii}", f"v_mul_f32 v{T1+ii}, v{T1+ii}, v{AA+ii}"] if q else []
    return o+[f"v_cvt_pk_bf16_f32 v{RW+4*ii+wi}, v{T0+ii}, v{T1+ii}"]
def diag1(ii, first): return f"v_mfma_f32_32x32x16_bf16 v[{DA}:{DA+15}], v[{RT+4*ii}:{RT+4*ii+3}], v[{RW+4*ii}:{RW+4*ii+3}], {'0' if (first and ii==0) else f'v[{DA}:{DA+15}]'}"
def rtg(j): return f"ds_read_b128 v[{RT+4*j}:{RT+4*j+3}], v{aT+j}"
c(f"v_mov_b32 v{FA+7}, 0")
emit(c, perm_frag(FA,RW,0))
for wi in range(4):
    e0,e1=2*wi,2*wi+1
    emit(c, mm(T0,X+8*e0)); emit(c, perm_frag(FA,RW,e1))
    for j in (2*e0,2*e0+1):
        if j<13: c(rtg(j))
    emit(c, mm(T1,X+8*e1))
    for j in (2*e1,2*e1+1):
        if j<13: c(rtg(j))
    if wi<3:
        emit(c, perm_frag(FA,RW,e0+2))
        for ii in range(13): c(pack1(wi,True,ii)[0])
        for ii in range(13): emit(c, pack1(wi,True,ii)[1:])
    else:
        tr(c,'C','qmm')
        if RDYE: w4(c, rdyhard, 'rhw')
        if opt('--cd','p')=='qmm': c('s_setprio 0')
        for ii in range(13): c(pack1(wi,True,ii)[0])
        swait(c,C_W2,4); tr(c,'C','w2all')
        pk=[pack1(wi,True,ii)[1:] for ii in range(13)]
        emit(c, pk[0]);
        for ii in range(13):
            if ii+1<13: emit(c, pk[ii+1])
            else: c(f"v_mov_b32 v{FB+7}, 0\ns_nop 0")
            c(diag1(ii,True))
            if ii>0: c(read_rw(vQ,ii-1))
        c(read_rw(vQ,12))
stamp(c,5); tr(c,'C','diagq')
if opt('--cd','p')=='p': c('s_setprio 0')
emit(c, perm_frag(FB,RE,0)); emit(c, perm_frag(FA,RW,0))
for wi in range(4):
    e0,e1=2*wi,2*wi+1
    emit(c, mm(T0,FB)); emit(c, perm_frag(FA,RW,e1)+perm_frag(FB,RE,e1)); emit(c, mm(T1,FB))
    if wi<3:
        emit(c, perm_frag(FA,RW,e0+2)+perm_frag(FB,RE,e0+2))
        for ii in range(13): emit(c, pack1(wi,False,ii))
    else:
        swait(c,C_RDY,1); c('s_mov_b32 s81, s100')
        c("s_mov_b32 s82, 0xaaaaaaaa\ns_mov_b32 s83, 0xaaaaaaaa\ns_mov_b32 s84, 0xcccccccc\ns_mov_b32 s85, 0xcccccccc\ns_mov_b32 s72, 0xff00ff00\ns_mov_b32 s73, 0xff00ff00\ns_mov_b32 s74, 0xffff0000\ns_mov_b32 s75, 0xffff0000\ns_mov_b32 s76, 0x0f0f0f0f\ns_mov_b32 s77, 0xf0f0f0f0")
        emit(c, pack1(wi,False,0)+pack1(wi,False,1)+pack1(wi,False,2))
        for ii in range(13):
            if ii+3<13: emit(c, pack1(wi,False,ii+3))
            c(diag1(ii,False))
for i in range(8): c(f"v_cndmask_b32 v{DA+2*i}, v{DA+2*i}, v{DA+2*i+1}, s[82:83]")
for i in range(4): c(f"v_cndmask_b32 v{DA+4*i}, v{DA+4*i}, v{DA+4*i+2}, s[84:85]")
for i in range(2): c(f"v_cndmask_b32 v{DA+8*i}, v{DA+8*i}, v{DA+8*i+4}, s[72:73]")
c(f"v_cndmask_b32 v{DA}, v{DA}, v{DA+8}, s[74:75]")
c(f"v_cndmask_b32 v10, 0, v{DA}, s[76:77]")
c.label("L_csend")
tr(c,'C','end')
stamp(c,6)
send(c,"s79","s81")
e=c
e.label("L_fin")
if PAD:
    e.label("L_pad")
    e._emit("s_memrealtime s[100:101]"); e._emit("s_waitcnt lgkmcnt(0)"); e._emit("s_sub_u32 s100, s100, s92"); e._emit(f"s_cmp_lt_u32 s100, {PAD}"); e._emit("s_cbranch_scc1 L_pad")
if TRACE:
    e._emit("s_memrealtime s[100:101]"); e._emit("s_waitcnt vmcnt(0) lgkmcnt(0)")
    e._emit(f"s_cmp_eq_u32 {sWAVE}, {0 if TRACE in ('D','S','H','E') else SW}"); e._emit("s_cbranch_scc0 L_end")
    e._emit("v_mov_b32 v16, s92"); e._emit("v_mov_b32 v17, s100")
    for i in range(14): e._emit(f"s_sub_u32 s{TRREG[i]}, s{TRREG[i]}, s86"); e._emit(f"v_mov_b32 v{18+i}, s{TRREG[i]}")
    e._emit(f"s_lshl_b32 {sT0}, s2, 6"); e._emit(f"s_add_u32 {sT0}, {sT0}, 0x8000000"); e._emit("v_mov_b32 v3, 0"); e._emit("s_mov_b64 exec, 1")
    for i in range(4): e._emit(f"buffer_store_dwordx4 v[{16+4*i}:{19+4*i}], v3, {sWS}, {sT0} offen offset:{16*i}")
    sys.stderr.write(" ".join(f"{i+2}:{n}" for i,n in enumerate(trn[TRACE]))+"\n")
elif STAMP:
    e._emit(f"s_memtime s[70:71]"); e._emit("s_memrealtime s[100:101]"); e._emit("s_waitcnt lgkmcnt(0)")
    e._emit(f"s_cmp_eq_u32 {sWAVE}, 0"); e._emit(f"s_cselect_b32 {sT0}, 1, 0"); e._emit(f"s_cmp_eq_u32 {sWAVE}, {SW}"); e._emit(f"s_cselect_b32 {sT1}, 1, 0"); e._emit(f"s_or_b32 {sT0}, {sT0}, {sT1}"); e._emit("s_cbranch_scc0 L_end")
    for i in range(1,8): e._emit(f"s_sub_u32 s{STR[i]}, s{STR[i]}, s86")
    e._emit("v_mov_b32 v16, s92"); e._emit("v_mov_b32 v17, s100")
    for i in range(1,8): e._emit(f"v_mov_b32 v{17+i}, s{STR[i]}")
    e._emit(f"s_lshl_b32 {sT0}, s2, 6"); e._emit(f"s_add_u32 {sT0}, {sT0}, 0x8000000")
    e._emit("v_mov_b32 v3, 0"); e._emit("s_mov_b64 exec, 1")
    e._emit(f"s_cmp_eq_u32 {sWAVE}, 0"); e._emit("s_cbranch_scc0 L_st4b")
    e._emit(f"buffer_store_dwordx4 v[16:19], v3, {sWS}, {sT0} offen"); e._emit(f"buffer_store_dwordx4 v[20:23], v3, {sWS}, {sT0} offen offset:16"); e._emit(f"buffer_store_dword v24, v3, {sWS}, {sT0} offen offset:32")
    e._emit("s_branch L_end")
    e.label("L_st4b")
    e._emit(f"buffer_store_dwordx4 v[18:21], v3, {sWS}, {sT0} offen offset:36"); e._emit(f"buffer_store_dwordx3 v[22:24], v3, {sWS}, {sT0} offen offset:52")
e.label("L_end")
e._emit("s_endpgm")
e.label("CODE_END")
out = d.text() + "\n" + h.text() + "\n" + c.text() + f"""
.section .rodata,"a"
.p2align 6
.amdhsa_kernel {NAME}
  .amdhsa_next_free_vgpr 256
  .amdhsa_next_free_sgpr 102
  .amdhsa_accum_offset 256
  .amdhsa_group_segment_fixed_size 0
  .amdhsa_kernarg_size 88
  .amdhsa_user_sgpr_count 2
  .amdhsa_user_sgpr_kernarg_segment_ptr 1
  .amdhsa_system_sgpr_workgroup_id_x 1
.end_amdhsa_kernel
"""
print(out)
sys.stderr.write(f"nops D {d.nops} C {c.nops}\n")
```
